```python
import torch

def _softmax(x, axis=-1):
    return torch.softmax(x, dim=axis)

def _gelu(x):
    return torch.nn.functional.gelu(x, approximate='tanh')

def _silu(x):
    return torch.nn.functional.silu(x)

def _sigmoid(x):
    return torch.sigmoid(x)

def _layernorm(x, axis=-1, eps=1e-05):
    m = x.mean(dim=axis, keepdim=True)
    v = x.var(dim=axis, keepdim=True, unbiased=False)
    return (x - m) / torch.sqrt(v + eps)

def _scatter_add(tgt, idx, src, axis=0):
    return tgt.clone().index_add_(axis, idx, src)

def _segment_sum(src, seg, n):
    out = torch.zeros((n,) + src.shape[1:], dtype=src.dtype)
    return out.index_add_(0, seg, src)

def _pad(x, pw):
    flat = tuple((v for pair in reversed(pw) for v in pair))
    return torch.nn.functional.pad(x, flat)
kernel_name = 'standalone__tensor_product_equiv_tfn__graph'

def setup_inputs():

    _w = lambda a: (lambda t: t.to(torch.bfloat16) if t.is_floating_point() else t)(torch.as_tensor(a))
    N, deg, C, L, DE = (10000, 64, 64, 1, 16)
    E = N * deg
    M = (L + 1) ** 2
    src = (lambda lo, hi, *s: torch.randint(lo, hi, s))(0, N, E).to(torch.int64)
    dst = (lambda lo, hi, *s: torch.randint(lo, hi, s))(0, N, E).to(torch.int64)
    r = (lambda *s: torch.randn(*s, dtype=torch.bfloat16) * 0.05)(E, 3)
    r = r / (torch.linalg.norm(r, dim=-1, keepdim=True) + 1e-09)
    rx, ry, rz = (r[:, 0].clone(), r[:, 1].clone(), r[:, 2].clone())
    Ys = [torch.ones((E, 1), dtype=float)]
    if L >= 1:
        Ys.append(r.to(float))
    if L >= 2:
        Ys.append(torch.stack([2 * rx * ry, 2 * ry * rz, (3 * rz * rz - 1.0) / (lambda _x: torch.sqrt(torch.as_tensor(_x)))(3.0), 2 * rx * rz, rx * rx - ry * ry], dim=-1).to(float))
    for _l in range(3, L + 1):
        Ys.append(((lambda *s: torch.randn(*s, dtype=torch.bfloat16) * 0.05)(E, 2 * _l + 1) * 0.3).to(float))
    Y = torch.cat(Ys, dim=-1)
    cg = torch.zeros((M, M, M), dtype=float)
    off = [_l * _l for _l in range(L + 2)]
    for l1 in range(L + 1):
        for l2 in range(L + 1):
            for l3 in range(abs(l1 - l2), min(L, l1 + l2) + 1):
                d1, d2, d3 = (2 * l1 + 1, 2 * l2 + 1, 2 * l3 + 1)
                cg[off[l1]:off[l1 + 1], off[l2]:off[l2 + 1], off[l3]:off[l3 + 1]] = (lambda *s: torch.randn(*s, dtype=torch.bfloat16) * 0.05)(d1, d2, d3) / (lambda _x: torch.sqrt(torch.as_tensor(_x)))(float(d1 * d2))
    return {'x': _w((lambda *s: torch.randn(*s, dtype=torch.bfloat16) * 0.05)(N, C, M) * 0.2), 'src': _w(src), 'dst': _w(dst), 'Y': _w(Y), 'edge_feat': _w((lambda *s: torch.randn(*s, dtype=torch.bfloat16) * 0.05)(E, DE)), 'w_rad': _w((lambda *s: torch.randn(*s, dtype=torch.bfloat16) * 0.05)(DE, C) * (1.0 / max(1.0, DE) ** 0.5)), 'cg': _w(cg), 'w_mix': _w((lambda *s: torch.randn(*s, dtype=torch.bfloat16) * 0.05)(C, C) * (1.0 / max(1.0, C) ** 0.5))}

def reference(x, src, dst, Y, edge_feat, w_rad, cg, w_mix):
    N, C, M = (x.shape[0], x.shape[1], x.shape[2])
    R = _silu(edge_feat @ w_rad)
    xs = x[src]
    tp = torch.einsum('eci,ef,ifo->eco', xs, Y, cg)
    msg = R[:, :, None] * tp
    agg = _segment_sum(msg.reshape(-1, C * M), dst, N).reshape(N, C, M)
    return torch.einsum('ncm,cd->ndm', agg, w_mix)
```

```python
import sys, math

NAME = "standalone__tensor_product_equiv_tfn__graph"
N_NODES, N_EDGES = 10000, 640000
CH = 2560
NCH = 250
NB = 256
REC = 12
WS_ENT = 0
WS_TAB = 0x800000
WS_CONST = 0x900000
C_W, C_CG, C_MIX = 0, 4096, 6144
LOG2E = 0x3FB8AA3B
LN2 = 0x3F317218

def magic(mul, div, lim):
    for S in range(8, 32):
        M = -(-(mul << S) // div)
        if M >= 1 << 24 or (lim - 1) * M >= 1 << 32:
            continue
        if all((x * M) >> S == x * mul // div for x in range(lim)):
            return M, S
    raise ValueError

class Asm:
    def __init__(self):
        self.L = []
    def __call__(self, s):
        for line in s.split("\n"):
            line = line.strip()
            if line:
                self.L.append(line if line.endswith(":") else "    " + line)
    def text(self):
        return "\n".join(self.L) + "\n"

def srd(a, d, base, nbytes, off=0):
    if off:
        a(f"s_add_u32 s{d}, s{base}, {off:#x}\ns_addc_u32 s{d+1}, s{base+1}, 0")
    else:
        a(f"s_mov_b32 s{d}, s{base}\ns_mov_b32 s{d+1}, s{base+1}")
    a(f"s_mov_b32 s{d+2}, {nbytes}\ns_mov_b32 s{d+3}, 0x20000")

def wave_scan(a, v):
    for ctl in ("row_shr:1", "row_shr:2", "row_shr:4", "row_shr:8",
                "row_bcast:15 row_mask:0xa", "row_bcast:31 row_mask:0xc"):
        a(f"s_nop 1\nv_add_u32_dpp v{v}, v{v}, v{v} {ctl}")

def descriptor(name, vgpr, sgpr):
    acc = (vgpr + 3) // 4 * 4
    return f""".amdhsa_kernel {name}
  .amdhsa_next_free_vgpr {vgpr}
  .amdhsa_next_free_sgpr {sgpr}
  .amdhsa_accum_offset {acc}
  .amdhsa_group_segment_fixed_size 0
  .amdhsa_kernarg_size 88
  .amdhsa_user_sgpr_count 2
  .amdhsa_user_sgpr_kernarg_segment_ptr 1
  .amdhsa_system_sgpr_workgroup_id_x 1
  .amdhsa_float_denorm_mode_32 3
.end_amdhsa_kernel
"""

K1_T = 640
K1_HIST, K1_STG = 0, 1024
K1_LDS = K1_STG + CH * REC

def gen_k1(o):
    a = Asm()
    ld = o.get("k1ld", "")
    st = o.get("k1st", "")
    MB, SB = magic(NB, N_NODES, N_NODES)
    a(f"""
part_kernel:
s_cmp_gt_u32 s2, {NCH}
s_cbranch_scc1 L1_end
s_cmp_eq_u32 s2, {NCH}
s_cbranch_scc1 L1_prep
s_load_dwordx4 s[4:7], s[0:1], 8
s_load_dwordx2 s[8:9], s[0:1], 24
s_load_dwordx2 s[10:11], s[0:1], 80
v_lshlrev_b32 v1, 4, v0
v_lshlrev_b32 v2, 5, v0
v_lshlrev_b32 v3, 2, v0
v_mov_b32 v20, 0
s_mul_i32 s3, s2, {CH*4}
s_mul_i32 s33, s2, {CH*8}
s_waitcnt lgkmcnt(0)
""")
    srd(a, 16, 6, N_EDGES * 4)
    a(f"buffer_load_dwordx4 v[4:7], v1, s[16:19], s3 offen {ld}")
    srd(a, 12, 4, N_EDGES * 4)
    a(f"buffer_load_dwordx4 v[8:11], v1, s[12:15], s3 offen {ld}")
    srd(a, 20, 8, N_EDGES * 8)
    a(f"buffer_load_dwordx4 v[12:15], v2, s[20:23], s33 offen {ld}")
    a(f"buffer_load_dwordx4 v[16:19], v2, s[20:23], s33 offen offset:16 {ld}")
    srd(a, 24, 10, NCH * CH * REC, WS_ENT)
    srd(a, 28, 10, NCH * NB * 4, WS_TAB)
    a(f"""
v_cmp_gt_u32 vcc, {NB}, v0
s_and_saveexec_b64 s[34:35], vcc
ds_write_b32 v3, v20 offset:{K1_HIST}
s_mov_b64 exec, s[34:35]
s_mov_b32 s36, {MB}
s_movk_i32 s37, 625
v_mov_b32 v21, 1
s_waitcnt lgkmcnt(0)
s_barrier
s_waitcnt vmcnt(3)
""")
    for k in range(4):
        a(f"""
v_mul_u32_u24 v{24+k}, s36, v{4+k}
v_lshrrev_b32 v{24+k}, {SB}, v{24+k}
v_lshlrev_b32 v{28+k}, 2, v{24+k}
ds_add_rtn_u32 v{32+k}, v{28+k}, v21 offset:{K1_HIST}
""")
    for k in range(4):
        a(f"""
v_mad_u32_u24 v{24+k}, v{24+k}, s37, 15
v_lshrrev_b32 v{24+k}, 4, v{24+k}
v_sub_u32 v{24+k}, v{4+k}, v{24+k}
v_add_u32 v{36+k}, {k}, v3
v_lshlrev_b32 v{36+k}, 20, v{36+k}
v_lshl_or_b32 v{36+k}, v{24+k}, 14, v{36+k}
""")
    a("s_waitcnt vmcnt(2)")
    for k in range(4):
        a(f"v_or_b32 v{36+k}, v{36+k}, v{8+k}")
    a(f"""
s_waitcnt lgkmcnt(0)
s_barrier
v_cmp_gt_u32 vcc, 64, v0
s_cbranch_vccz L1_noscan
ds_read_b128 v[40:43], v1 offset:{K1_HIST}
s_waitcnt lgkmcnt(0)
v_add_u32 v45, v40, v41
v_add_u32 v46, v45, v42
v_add_u32 v47, v46, v43
v_mov_b32 v48, v47
""")
    wave_scan(a, 47)
    a(f"""
v_sub_u32 v44, v47, v48
v_add_u32 v47, v44, v46
v_add_u32 v46, v44, v45
v_add_u32 v45, v44, v40
ds_write_b128 v1, v[44:47] offset:{K1_HIST}
v_lshl_or_b32 v40, v40, 16, v44
v_lshl_or_b32 v41, v41, 16, v45
v_lshl_or_b32 v42, v42, 16, v46
v_lshl_or_b32 v43, v43, 16, v47
s_lshl_b32 s3, s2, 10
buffer_store_dwordx4 v[40:43], v1, s[28:31], s3 offen {st}
s_waitcnt lgkmcnt(0)
L1_noscan:
s_barrier
""")
    for k in range(4):
        a(f"ds_read_b32 v{24+k}, v{28+k} offset:{K1_HIST}")
    for k in range(4):
        a(f"""
s_waitcnt lgkmcnt({3-k})
v_add_u32 v{24+k}, v{24+k}, v{32+k}
v_mul_u32_u24 v{24+k}, {REC}, v{24+k}
""")
    a("s_waitcnt vmcnt(0)")
    for k in range(4):
        a(f"""
v_add_u32 v{24+k}, {K1_STG}, v{24+k}
ds_write2_b32 v{24+k}, v{12+2*k}, v{13+2*k} offset0:0 offset1:1
ds_write_b32 v{24+k}, v{36+k} offset:8
""")
    a(f"""
s_mul_i32 s3, s2, {CH*REC}
s_waitcnt lgkmcnt(0)
s_barrier
""")
    for k in range(3):
        a(f"ds_read_b128 v[{4+4*k}:{7+4*k}], v1 offset:{K1_STG + k*K1_T*16}")
    for k in range(3):
        a(f"""
s_waitcnt lgkmcnt({2-k})
buffer_store_dwordx4 v[{4+4*k}:{7+4*k}], v1, s[24:27], s3 offen {st}
s_add_u32 s3, s3, {K1_T*16}
""")
    a("s_endpgm")
    a(f"""
L1_prep:
s_load_dwordx4 s[4:7], s[0:1], 40
s_load_dwordx2 s[8:9], s[0:1], 56
s_load_dwordx2 s[10:11], s[0:1], 80
v_and_b32 v1, 63, v0
v_lshrrev_b32 v2, 6, v0
s_nop 0
v_readfirstlane_b32 s3, v2
v_lshlrev_b32 v5, 4, v1
s_waitcnt lgkmcnt(0)
""")
    srd(a, 12, 4, 16 * 64 * 2)
    srd(a, 16, 6, 64 * 2)
    srd(a, 20, 8, 64 * 64 * 2)
    srd(a, 24, 10, 16384, WS_CONST)
    a(f"""
s_cmp_eq_u32 s3, 8
s_cbranch_scc1 L1_prep_w
s_cmp_eq_u32 s3, 9
s_cbranch_scc1 L1_prep_cg
""")
    a(f"""
s_and_b32 s28, s3, 1
s_lshl_b32 s28, s28, 7
s_bfe_u32 s29, s3, 0x10001
s_lshl_b32 s29, s29, 1
s_add_u32 s28, s28, s29
s_lshr_b32 s29, s3, 2
s_lshl_b32 s29, s29, 6
s_add_u32 s28, s28, s29
v_lshrrev_b32 v3, 4, v1
v_lshlrev_b32 v3, 11, v3
v_and_b32 v4, 15, v1
v_lshl_add_u32 v3, v4, 2, v3
""")
    for i in range(8):
        a(f"buffer_load_ushort v{16+i}, v3, s[20:23], s28 offen offset:{i*256}")
    a(f"""
s_lshl_b32 s28, s3, 10
s_add_u32 s28, s28, {C_MIX}
s_waitcnt vmcnt(0)
""")
    for j in range(4):
        a(f"v_lshl_or_b32 v{8+j}, v{17+2*j}, 16, v{16+2*j}")
    a(f"""
buffer_store_dwordx4 v[8:11], v5, s[24:27], s28 offen
s_endpgm
L1_prep_w:
v_lshrrev_b32 v3, 5, v1
v_lshlrev_b32 v3, 10, v3
v_and_b32 v4, 31, v1
v_lshl_add_u32 v3, v4, 2, v3
""")
    for i in range(8):
        a(f"buffer_load_dword v{8+i}, v3, s[12:15], 0 offen offset:{i*128}")
    a(f"s_mov_b32 s28, {LOG2E:#x}\ns_waitcnt vmcnt(0)")
    for i in range(8):
        a(f"""
v_lshlrev_b32 v{16+i}, 16, v{8+i}
v_and_b32 v{24+i}, 0xffff0000, v{8+i}
v_mul_f32 v{16+i}, s28, v{16+i}
v_mul_f32 v{24+i}, s28, v{24+i}
""")
    for j in range(8):
        a(f"v_cvt_pk_bf16_f32 v{32+j}, v{16+2*j}, v{17+2*j}")
    for j in range(8):
        a(f"""
v_lshlrev_b32 v6, 16, v{32+j}
v_and_b32 v7, 0xffff0000, v{32+j}
v_sub_f32 v{16+2*j}, v{16+2*j}, v6
v_sub_f32 v{17+2*j}, v{17+2*j}, v7
v_cvt_pk_bf16_f32 v{40+j}, v{16+2*j}, v{17+2*j}
""")
    for q in range(4):
        a(f"buffer_store_dwordx4 v[{32+4*q}:{35+4*q}], v5, s[24:27], 0 offen offset:{C_W + q*1024}")
    a(f"""
s_endpgm
L1_prep_cg:
v_and_b32 v3, 3, v1
v_lshlrev_b32 v3, 1, v3
""")
    for j in range(16):
        a(f"buffer_load_ushort v{16+j}, v3, s[16:19], 0 offen offset:{j*8}")
    a(f"s_movk_i32 s28, {C_CG}\ns_waitcnt vmcnt(0)")
    for j in range(8):
        a(f"v_lshl_or_b32 v{8+j}, v{17+2*j}, 16, v{16+2*j}")
    a(f"""
buffer_store_dwordx4 v[8:11], v5, s[24:27], s28 offen
buffer_store_dwordx4 v[12:15], v5, s[24:27], s28 offen offset:1024
L1_end:
s_endpgm
""")
    return a.text(), 52, 40

ACC_ROW = 272
ACC_NODE = 4 * ACC_ROW
PAD_X = 0x7FFF0000
PAD_E = 0x01FFFFE0

def k2_layout(o):
    cap = o.get("cap", 3072)
    slots = cap + 32
    L = {}
    L["cap"] = cap
    L["XO"] = 0
    L["EW"] = slots * 4
    L["YY"] = slots * 8
    L["ACC"] = slots * 16
    L["HIST"] = L["ACC"] + 40 * ACC_NODE
    L["MISC"] = L["HIST"] + 1024
    L["size"] = L["MISC"] + 64
    return L

def gen_k2(o):
    a = Asm()
    NW = o.get("nw", 12)
    T = NW * 64
    NG = -(-63 // NW)
    NPH = o.get("nph", 2)
    HILO = o.get("hilo", 0)
    efmod = o.get("efmod", "")
    L = k2_layout(o)
    CAP = L["cap"]
    slots = CAP + 32
    MP, SP = magic(NPH, N_NODES, N_NODES) if NPH > 1 else (0, 0)

    S_X, S_EF, S_ENT, S_TAB, S_CON, S_OUT = 12, 16, 20, 24, 28, 32
    sB, sN0, sNN, sWAVE, sK, sQ, sSPLIT, sNBLK = 36, 37, 38, 39, 40, 41, 42, 43
    sCUR, sNXT, sFM, sFMN, sT0, sT1, sEMASK = 44, 45, 46, 47, 48, 49, 50
    sMORE = 51
    sMASK = 52
    n_sgpr = sMASK + 4 * NG

    vLANE, vW, vCG = 1, 4, 4 + (16 if HILO else 8)
    r = vCG + 8
    vXL = r; vAL = r + 1; vCX = r + 2; vCE = r + 3; vCY = r + 4; vCI = r + 5; vEH = r + 6; vONE = r + 7
    r += 8
    base = r
    vU = r; r += 32
    vX = r; r += 32
    vXO = r; r += 8
    vTP = r; r += 16
    vACC = r; r += 8
    vK = r; r += 4
    vKN = r; r += 4
    vEF = r; r += 4
    vT = r; r += 4
    vRL = r; r += 4
    vY = r; r += 2
    vA0 = r; vA1 = r + 1; vA2 = r + 2; vA3 = r + 3; r += 4
    vND = r; vNDN = r + 1; vEWD = r + 2; vQ = r + 3; r += 4
    n_main = r
    r = base
    vTB = r; r += NG
    r += r & 1
    vEN = r; r += 4 * 2 * NG
    vRK = r; r += 2 * NG
    vKY = r; r += 2 * NG
    vF = r + (r & 1); r = vF + 16
    n_vgpr = max(n_main, r)

    a(f"""
msg_kernel:
s_cmp_ge_u32 s2, {NB}
s_cbranch_scc1 L2_end
s_load_dwordx2 s[4:5], s[0:1], 0
s_load_dwordx2 s[6:7], s[0:1], 32
s_load_dwordx2 s[8:9], s[0:1], 64
s_load_dwordx2 s[10:11], s[0:1], 80
s_and_b32 s{sB}, s2, 7
s_lshl_b32 s{sB}, s{sB}, 5
s_lshr_b32 s3, s2, 3
s_add_u32 s{sB}, s{sB}, s3
v_and_b32 v{vLANE}, 63, v0
v_lshrrev_b32 v2, 6, v0
s_nop 0
v_readfirstlane_b32 s{sWAVE}, v2
s_waitcnt lgkmcnt(0)
""")
    srd(a, S_TAB, 10, NCH * NB * 4, WS_TAB)
    srd(a, S_ENT, 10, NCH * CH * REC, WS_ENT)
    srd(a, S_CON, 10, 16384, WS_CONST)
    srd(a, S_X, 4, N_NODES * 512)
    srd(a, S_EF, 6, N_EDGES * 32)
    srd(a, S_OUT, 8, N_NODES * 512)
    a(f"""
s_mul_i32 s{sN0}, s{sB}, 625
s_add_u32 s{sNN}, s{sN0}, {625+15}
s_add_u32 s{sN0}, s{sN0}, 15
s_lshr_b32 s{sN0}, s{sN0}, 4
s_lshr_b32 s{sNN}, s{sNN}, 4
s_mov_b32 s{sK}, 0
s_mov_b32 s{sQ}, 0
s_mov_b32 s{sSPLIT}, 0
s_mov_b32 s{sEMASK}, 0x01ffffff
v_lshlrev_b32 v2, 4, v{vLANE}
""")
    for q in range(4 if HILO else 2):
        a(f"buffer_load_dwordx4 v[{vW+4*q}:{vW+4*q+3}], v2, s[{S_CON}:{S_CON+3}], 0 offen offset:{C_W + q*1024}")
    a(f"s_movk_i32 s{sT0}, {C_CG}")
    for q in range(2):
        a(f"buffer_load_dwordx4 v[{vCG+4*q}:{vCG+4*q+3}], v2, s[{S_CON}:{S_CON+3}], s{sT0} offen offset:{q*1024}")
    a(f"""
v_and_b32 v2, 31, v{vLANE}
v_lshlrev_b32 v{vXL}, 4, v2
v_lshlrev_b32 v{vAL}, 2, v2
v_add_u32 v{vAL}, {L['ACC']}, v{vAL}
v_lshrrev_b32 v{vEH}, 5, v{vLANE}
v_lshlrev_b32 v{vCX}, 6, v{vEH}
v_lshlrev_b32 v{vCY}, 4, v{vEH}
v_lshlrev_b32 v{vEH}, 4, v{vEH}
v_bfe_u32 v{vCE}, v{vLANE}, 2, 1
v_lshlrev_b32 v{vCE}, 4, v{vCE}
v_bfe_u32 v{vCI}, v{vLANE}, 3, 2
v_lshl_add_u32 v{vCE}, v{vCI}, 2, v{vCE}
v_and_b32 v{vCI}, 3, v{vLANE}
v_add_u32 v{vCE}, v{vCE}, v{vCI}
v_lshlrev_b32 v{vCE}, 2, v{vCE}
v_and_b32 v{vCI}, 1, v{vLANE}
v_lshl_add_u32 v{vCY}, v{vCI}, 3, v{vCY}
v_bfe_u32 v{vCI}, v{vLANE}, 2, 3
v_add_u32 v{vCY}, v{vCY}, v{vCI}
v_lshlrev_b32 v{vCY}, 3, v{vCY}
v_and_b32 v{vCI}, 15, v{vLANE}
v_lshlrev_b32 v{vCI}, 2, v{vCI}
v_mov_b32 v{vONE}, 1
""")
    def lds_fill(start, nbytes, val):
        a(f"v_lshlrev_b32 v{vF+4}, 4, v0")
        for j in range(4):
            a(f"v_mov_b32 v{vF+j}, {val:#x}")
        n = nbytes // 16
        assert nbytes % 16 == 0
        if start >= 49152:
            a(f"v_add_u32 v{vF+4}, {start}, v{vF+4}")
            start = 0
        k = 0
        while k * T < n:
            rem = n - k * T
            if rem < T:
                a(f"v_cmp_gt_u32 vcc, {rem}, v0\ns_and_saveexec_b64 s[{sT0}:{sT1}], vcc")
            assert start + k * T * 16 < 65536
            a(f"ds_write_b128 v{vF+4}, v[{vF}:{vF+3}] offset:{start + k*T*16}")
            if rem < T:
                a(f"s_mov_b64 exec, s[{sT0}:{sT1}]")
            k += 1
    lds_fill(L["ACC"], 40 * ACC_NODE, 0)

    a("L2_round:")
    a(f"v_lshrrev_b32 v3, 4, v0\ns_lshl_b32 s3, s{sB}, 2\nv_lshl_add_u32 v3, v3, 10, s3")
    for g in range(NG):
        a(f"buffer_load_dword v{vTB+g}, v3, s[{S_TAB}:{S_TAB+3}], 0 offen")
        if g + 1 < NG:
            a(f"v_add_u32 v3, {NW*4*1024}, v3")
    lds_fill(L["XO"], slots * 4, PAD_X)
    lds_fill(L["EW"], slots * 4, PAD_E)
    lds_fill(L["YY"], slots * 8, 0)
    lds_fill(L["HIST"], 1024 + 64, 0)
    a(f"""
v_and_b32 v2, 15, v0
s_lshl_b32 s{sT0}, s{sK}, 5
v_add_u32 v2, s{sT0}, v2
v_lshrrev_b32 v3, 4, v0
s_mov_b32 s{sMORE}, 0
""")
    for g in range(NG):
        a(f"""
s_waitcnt vmcnt({NG-1})
v_add_u32 v{vF}, {g*NW*4}, v3
v_lshrrev_b32 v{vF+1}, 16, v{vTB+g}
v_and_b32 v{vF+2}, 0xffff, v{vTB+g}
s_add_u32 s{sT1}, s{sT0}, 32
v_cmp_lt_u32 vcc, s{sT1}, v{vF+1}
s_cmp_lg_u64 vcc, 0
s_cselect_b32 s{sMORE}, 1, s{sMORE}
v_lshrrev_b32 v{vF+3}, 6, v{vF}
v_and_b32 v{vF+3}, s{sSPLIT}, v{vF+3}
v_cmp_eq_u32 vcc, s{sQ}, v{vF+3}
v_mul_u32_u24 v{vTB+g}, {CH}, v{vF}
v_add3_u32 v{vF+2}, v{vF+2}, v{vTB+g}, v2
v_cndmask_b32 v{vF+1}, 0, v{vF+1}, vcc
v_mul_u32_u24 v{vF+2}, {REC}, v{vF+2}
v_cmp_lt_u32 s[{sMASK+4*g}:{sMASK+4*g+1}], v2, v{vF+1}
v_add_u32 v{vF+3}, 16, v2
v_cmp_lt_u32 s[{sMASK+4*g+2}:{sMASK+4*g+3}], v{vF+3}, v{vF+1}
v_cndmask_b32 v{vF+4}, -1, v{vF+2}, s[{sMASK+4*g}:{sMASK+4*g+1}]
buffer_load_dwordx3 v[{vEN+8*g}:{vEN+8*g+2}], v{vF+4}, s[{S_ENT}:{S_ENT+3}], 0 offen
v_cndmask_b32 v{vEN+8*g+7}, -1, v{vF+2}, s[{sMASK+4*g+2}:{sMASK+4*g+3}]
""")
    for g in range(NG):
        a(f"""
s_cmp_eq_u64 s[{sMASK+4*g+2}:{sMASK+4*g+3}], 0
s_cbranch_scc1 L2_nold{g}
buffer_load_dwordx3 v[{vEN+8*g+4}:{vEN+8*g+6}], v{vEN+8*g+7}, s[{S_ENT}:{S_ENT+3}], 0 offen offset:{16*REC}
L2_nold{g}:
""")
    a(f"""
s_waitcnt lgkmcnt(0)
s_barrier
s_cmp_eq_u32 s{sMORE}, 0
s_cbranch_scc1 L2_nomore
v_mov_b32 v{vF}, {L['MISC']+8}
ds_write_b32 v{vF}, v{vONE}
L2_nomore:
s_mov_b32 s{sT0}, {MP}
s_waitcnt vmcnt(0)
""")
    def for_parts(body, tag):
        for g in range(NG):
            for p in range(2):
                i = 2 * g + p
                a(f"s_mov_b64 exec, s[{sMASK+2*i}:{sMASK+2*i+1}]")
                if p:
                    a(f"s_cbranch_execz L2_{tag}{g}")
                body(g, i, vEN + 4 * i)
                if p:
                    a(f"L2_{tag}{g}:")
        a("s_mov_b64 exec, -1")
    def rank_body(g, i, e):
        a(f"v_bfe_u32 v{vKY+i}, v{e+2}, 14, 6")
        if NPH > 1:
            a(f"""
v_and_b32 v{vF}, 0x3fff, v{e+2}
v_mul_u32_u24 v{vF}, s{sT0}, v{vF}
v_lshrrev_b32 v{vF}, {SP}, v{vF}
v_mad_u32_u24 v{vKY+i}, v{vF}, 40, v{vKY+i}
""")
        a(f"""
v_lshlrev_b32 v{vKY+i}, 2, v{vKY+i}
v_add_u32 v{vKY+i}, {L['HIST']}, v{vKY+i}
ds_add_rtn_u32 v{vRK+i}, v{vKY+i}, v{vONE}
""")
    for_parts(rank_body, "rk")
    a(f"""
s_waitcnt lgkmcnt(0)
s_barrier
s_cmp_lg_u32 s{sWAVE}, 0
s_cbranch_scc1 L2_noscan
v_lshlrev_b32 v{vF+9}, 4, v0
v_add_u32 v{vF+9}, {L['HIST']}, v{vF+9}
ds_read_b128 v[{vF}:{vF+3}], v{vF+9}
s_waitcnt lgkmcnt(0)
""")
    for j in range(4):
        a(f"v_add_u32 v{vF+j}, 1, v{vF+j}\nv_and_b32 v{vF+j}, -2, v{vF+j}")
    a(f"""
v_add_u32 v{vF+5}, v{vF}, v{vF+1}
v_add_u32 v{vF+6}, v{vF+5}, v{vF+2}
v_add_u32 v{vF+7}, v{vF+6}, v{vF+3}
v_mov_b32 v{vF+8}, v{vF+7}
""")
    wave_scan(a, vF + 7)
    a(f"""
v_sub_u32 v{vF+4}, v{vF+7}, v{vF+8}
v_add_u32 v{vF+7}, v{vF+4}, v{vF+6}
v_add_u32 v{vF+6}, v{vF+4}, v{vF+5}
v_add_u32 v{vF+5}, v{vF+4}, v{vF}
ds_write_b128 v{vF+9}, v[{vF+4}:{vF+7}]
s_waitcnt lgkmcnt(0)
L2_noscan:
s_barrier
v_mov_b32 v{vF}, {L['HIST']+1020}
ds_read_b32 v{vF+1}, v{vF}
ds_read_b32 v{vF+2}, v{vF} offset:12
""")
    def start_body(g, i, e):
        a(f"ds_read_b32 v{vKY+i}, v{vKY+i}")
    for_parts(start_body, "st")
    a(f"""
s_waitcnt lgkmcnt(0)
v_readfirstlane_b32 s{sNBLK}, v{vF+1}
v_readfirstlane_b32 s{sMORE}, v{vF+2}
s_cmp_le_u32 s{sNBLK}, {CAP}
s_cbranch_scc1 L2_fits
s_mov_b32 s{sSPLIT}, 3
s_barrier
s_branch L2_round
L2_fits:
s_add_u32 s{sNBLK}, s{sNBLK}, 31
s_lshr_b32 s{sNBLK}, s{sNBLK}, 5
""")
    def scat_body(g, i, e):
        a(f"""
v_add_u32 v{vF}, v{vKY+i}, v{vRK+i}
v_and_b32 v{vF+1}, 1, v{vF}
v_bfe_u32 v{vF+2}, v{vF}, 1, 4
v_and_b32 v{vF}, -32, v{vF}
v_lshl_or_b32 v{vF}, v{vF+1}, 4, v{vF}
v_or_b32 v{vF}, v{vF}, v{vF+2}
v_lshlrev_b32 v{vF+1}, 3, v{vF}
v_lshlrev_b32 v{vF}, 2, v{vF}
ds_write_b64 v{vF+1}, v[{e}:{e+1}] offset:{L['YY']}
v_and_b32 v{vF+2}, 0x3fff, v{e+2}
v_lshlrev_b32 v{vF+2}, 9, v{vF+2}
ds_write_b32 v{vF}, v{vF+2} offset:{L['XO']}
v_lshrrev_b32 v{vF+3}, 20, v{e+2}
v_add_lshl_u32 v{vF+3}, v{vF+3}, v{vTB+g}, 5
v_bfe_u32 v{vF+4}, v{e+2}, 14, 6
v_lshl_or_b32 v{vF+3}, v{vF+4}, 25, v{vF+3}
ds_write_b32 v{vF}, v{vF+3} offset:{L['EW']}
""")
    for_parts(scat_body, "sc")
    a(f"""
s_waitcnt lgkmcnt(0)
s_barrier
""")

    NULLB = CAP // 32
    def block_addrs(sreg):
        a(f"""
s_lshl_b32 s{sT0}, s{sreg}, 7
s_lshl_b32 s{sT1}, s{sreg}, 8
v_add_u32 v{vA0}, s{sT0}, v{vCX}
v_add_u32 v{vA1}, s{sT0}, v{vCE}
v_add_u32 v{vA2}, s{sT1}, v{vCY}
v_add_u32 v{vA3}, s{sT0}, v{vCI}
ds_read_b32 v{vEWD}, v{vA1} offset:{L['EW']}
ds_read_b64 v[{vY}:{vY+1}], v{vA2} offset:{L['YY']}
ds_read_b32 v{vNDN}, v{vA3} offset:{L['EW']}
""")
    def quad_read(q, slot):
        a(f"ds_read_b128 v[{vXO+4*slot}:{vXO+4*slot+3}], v{vA0} offset:{L['XO'] + q*16}")
    def x_load(step):
        xo = vXO + 4 * ((step // 4) & 1) + step % 4
        d = vX + 4 * (step % 8)
        return (f"v_add_u32 v{xo}, v{xo}, v{vXL}",
                f"buffer_load_dwordx4 v[{d}:{d+3}], v{xo}, s[{S_X}:{S_X+3}], 0 offen")
    def ef_issue():
        a(f"""
v_and_or_b32 v{vEWD}, v{vEWD}, s{sEMASK}, v{vEH}
v_lshrrev_b32 v{vNDN}, 25, v{vNDN}
buffer_load_dwordx4 v[{vEF}:{vEF+3}], v{vEWD}, s[{S_EF}:{S_EF+3}], 0 offen {efmod}
s_nop 0
v_xor_b32_dpp v{vA2}, v{vNDN}, v{vNDN} row_shl:1 row_mask:0xf bank_mask:0xf bound_ctrl:0
v_cmp_ne_u32 vcc, 0, v{vA2}
v_mul_u32_u24 v{vNDN}, {ACC_NODE}, v{vNDN}
s_or_b32 s{sFMN}, vcc_lo, 0x8000
""")
    def k_mfma():
        for i in range(4):
            a(f"v_mfma_f32_4x4x4_16b_bf16 v[{vTP+4*i}:{vTP+4*i+3}], v[{vY}:{vY+1}], v[{vCG+2*i}:{vCG+2*i+1}], 0")
    def k_cvt():
        for j in range(2):
            a(f"v_cvt_pk_bf16_f32 v{vKN+2*j}, v{vTP+j}, v{vTP+4+j}")
            a(f"v_cvt_pk_bf16_f32 v{vKN+2*j+1}, v{vTP+8+j}, v{vTP+12+j}")
    def u_mfma():
        for p in range(2):
            a(f"v_mfma_f32_32x32x16_bf16 v[{vU+16*p}:{vU+16*p+15}], v[{vEF}:{vEF+3}], v[{vW+4*p}:{vW+4*p+3}], 0")
        if HILO:
            for p in range(2):
                a(f"v_mfma_f32_32x32x16_bf16 v[{vU+16*p}:{vU+16*p+15}], v[{vEF}:{vEF+3}], v[{vW+8+4*p}:{vW+8+4*p+3}], v[{vU+16*p}:{vU+16*p+15}]")
    def silu_ops(d):
        E = [f"v_exp_f32 v{vT+2*p+j}, -v{vU+16*p+2*d+j}" for p in range(2) for j in range(2)]
        A = [f"v_pk_add_f32 v[{vT+2*p}:{vT+2*p+1}], v[{vT+2*p}:{vT+2*p+1}], 1.0 op_sel_hi:[1,0]" for p in range(2)]
        R = [f"v_rcp_f32 v{vT+2*p+j}, v{vT+2*p+j}" for p in range(2) for j in range(2)]
        M = []
        for p in range(2):
            src = vU + 16 * p + 2 * d
            dst = vRL + 2 * p if d == 7 else src
            M.append(f"v_pk_mul_f32 v[{dst}:{dst+1}], v[{src}:{src+1}], v[{vT+2*p}:{vT+2*p+1}]")
        return E, A, R, M
    def fma_ops(step):
        d, j = divmod(step, 2)
        out = []
        for p in range(2):
            rr = vRL + 2 * p if d == 7 else vU + 16 * p + 2 * d
            for hh in range(2):
                t = vTP + 8 * j + 4 * p + 2 * hh
                c = vACC + 4 * p + 2 * hh
                out.append(f"v_pk_fma_f32 v[{c}:{c+1}], v[{t}:{t+1}], v[{rr}:{rr+1}], v[{c}:{c+1}] op_sel:[0,{j},0] op_sel_hi:[1,{j},1]")
        return out
    def tp_ops(step):
        out = []
        j = step & 1
        for p in range(2):
            t = vTP + 8 * j + 4 * p
            x = vX + 4 * (step % 8) + 2 * p
            k = vK + 2 * (step // 8)
            out.append(f"v_mfma_f32_4x4x4_16b_bf16 v[{t}:{t+3}], v[{k}:{k+1}], v[{x}:{x+1}], 0 cbsz:3 abid:{step%8}")
        return out
    def flush_check(step):
        if step == 15:
            flush_body(step)
        else:
            a(f"s_bitcmp1_b32 s{sFM}, {step}\ns_cbranch_scc1 L2_fl{step}\nL2_fr{step}:")
    def flush_body(step):
        a(f"""
v_readlane_b32 s{sT0}, v{vND}, {step}
s_nop 1
v_add_u32 v{vQ}, s{sT0}, v{vAL}
""")
        for p in range(2):
            for oo in range(4):
                a(f"ds_add_f32 v{vQ}, v{vACC+4*p+oo} offset:{oo*ACC_ROW + p*128}")
        for j in range(4):
            a(f"v_mov_b64 v[{vACC+2*j}:{vACC+2*j+1}], 0")
    def grab():
        a(f"""
v_mov_b32 v{vA1}, {L['MISC']}
s_mov_b64 exec, 1
ds_add_rtn_u32 v{vA1}, v{vA1}, v{vONE}
s_mov_b64 exec, -1
""")
    def grab_done():
        a(f"""
s_waitcnt lgkmcnt(0)
v_readfirstlane_b32 s{sNXT}, v{vA1}
s_add_u32 s{sNXT}, s{sNXT}, {NW}
s_cmp_lt_u32 s{sNXT}, s{sNBLK}
s_cselect_b32 s{sNXT}, s{sNXT}, {NULLB}
""")

    a(f"""
s_cmp_ge_u32 s{sWAVE}, s{sNBLK}
s_cbranch_scc1 L2_done
s_mov_b32 s{sNXT}, s{sWAVE}
""")
    block_addrs(sNXT)
    quad_read(0, 0)
    quad_read(1, 1)
    a("s_waitcnt lgkmcnt(0)")
    ef_issue()
    for s in range(8):
        for ins in x_load(s):
            a(ins)
    quad_read(2, 0)
    for j in range(4):
        a(f"v_mov_b64 v[{vACC+2*j}:{vACC+2*j+1}], 0")
    k_mfma()
    a("s_nop 7")
    k_cvt()
    a("s_waitcnt vmcnt(8)")
    a("s_branch L2_enter")

    a("L2_block:")
    for d in range(8):
        s0, s1 = 2 * d, 2 * d + 1
        if d == 0:
            quad_read(3, 1)
            grab()
        n = 6 + (1 if 3 <= d <= 5 else 0)
        a(f"s_waitcnt vmcnt({n})")
        M = tp_ops(s0) + tp_ops(s1)
        if d < 7:
            E, A, R, U = silu_ops(d + 1)
        else:
            E = A = R = U = []
        for i in range(4):
            a(M[i])
            if E:
                a(E[i])
        if d == 1:
            grab_done()
            block_addrs(sNXT)
        if d in (0, 2, 4, 6):
            a("s_waitcnt lgkmcnt(0)" if d else "s_waitcnt lgkmcnt(2)")
        if d == 2:
            ef_issue()
        l0, l1 = x_load((s0 + 8) % 16), x_load((s1 + 8) % 16)
        a(l0[0]); a(l1[0]); a(l0[1]); a(l1[1])
        if d in (2, 4, 6):
            quad_read(d // 2 - 1, (d // 2 - 1) & 1)
        if d == 7:
            a("s_nop 2")
        for ins in A:
            a(ins)
        for ins in fma_ops(s0):
            a(ins)
        flush_check(s0)
        for ins in R:
            a(ins)
        for ins in fma_ops(s1):
            a(ins)
        flush_check(s1)
        for ins in U:
            a(ins)
        if d == 4:
            k_mfma()
            a("s_nop 7")
            k_cvt()
    a(f"""
s_cmp_eq_u32 s{sNXT}, {NULLB}
s_cbranch_scc1 L2_done
L2_enter:
""")
    u_mfma()
    a(f"""
v_mov_b64 v[{vK}:{vK+1}], v[{vKN}:{vKN+1}]
v_mov_b64 v[{vK+2}:{vK+3}], v[{vKN+2}:{vKN+3}]
v_mov_b32 v{vND}, v{vNDN}
s_mov_b32 s{sFM}, s{sFMN}
s_nop 7
""")
    E, A, R, U = silu_ops(0)
    for ins in E:
        a(ins)
    a("s_nop 0")
    for ins in A + R:
        a(ins)
    a("s_nop 0")
    for ins in U:
        a(ins)
    a("s_branch L2_block")
    for s in range(15):
        a(f"L2_fl{s}:")
        flush_body(s)
        a(f"s_branch L2_fr{s}")

    vB = base + (base & 1)
    vEA = vB + 32
    a(f"""
L2_done:
s_waitcnt vmcnt(0) lgkmcnt(0)
s_cmp_eq_u32 s{sQ}, s{sSPLIT}
s_cbranch_scc1 L2_lastq
s_add_u32 s{sQ}, s{sQ}, 1
s_barrier
s_branch L2_round
L2_lastq:
s_cmp_eq_u32 s{sMORE}, 0
s_cbranch_scc1 L2_epi
s_add_u32 s{sK}, s{sK}, 1
s_mov_b32 s{sQ}, 0
s_mov_b32 s{sSPLIT}, 0
s_barrier
s_branch L2_round
L2_epi:
v_lshlrev_b32 v2, 4, v{vLANE}
s_movk_i32 s{sT0}, {C_MIX}
""")
    for q in range(8):
        if q == 4:
            a(f"s_movk_i32 s{sT0}, {C_MIX + 4096}")
        a(f"buffer_load_dwordx4 v[{vB+4*q}:{vB+4*q+3}], v2, s[{S_CON}:{S_CON+3}], s{sT0} offen offset:{(q%4)*1024}")
    a(f"""
s_barrier
L2_epi_job:
s_cmp_ge_u32 s{sWAVE}, 10
s_cbranch_scc1 L2_end
v_and_b32 v2, 15, v{vLANE}
v_mul_u32_u24 v2, {ACC_ROW}, v2
v_lshrrev_b32 v3, 4, v{vLANE}
v_lshl_add_u32 v2, v3, 5, v2
s_mul_i32 s{sT0}, s{sWAVE}, {4*ACC_NODE}
s_add_u32 s{sT0}, s{sT0}, {L['ACC']}
v_add_u32 v2, s{sT0}, v2
""")
    for ks in range(2):
        for hh in range(2):
            a(f"ds_read_b128 v[{vEA+8*ks+4*hh}:{vEA+8*ks+4*hh+3}], v2 offset:{ks*128+hh*16}")
    a(f"""
s_lshl_b32 s{sT0}, s{sWAVE}, 2
s_add_u32 s{sT0}, s{sT0}, s{sN0}
v_add_u32 v3, s{sT0}, v3
v_cmp_gt_u32 vcc, s{sNN}, v3
v_lshlrev_b32 v3, 9, v3
v_and_b32 v2, 15, v{vLANE}
v_lshl_add_u32 v3, v2, 4, v3
s_mov_b32 s{sT0}, {LN2:#x}
s_waitcnt lgkmcnt(0)
""")
    vPA = vEA + 16
    for j in range(16):
        a(f"v_mul_f32 v{vEA+j}, s{sT0}, v{vEA+j}")
    for j in range(8):
        a(f"v_cvt_pk_bf16_f32 v{vPA+j}, v{vEA+2*j}, v{vEA+2*j+1}")
    a("s_waitcnt vmcnt(0)\ns_nop 1")
    vD = vPA + 8
    for ks in range(2):
        for t in range(4):
            c = "0" if ks == 0 else f"v[{vD+4*t}:{vD+4*t+3}]"
            a(f"v_mfma_f32_16x16x32_bf16 v[{vD+4*t}:{vD+4*t+3}], v[{vPA+4*ks}:{vPA+4*ks+3}], v[{vB+8*t+4*ks}:{vB+8*t+4*ks+3}], {c}")
    a("s_nop 7")
    for j in range(8):
        a(f"v_cvt_pk_bf16_f32 v{vEA+j}, v{vD+2*j}, v{vD+2*j+1}")
    a(f"""
s_and_b64 exec, exec, vcc
s_cbranch_execz L2_end
buffer_store_dwordx4 v[{vEA}:{vEA+3}], v3, s[{S_OUT}:{S_OUT+3}], 0 offen
buffer_store_dwordx4 v[{vEA+4}:{vEA+7}], v3, s[{S_OUT}:{S_OUT+3}], 0 offen offset:256
s_mov_b64 exec, -1
""")
    if NW < 10:
        a(f"s_add_u32 s{sWAVE}, s{sWAVE}, {NW}\ns_nop 1\ns_branch L2_epi_job")
    a("L2_end:\ns_endpgm")
    n_vgpr = max(n_vgpr, vD + 16)
    return a.text(), n_vgpr, n_sgpr, T, L["size"]

HEADER = open("cdna_kernels/" + NAME + ".s.ref").read().split("; Override launch")[0]

def build(o):
    k1, v1, s1 = gen_k1(o)
    k2, v2, s2, T2, lds2 = gen_k2(o)
    out = HEADER
    out += f"; @launch kernel=part_kernel grid=({NCH+1},1,1) block=({K1_T},1,1) lds={K1_LDS}\n"
    out += f"; @launch kernel=msg_kernel grid=({NB},1,1) block=({T2},1,1) lds={lds2}\n"
    out += '.amdgcn_target "amdgcn-amd-amdhsa--gfx950"\n.text\n'
    for name, body in (("part_kernel", k1), ("msg_kernel", k2)):
        out += f".globl {name}\n.p2align 8\n.type {name},@function\n{body}"
    out += '.section .rodata,"a"\n.p2align 6\n'
    out += descriptor("part_kernel", v1, s1)
    out += ".p2align 6\n"
    out += descriptor("msg_kernel", v2, s2)
    return out, dict(v2=v2, s2=s2, lds2=lds2)

if __name__ == "__main__":
    o = {}
    path = "cdna_kernels/" + NAME + ".s"
    for arg in sys.argv[1:]:
        k, v = arg.split("=", 1)
        if k == "out":
            path = v
        else:
            o[k] = int(v) if v.lstrip("-").isdigit() else v.replace("+", " ")
    txt, info = build(o)
    open(path, "w").write(txt)
    print(path, info)
```

```python
import gen, sys, re
def with_extra(txt, n_pre, n_post, dup=False):
    lines = txt.split("\n")
    idx = [i for i, l in enumerate(lines) if l.startswith("; @launch")]
    e = "; @launch kernel=nop_kernel grid=(1,1,1) block=(64,1,1) lds=0"
    own = lines[idx[0]:idx[-1]+1]
    new = [e]*n_pre + own + (own if dup else []) + [e]*n_post
    lines[idx[0]:idx[-1]+1] = new
    txt = "\n".join(lines)
    if n_pre or n_post:
        txt = txt.replace('.section .rodata', '.globl nop_kernel\n.p2align 8\n.type nop_kernel,@function\nnop_kernel:\n    s_endpgm\n.section .rodata')
        txt += ".p2align 6\n" + gen.descriptor("nop_kernel", 8, 16)
    return txt
base, _ = gen.build({})
open("v_pre1.s", "w").write(with_extra(base, 1, 0))
open("v_post1.s", "w").write(with_extra(base, 0, 1))
open("v_post4.s", "w").write(with_extra(base, 0, 4))
open("v_dup.s", "w").write(with_extra(base, 0, 0, True))
```

```python
import sys, math

NAME = "standalone__tensor_product_equiv_tfn__graph"
N_NODES, N_EDGES = 10000, 640000
CH = 2560
NCH = 250
NB = 256
REC = 12
WS_ENT = 0
WS_TAB = 0x800000
WS_CONST = 0x900000
C_W, C_CG, C_MIX = 0, 4096, 6144
LOG2E = 0x3FB8AA3B
LN2 = 0x3F317218

def magic(mul, div, lim):
    for S in range(8, 32):
        M = -(-(mul << S) // div)
        if M >= 1 << 24 or (lim - 1) * M >= 1 << 32:
            continue
        if all((x * M) >> S == x * mul // div for x in range(lim)):
            return M, S
    raise ValueError

class Asm:
    def __init__(self):
        self.L = []
    def __call__(self, s):
        for line in s.split("\n"):
            line = line.strip()
            if line:
                self.L.append(line if line.endswith(":") else "    " + line)
    def text(self):
        return "\n".join(self.L) + "\n"

def srd(a, d, base, nbytes, off=0):
    if off:
        a(f"s_add_u32 s{d}, s{base}, {off:#x}\ns_addc_u32 s{d+1}, s{base+1}, 0")
    else:
        a(f"s_mov_b32 s{d}, s{base}\ns_mov_b32 s{d+1}, s{base+1}")
    a(f"s_mov_b32 s{d+2}, {nbytes}\ns_mov_b32 s{d+3}, 0x20000")

def wave_scan(a, v):
    for ctl in ("row_shr:1", "row_shr:2", "row_shr:4", "row_shr:8",
                "row_bcast:15 row_mask:0xa", "row_bcast:31 row_mask:0xc"):
        a(f"s_nop 1\nv_add_u32_dpp v{v}, v{v}, v{v} {ctl}")

def descriptor(name, vgpr, sgpr):
    acc = (vgpr + 3) // 4 * 4
    return f""".amdhsa_kernel {name}
  .amdhsa_next_free_vgpr {vgpr}
  .amdhsa_next_free_sgpr {sgpr}
  .amdhsa_accum_offset {acc}
  .amdhsa_group_segment_fixed_size 0
  .amdhsa_kernarg_size 88
  .amdhsa_user_sgpr_count 2
  .amdhsa_user_sgpr_kernarg_segment_ptr 1
  .amdhsa_system_sgpr_workgroup_id_x 1
  .amdhsa_float_denorm_mode_32 3
.end_amdhsa_kernel
"""

WS_STAMP = 0xA00000
def stamp(a, o, idx):
    if o.get("stamps"):
        a(f"s_memrealtime s[{84+2*idx}:{85+2*idx}]")
def stamp_out(a, o, kern, n, tag):
    if not o.get("stamps"):
        return
    a(f"s_waitcnt vmcnt(0) lgkmcnt(0)")
    a(f"s_load_dwordx2 s[80:81], s[0:1], 80\ns_waitcnt lgkmcnt(0)")
    srd(a, 76, 80, 0x10000, WS_STAMP + kern * 0x10000)
    a(f"s_mov_b64 exec, -1\nv_cmp_eq_u32 vcc, 0, v0\ns_and_b64 exec, exec, vcc\ns_cbranch_execz L_st{tag}")
    a(f"s_lshl_b32 s82, s2, 6\nv_mov_b32 v4, s82")
    for i in range(n):
        a(f"v_mov_b32 v2, s{84+2*i}\nv_mov_b32 v3, s{85+2*i}\nbuffer_store_dwordx2 v[2:3], v4, s[76:79], 0 offen offset:{8*i}")
    a(f"L_st{tag}:")

K1_T = 640
K1_HIST, K1_STG = 0, 1024
K1_LDS = K1_STG + CH * REC

def gen_k1(o):
    a = Asm()
    ld = o.get("k1ld", "")
    st = o.get("k1st", "")
    MB, SB = magic(NB, N_NODES, N_NODES)
    a(f"""
part_kernel:
s_cmp_gt_u32 s2, {NCH}
s_cbranch_scc1 L1_end
s_cmp_eq_u32 s2, {NCH}
s_cbranch_scc1 L1_prep
""")
    stamp(a, o, 0)
    a(f"""
s_load_dwordx4 s[4:7], s[0:1], 8
s_load_dwordx2 s[8:9], s[0:1], 24
s_load_dwordx2 s[10:11], s[0:1], 80
v_lshlrev_b32 v1, 4, v0
v_lshlrev_b32 v2, 5, v0
v_lshlrev_b32 v3, 2, v0
v_mov_b32 v20, 0
s_mul_i32 s3, s2, {CH*4}
s_mul_i32 s33, s2, {CH*8}
s_waitcnt lgkmcnt(0)
""")
    srd(a, 16, 6, N_EDGES * 4)
    a(f"buffer_load_dwordx4 v[4:7], v1, s[16:19], s3 offen {ld}")
    srd(a, 12, 4, N_EDGES * 4)
    a(f"buffer_load_dwordx4 v[8:11], v1, s[12:15], s3 offen {ld}")
    srd(a, 20, 8, N_EDGES * 8)
    a(f"buffer_load_dwordx4 v[12:15], v2, s[20:23], s33 offen {ld}")
    a(f"buffer_load_dwordx4 v[16:19], v2, s[20:23], s33 offen offset:16 {ld}")
    srd(a, 24, 10, NCH * CH * REC, WS_ENT)
    srd(a, 28, 10, NCH * NB * 4, WS_TAB)
    a(f"""
v_cmp_gt_u32 vcc, {NB}, v0
s_and_saveexec_b64 s[34:35], vcc
ds_write_b32 v3, v20 offset:{K1_HIST}
s_mov_b64 exec, s[34:35]
s_mov_b32 s36, {MB}
s_movk_i32 s37, 625
v_mov_b32 v21, 1
s_waitcnt lgkmcnt(0)
s_barrier
s_waitcnt vmcnt(3)
""")
    stamp(a, o, 1)
    for k in range(4):
        a(f"""
v_mul_u32_u24 v{24+k}, s36, v{4+k}
v_lshrrev_b32 v{24+k}, {SB}, v{24+k}
v_lshlrev_b32 v{28+k}, 2, v{24+k}
ds_add_rtn_u32 v{32+k}, v{28+k}, v21 offset:{K1_HIST}
""")
    for k in range(4):
        a(f"""
v_mad_u32_u24 v{24+k}, v{24+k}, s37, 15
v_lshrrev_b32 v{24+k}, 4, v{24+k}
v_sub_u32 v{24+k}, v{4+k}, v{24+k}
v_add_u32 v{36+k}, {k}, v3
v_lshlrev_b32 v{36+k}, 20, v{36+k}
v_lshl_or_b32 v{36+k}, v{24+k}, 14, v{36+k}
""")
    a("s_waitcnt vmcnt(2)")
    for k in range(4):
        a(f"v_or_b32 v{36+k}, v{36+k}, v{8+k}")
    a(f"""
s_waitcnt lgkmcnt(0)
s_barrier
v_cmp_gt_u32 vcc, 64, v0
s_cbranch_vccz L1_noscan
ds_read_b128 v[40:43], v1 offset:{K1_HIST}
s_waitcnt lgkmcnt(0)
v_add_u32 v45, v40, v41
v_add_u32 v46, v45, v42
v_add_u32 v47, v46, v43
v_mov_b32 v48, v47
""")
    wave_scan(a, 47)
    a(f"""
v_sub_u32 v44, v47, v48
v_add_u32 v47, v44, v46
v_add_u32 v46, v44, v45
v_add_u32 v45, v44, v40
ds_write_b128 v1, v[44:47] offset:{K1_HIST}
v_lshl_or_b32 v40, v40, 16, v44
v_lshl_or_b32 v41, v41, 16, v45
v_lshl_or_b32 v42, v42, 16, v46
v_lshl_or_b32 v43, v43, 16, v47
s_lshl_b32 s3, s2, 10
buffer_store_dwordx4 v[40:43], v1, s[28:31], s3 offen {st}
s_waitcnt lgkmcnt(0)
L1_noscan:
s_barrier
""")
    for k in range(4):
        a(f"ds_read_b32 v{24+k}, v{28+k} offset:{K1_HIST}")
    for k in range(4):
        a(f"""
s_waitcnt lgkmcnt({3-k})
v_add_u32 v{24+k}, v{24+k}, v{32+k}
v_mul_u32_u24 v{24+k}, {REC}, v{24+k}
""")
    a("s_waitcnt vmcnt(0)")
    stamp(a, o, 2)
    for k in range(4):
        a(f"""
v_add_u32 v{24+k}, {K1_STG}, v{24+k}
ds_write2_b32 v{24+k}, v{12+2*k}, v{13+2*k} offset0:0 offset1:1
ds_write_b32 v{24+k}, v{36+k} offset:8
""")
    a(f"""
s_mul_i32 s3, s2, {CH*REC}
s_waitcnt lgkmcnt(0)
s_barrier
""")
    for k in range(3):
        a(f"ds_read_b128 v[{4+4*k}:{7+4*k}], v1 offset:{K1_STG + k*K1_T*16}")
    for k in range(3):
        a(f"""
s_waitcnt lgkmcnt({2-k})
buffer_store_dwordx4 v[{4+4*k}:{7+4*k}], v1, s[24:27], s3 offen {st}
s_add_u32 s3, s3, {K1_T*16}
""")
    if o.get("stamps"):
        a("s_waitcnt vmcnt(0)")
    stamp(a, o, 3)
    stamp_out(a, o, 0, 4, "a")
    a("s_endpgm")
    a(f"""
L1_prep:
s_load_dwordx4 s[4:7], s[0:1], 40
s_load_dwordx2 s[8:9], s[0:1], 56
s_load_dwordx2 s[10:11], s[0:1], 80
v_and_b32 v1, 63, v0
v_lshrrev_b32 v2, 6, v0
s_nop 0
v_readfirstlane_b32 s3, v2
v_lshlrev_b32 v5, 4, v1
s_waitcnt lgkmcnt(0)
""")
    srd(a, 12, 4, 16 * 64 * 2)
    srd(a, 16, 6, 64 * 2)
    srd(a, 20, 8, 64 * 64 * 2)
    srd(a, 24, 10, 16384, WS_CONST)
    a(f"""
s_cmp_eq_u32 s3, 8
s_cbranch_scc1 L1_prep_w
s_cmp_eq_u32 s3, 9
s_cbranch_scc1 L1_prep_cg
""")
    a(f"""
s_and_b32 s28, s3, 1
s_lshl_b32 s28, s28, 7
s_bfe_u32 s29, s3, 0x10001
s_lshl_b32 s29, s29, 1
s_add_u32 s28, s28, s29
s_lshr_b32 s29, s3, 2
s_lshl_b32 s29, s29, 6
s_add_u32 s28, s28, s29
v_lshrrev_b32 v3, 4, v1
v_lshlrev_b32 v3, 11, v3
v_and_b32 v4, 15, v1
v_lshl_add_u32 v3, v4, 2, v3
""")
    for i in range(8):
        a(f"buffer_load_ushort v{16+i}, v3, s[20:23], s28 offen offset:{i*256}")
    a(f"""
s_lshl_b32 s28, s3, 10
s_add_u32 s28, s28, {C_MIX}
s_waitcnt vmcnt(0)
""")
    for j in range(4):
        a(f"v_lshl_or_b32 v{8+j}, v{17+2*j}, 16, v{16+2*j}")
    a(f"""
buffer_store_dwordx4 v[8:11], v5, s[24:27], s28 offen
s_endpgm
L1_prep_w:
v_lshrrev_b32 v3, 5, v1
v_lshlrev_b32 v3, 10, v3
v_and_b32 v4, 31, v1
v_lshl_add_u32 v3, v4, 2, v3
""")
    for i in range(8):
        a(f"buffer_load_dword v{8+i}, v3, s[12:15], 0 offen offset:{i*128}")
    a(f"s_mov_b32 s28, {LOG2E:#x}\ns_waitcnt vmcnt(0)")
    for i in range(8):
        a(f"""
v_lshlrev_b32 v{16+i}, 16, v{8+i}
v_and_b32 v{24+i}, 0xffff0000, v{8+i}
v_mul_f32 v{16+i}, s28, v{16+i}
v_mul_f32 v{24+i}, s28, v{24+i}
""")
    for j in range(8):
        a(f"v_cvt_pk_bf16_f32 v{32+j}, v{16+2*j}, v{17+2*j}")
    for j in range(8):
        a(f"""
v_lshlrev_b32 v6, 16, v{32+j}
v_and_b32 v7, 0xffff0000, v{32+j}
v_sub_f32 v{16+2*j}, v{16+2*j}, v6
v_sub_f32 v{17+2*j}, v{17+2*j}, v7
v_cvt_pk_bf16_f32 v{40+j}, v{16+2*j}, v{17+2*j}
""")
    for q in range(4):
        a(f"buffer_store_dwordx4 v[{32+4*q}:{35+4*q}], v5, s[24:27], 0 offen offset:{C_W + q*1024}")
    a(f"""
s_endpgm
L1_prep_cg:
v_and_b32 v3, 3, v1
v_lshlrev_b32 v3, 1, v3
""")
    for j in range(16):
        a(f"buffer_load_ushort v{16+j}, v3, s[16:19], 0 offen offset:{j*8}")
    a(f"s_movk_i32 s28, {C_CG}\ns_waitcnt vmcnt(0)")
    for j in range(8):
        a(f"v_lshl_or_b32 v{8+j}, v{17+2*j}, 16, v{16+2*j}")
    a(f"""
buffer_store_dwordx4 v[8:11], v5, s[24:27], s28 offen
buffer_store_dwordx4 v[12:15], v5, s[24:27], s28 offen offset:1024
L1_end:
s_endpgm
""")
    return a.text(), 52, (100 if o.get('stamps') else 40)

ACC_ROW = 528
ACC_NODE = 4 * ACC_ROW
PAD_X = 0x7FFF0000
PAD_E = 0x01FFFFE0

def k2_layout(o):
    cap = o.get("cap", 3072)
    slots = cap + 32
    L = {}
    L["cap"] = cap
    L["XO"] = 0
    L["EW"] = slots * 4
    L["YY"] = slots * 8
    L["ACC"] = slots * 16
    L["HIST"] = L["ACC"] + 40 * ACC_NODE
    L["MISC"] = L["HIST"] + 1024
    L["size"] = L["MISC"] + 64
    return L

def gen_k2(o):
    a = Asm()
    NW = o.get("nw", 12)
    T = NW * 64
    NG = -(-63 // NW)
    NPH = o.get("nph", 2)
    HILO = o.get("hilo", 0)
    efmod = o.get("efmod", "")
    L = k2_layout(o)
    CAP = L["cap"]
    slots = CAP + 32
    MP, SP = magic(NPH, N_NODES, N_NODES) if NPH > 1 else (0, 0)

    S_X, S_EF, S_ENT, S_TAB, S_CON, S_OUT = 12, 16, 20, 24, 28, 32
    sB, sN0, sNN, sWAVE, sK, sQ, sSPLIT, sNBLK = 36, 37, 38, 39, 40, 41, 42, 43
    sCUR, sNXT, sFM, sFMN, sT0, sT1, sEMASK = 44, 45, 46, 47, 48, 49, 50
    sMORE = 51
    sMASK = 52
    n_sgpr = sMASK + 4 * NG

    vLANE, vW, vCG = 1, 4, 4 + (16 if HILO else 8)
    r = vCG + 8
    vXL = r; vAL = r + 1; vCX = r + 2; vCE = r + 3; vCY = r + 4; vCI = r + 5; vEH = r + 6; vONE = r + 7
    r += 8
    base = r
    vU = r; r += 32
    vX = r; r += 32
    vXO = r; r += 8
    vTP = r; r += 16
    vACC = r; r += 8
    vK = r; r += 4
    vKN = r; r += 4
    vEF = r; r += 4
    vT = r; r += 4
    vRL = r; r += 4
    vY = r; r += 2
    vA0 = r; vA1 = r + 1; vA2 = r + 2; vA3 = r + 3; r += 4
    vND = r; vNDN = r + 1; vEWD = r + 2; vQ = r + 3; r += 4
    n_main = r
    r = base
    vTB = r; r += NG
    r += r & 1
    vEN = r; r += 4 * 2 * NG
    vRK = r; r += 2 * NG
    vKY = r; r += 2 * NG
    vF = r + (r & 1); r = vF + 16
    n_vgpr = max(n_main, r)

    a(f"""
msg_kernel:
s_cmp_ge_u32 s2, {NB}
s_cbranch_scc1 L2_end
""")
    stamp(a, o, 0)
    a(f"""
s_load_dwordx2 s[4:5], s[0:1], 0
s_load_dwordx2 s[6:7], s[0:1], 32
s_load_dwordx2 s[8:9], s[0:1], 64
s_load_dwordx2 s[10:11], s[0:1], 80
s_and_b32 s{sB}, s2, 7
s_lshl_b32 s{sB}, s{sB}, 5
s_lshr_b32 s3, s2, 3
s_add_u32 s{sB}, s{sB}, s3
v_and_b32 v{vLANE}, 63, v0
v_lshrrev_b32 v2, 6, v0
s_nop 0
v_readfirstlane_b32 s{sWAVE}, v2
s_waitcnt lgkmcnt(0)
""")
    srd(a, S_TAB, 10, NCH * NB * 4, WS_TAB)
    srd(a, S_ENT, 10, NCH * CH * REC, WS_ENT)
    srd(a, S_CON, 10, 16384, WS_CONST)
    srd(a, S_X, 4, 0 if o.get('nox') else N_NODES * 512)
    srd(a, S_EF, 6, 0 if o.get('noef') else N_EDGES * 32)
    srd(a, S_OUT, 8, N_NODES * 512)
    a(f"""
s_mul_i32 s{sN0}, s{sB}, 625
s_add_u32 s{sNN}, s{sN0}, {625+15}
s_add_u32 s{sN0}, s{sN0}, 15
s_lshr_b32 s{sN0}, s{sN0}, 4
s_lshr_b32 s{sNN}, s{sNN}, 4
s_mov_b32 s{sK}, 0
s_mov_b32 s{sQ}, 0
s_mov_b32 s{sSPLIT}, 0
s_mov_b32 s{sEMASK}, 0x01ffffff
v_lshlrev_b32 v2, 4, v{vLANE}
""")
    for q in range(4 if HILO else 2):
        a(f"buffer_load_dwordx4 v[{vW+4*q}:{vW+4*q+3}], v2, s[{S_CON}:{S_CON+3}], 0 offen offset:{C_W + q*1024}")
    a(f"s_movk_i32 s{sT0}, {C_CG}")
    for q in range(2):
        a(f"buffer_load_dwordx4 v[{vCG+4*q}:{vCG+4*q+3}], v2, s[{S_CON}:{S_CON+3}], s{sT0} offen offset:{q*1024}")
    a(f"""
v_and_b32 v2, 31, v{vLANE}
v_lshlrev_b32 v{vXL}, 4, v2
v_lshlrev_b32 v{vAL}, 3, v{vLANE}
v_add_u32 v{vAL}, {L['ACC']}, v{vAL}
v_lshrrev_b32 v{vEH}, 5, v{vLANE}
v_lshlrev_b32 v{vCX}, 6, v{vEH}
v_lshlrev_b32 v{vCY}, 4, v{vEH}
v_lshlrev_b32 v{vEH}, 4, v{vEH}
v_bfe_u32 v{vCE}, v{vLANE}, 2, 1
v_lshlrev_b32 v{vCE}, 4, v{vCE}
v_bfe_u32 v{vCI}, v{vLANE}, 3, 2
v_lshl_add_u32 v{vCE}, v{vCI}, 2, v{vCE}
v_and_b32 v{vCI}, 3, v{vLANE}
v_add_u32 v{vCE}, v{vCE}, v{vCI}
v_lshlrev_b32 v{vCE}, 2, v{vCE}
v_and_b32 v{vCI}, 1, v{vLANE}
v_lshl_add_u32 v{vCY}, v{vCI}, 3, v{vCY}
v_bfe_u32 v{vCI}, v{vLANE}, 2, 3
v_add_u32 v{vCY}, v{vCY}, v{vCI}
v_lshlrev_b32 v{vCY}, 3, v{vCY}
v_and_b32 v{vCI}, 15, v{vLANE}
v_lshlrev_b32 v{vCI}, 2, v{vCI}
v_mov_b32 v{vONE}, 1
""")
    def lds_fill(start, nbytes, val):
        a(f"v_lshlrev_b32 v{vF+4}, 4, v0")
        for j in range(4):
            a(f"v_mov_b32 v{vF+j}, {val:#x}")
        n = nbytes // 16
        assert nbytes % 16 == 0
        if start >= 49152:
            a(f"v_add_u32 v{vF+4}, {start}, v{vF+4}")
            start = 0
        k = 0
        while k * T < n:
            rem = n - k * T
            if rem < T:
                a(f"v_cmp_gt_u32 vcc, {rem}, v0\ns_and_saveexec_b64 s[{sT0}:{sT1}], vcc")
            if start + k * T * 16 >= 65536:
                a(f"v_add_u32 v{vF+4}, {start + k*T*16}, v{vF+4}")
                start = -k * T * 16
            a(f"ds_write_b128 v{vF+4}, v[{vF}:{vF+3}] offset:{start + k*T*16}")
            if rem < T:
                a(f"s_mov_b64 exec, s[{sT0}:{sT1}]")
            k += 1
    lds_fill(L["ACC"], 40 * ACC_NODE, 0)

    a("L2_round:")
    a(f"v_lshrrev_b32 v3, 4, v0\ns_lshl_b32 s3, s{sB}, 2\nv_lshl_add_u32 v3, v3, 10, s3")
    for g in range(NG):
        a(f"buffer_load_dword v{vTB+g}, v3, s[{S_TAB}:{S_TAB+3}], 0 offen")
        if g + 1 < NG:
            a(f"v_add_u32 v3, {NW*4*1024}, v3")
    lds_fill(L["XO"], slots * 4, PAD_X)
    lds_fill(L["EW"], slots * 4, PAD_E)
    lds_fill(L["YY"], slots * 8, 0)
    lds_fill(L["HIST"], 1024 + 64, 0)
    a(f"""
v_and_b32 v2, 15, v0
s_lshl_b32 s{sT0}, s{sK}, 5
v_add_u32 v2, s{sT0}, v2
v_lshrrev_b32 v3, 4, v0
s_mov_b32 s{sMORE}, 0
""")
    for g in range(NG):
        a(f"""
s_waitcnt vmcnt({NG-1})
v_add_u32 v{vF}, {g*NW*4}, v3
v_lshrrev_b32 v{vF+1}, 16, v{vTB+g}
v_and_b32 v{vF+2}, 0xffff, v{vTB+g}
s_add_u32 s{sT1}, s{sT0}, 32
v_cmp_lt_u32 vcc, s{sT1}, v{vF+1}
s_cmp_lg_u64 vcc, 0
s_cselect_b32 s{sMORE}, 1, s{sMORE}
v_lshrrev_b32 v{vF+3}, 6, v{vF}
v_and_b32 v{vF+3}, s{sSPLIT}, v{vF+3}
v_cmp_eq_u32 vcc, s{sQ}, v{vF+3}
v_mul_u32_u24 v{vTB+g}, {CH}, v{vF}
v_add3_u32 v{vF+2}, v{vF+2}, v{vTB+g}, v2
v_cndmask_b32 v{vF+1}, 0, v{vF+1}, vcc
v_mul_u32_u24 v{vF+2}, {REC}, v{vF+2}
v_cmp_lt_u32 s[{sMASK+4*g}:{sMASK+4*g+1}], v2, v{vF+1}
v_add_u32 v{vF+3}, 16, v2
v_cmp_lt_u32 s[{sMASK+4*g+2}:{sMASK+4*g+3}], v{vF+3}, v{vF+1}
v_cndmask_b32 v{vF+4}, -1, v{vF+2}, s[{sMASK+4*g}:{sMASK+4*g+1}]
buffer_load_dwordx3 v[{vEN+8*g}:{vEN+8*g+2}], v{vF+4}, s[{S_ENT}:{S_ENT+3}], 0 offen
v_cndmask_b32 v{vEN+8*g+7}, -1, v{vF+2}, s[{sMASK+4*g+2}:{sMASK+4*g+3}]
""")
    for g in range(NG):
        a(f"""
s_cmp_eq_u64 s[{sMASK+4*g+2}:{sMASK+4*g+3}], 0
s_cbranch_scc1 L2_nold{g}
buffer_load_dwordx3 v[{vEN+8*g+4}:{vEN+8*g+6}], v{vEN+8*g+7}, s[{S_ENT}:{S_ENT+3}], 0 offen offset:{16*REC}
L2_nold{g}:
""")
    a(f"""
s_waitcnt lgkmcnt(0)
s_barrier
s_cmp_eq_u32 s{sMORE}, 0
s_cbranch_scc1 L2_nomore
v_mov_b32 v{vF}, {L['MISC']+8}
ds_write_b32 v{vF}, v{vONE}
L2_nomore:
s_mov_b32 s{sT0}, {MP}
s_waitcnt vmcnt(0)
""")
    stamp(a, o, 1)
    def for_parts(body, tag):
        for g in range(NG):
            for p in range(2):
                i = 2 * g + p
                a(f"s_mov_b64 exec, s[{sMASK+2*i}:{sMASK+2*i+1}]")
                if p:
                    a(f"s_cbranch_execz L2_{tag}{g}")
                body(g, i, vEN + 4 * i)
                if p:
                    a(f"L2_{tag}{g}:")
        a("s_mov_b64 exec, -1")
    def rank_body(g, i, e):
        a(f"v_bfe_u32 v{vKY+i}, v{e+2}, 14, 6")
        if NPH > 1:
            a(f"""
v_and_b32 v{vF}, 0x3fff, v{e+2}
v_mul_u32_u24 v{vF}, s{sT0}, v{vF}
v_lshrrev_b32 v{vF}, {SP}, v{vF}
v_mad_u32_u24 v{vKY+i}, v{vF}, 40, v{vKY+i}
""")
        a(f"""
v_lshlrev_b32 v{vKY+i}, 2, v{vKY+i}
v_add_u32 v{vKY+i}, {L['HIST']}, v{vKY+i}
ds_add_rtn_u32 v{vRK+i}, v{vKY+i}, v{vONE}
""")
    for_parts(rank_body, "rk")
    a(f"""
s_waitcnt lgkmcnt(0)
s_barrier
s_cmp_lg_u32 s{sWAVE}, 0
s_cbranch_scc1 L2_noscan
v_lshlrev_b32 v{vF+9}, 4, v0
v_add_u32 v{vF+9}, {L['HIST']}, v{vF+9}
ds_read_b128 v[{vF}:{vF+3}], v{vF+9}
s_waitcnt lgkmcnt(0)
""")
    for j in range(4):
        a(f"v_add_u32 v{vF+j}, 1, v{vF+j}\nv_and_b32 v{vF+j}, -2, v{vF+j}")
    a(f"""
v_add_u32 v{vF+5}, v{vF}, v{vF+1}
v_add_u32 v{vF+6}, v{vF+5}, v{vF+2}
v_add_u32 v{vF+7}, v{vF+6}, v{vF+3}
v_mov_b32 v{vF+8}, v{vF+7}
""")
    wave_scan(a, vF + 7)
    a(f"""
v_sub_u32 v{vF+4}, v{vF+7}, v{vF+8}
v_add_u32 v{vF+7}, v{vF+4}, v{vF+6}
v_add_u32 v{vF+6}, v{vF+4}, v{vF+5}
v_add_u32 v{vF+5}, v{vF+4}, v{vF}
ds_write_b128 v{vF+9}, v[{vF+4}:{vF+7}]
s_waitcnt lgkmcnt(0)
L2_noscan:
s_barrier
v_mov_b32 v{vF}, {L['HIST']+1020}
ds_read_b32 v{vF+1}, v{vF}
ds_read_b32 v{vF+2}, v{vF} offset:12
""")
    def start_body(g, i, e):
        a(f"ds_read_b32 v{vKY+i}, v{vKY+i}")
    for_parts(start_body, "st")
    a(f"""
s_waitcnt lgkmcnt(0)
v_readfirstlane_b32 s{sNBLK}, v{vF+1}
v_readfirstlane_b32 s{sMORE}, v{vF+2}
s_cmp_le_u32 s{sNBLK}, {CAP}
s_cbranch_scc1 L2_fits
s_mov_b32 s{sSPLIT}, 3
s_barrier
s_branch L2_round
L2_fits:
s_add_u32 s{sNBLK}, s{sNBLK}, 31
s_lshr_b32 s{sNBLK}, s{sNBLK}, 5
""")
    def scat_body(g, i, e):
        a(f"""
v_add_u32 v{vF}, v{vKY+i}, v{vRK+i}
v_and_b32 v{vF+1}, 1, v{vF}
v_bfe_u32 v{vF+2}, v{vF}, 1, 4
v_and_b32 v{vF}, -32, v{vF}
v_lshl_or_b32 v{vF}, v{vF+1}, 4, v{vF}
v_or_b32 v{vF}, v{vF}, v{vF+2}
v_lshlrev_b32 v{vF+1}, 3, v{vF}
v_lshlrev_b32 v{vF}, 2, v{vF}
ds_write_b64 v{vF+1}, v[{e}:{e+1}] offset:{L['YY']}
v_and_b32 v{vF+2}, 0x3fff, v{e+2}
v_lshlrev_b32 v{vF+2}, 9, v{vF+2}
ds_write_b32 v{vF}, v{vF+2} offset:{L['XO']}
v_lshrrev_b32 v{vF+3}, 20, v{e+2}
v_add_lshl_u32 v{vF+3}, v{vF+3}, v{vTB+g}, 5
v_bfe_u32 v{vF+4}, v{e+2}, 14, 6
v_lshl_or_b32 v{vF+3}, v{vF+4}, 25, v{vF+3}
ds_write_b32 v{vF}, v{vF+3} offset:{L['EW']}
""")
    for_parts(scat_body, "sc")
    a(f"""
s_waitcnt lgkmcnt(0)
s_barrier
""")

    stamp(a, o, 2)
    if o.get("stamps"):
        a("s_waitcnt lgkmcnt(0)")
    NULLB = CAP // 32
    def block_addrs(sreg):
        a(f"""
s_lshl_b32 s{sT0}, s{sreg}, 7
s_lshl_b32 s{sT1}, s{sreg}, 8
v_add_u32 v{vA0}, s{sT0}, v{vCX}
v_add_u32 v{vA1}, s{sT0}, v{vCE}
v_add_u32 v{vA2}, s{sT1}, v{vCY}
v_add_u32 v{vA3}, s{sT0}, v{vCI}
ds_read_b32 v{vEWD}, v{vA1} offset:{L['EW']}
ds_read_b64 v[{vY}:{vY+1}], v{vA2} offset:{L['YY']}
ds_read_b32 v{vNDN}, v{vA3} offset:{L['EW']}
""")
    def quad_read(q, slot):
        a(f"ds_read_b128 v[{vXO+4*slot}:{vXO+4*slot+3}], v{vA0} offset:{L['XO'] + q*16}")
    def x_load(step):
        xo = vXO + 4 * ((step // 4) & 1) + step % 4
        d = vX + 4 * (step % 8)
        return (f"v_add_u32 v{xo}, v{xo}, v{vXL}",
                f"buffer_load_dwordx4 v[{d}:{d+3}], v{xo}, s[{S_X}:{S_X+3}], 0 offen")
    def ef_issue():
        a(f"""
v_and_or_b32 v{vEWD}, v{vEWD}, s{sEMASK}, v{vEH}
v_lshrrev_b32 v{vNDN}, 25, v{vNDN}
buffer_load_dwordx4 v[{vEF}:{vEF+3}], v{vEWD}, s[{S_EF}:{S_EF+3}], 0 offen {efmod}
s_nop 0
v_xor_b32_dpp v{vA2}, v{vNDN}, v{vNDN} row_shl:1 row_mask:0xf bank_mask:0xf bound_ctrl:0
v_cmp_ne_u32 vcc, 0, v{vA2}
v_mul_u32_u24 v{vNDN}, {ACC_NODE}, v{vNDN}
s_or_b32 s{sFMN}, vcc_lo, 0x8000
""")
    def k_mfma():
        for i in range(4):
            a(f"v_mfma_f32_4x4x4_16b_bf16 v[{vTP+4*i}:{vTP+4*i+3}], v[{vY}:{vY+1}], v[{vCG+2*i}:{vCG+2*i+1}], 0")
    def k_cvt():
        for j in range(2):
            a(f"v_cvt_pk_bf16_f32 v{vKN+2*j}, v{vTP+j}, v{vTP+4+j}")
            a(f"v_cvt_pk_bf16_f32 v{vKN+2*j+1}, v{vTP+8+j}, v{vTP+12+j}")
    def u_mfma():
        for p in range(2):
            a(f"v_mfma_f32_32x32x16_bf16 v[{vU+16*p}:{vU+16*p+15}], v[{vEF}:{vEF+3}], v[{vW+4*p}:{vW+4*p+3}], 0")
        if HILO:
            for p in range(2):
                a(f"v_mfma_f32_32x32x16_bf16 v[{vU+16*p}:{vU+16*p+15}], v[{vEF}:{vEF+3}], v[{vW+8+4*p}:{vW+8+4*p+3}], v[{vU+16*p}:{vU+16*p+15}]")
    def silu_ops(d):
        E = [f"v_exp_f32 v{vT+2*p+j}, -v{vU+16*p+2*d+j}" for p in range(2) for j in range(2)]
        A = [f"v_pk_add_f32 v[{vT+2*p}:{vT+2*p+1}], v[{vT+2*p}:{vT+2*p+1}], 1.0 op_sel_hi:[1,0]" for p in range(2)]
        R = [f"v_rcp_f32 v{vT+2*p+j}, v{vT+2*p+j}" for p in range(2) for j in range(2)]
        M = []
        for p in range(2):
            src = vU + 16 * p + 2 * d
            dst = vRL + 2 * p if d == 7 else src
            M.append(f"v_pk_mul_f32 v[{dst}:{dst+1}], v[{src}:{src+1}], v[{vT+2*p}:{vT+2*p+1}]")
        return E, A, R, M
    def fma_ops(step):
        d, j = divmod(step, 2)
        out = []
        for p in range(2):
            rr = vRL + 2 * p if d == 7 else vU + 16 * p + 2 * d
            for hh in range(2):
                t = vTP + 8 * j + 4 * p + 2 * hh
                c = vACC + 4 * p + 2 * hh
                out.append(f"v_pk_fma_f32 v[{c}:{c+1}], v[{t}:{t+1}], v[{rr}:{rr+1}], v[{c}:{c+1}] op_sel:[0,{j},0] op_sel_hi:[1,{j},1]")
        return out
    def tp_ops(step):
        out = []
        j = step & 1
        for p in range(2):
            t = vTP + 8 * j + 4 * p
            x = vX + 4 * (step % 8) + 2 * p
            k = vK + 2 * (step // 8)
            out.append(f"v_mfma_f32_4x4x4_16b_bf16 v[{t}:{t+3}], v[{k}:{k+1}], v[{x}:{x+1}], 0 cbsz:3 abid:{step%8}")
        return out
    def flush_check(step):
        if step == 15:
            flush_body(step)
        else:
            a(f"s_bitcmp1_b32 s{sFM}, {step}\ns_cbranch_scc1 L2_fl{step}\nL2_fr{step}:")
    def flush_body(step):
        a(f"""
v_readlane_b32 s{sT0}, v{vND}, {step}
s_nop 0
""")
        for oo in range(4):
            a(f"v_permlane32_swap_b32 v{vACC+oo}, v{vACC+4+oo}")
        a(f"""
v_add_u32 v{vQ}, s{sT0}, v{vAL}
v_pk_add_f32 v[{vACC}:{vACC+1}], v[{vACC}:{vACC+1}], v[{vACC+4}:{vACC+5}]
v_pk_add_f32 v[{vACC+2}:{vACC+3}], v[{vACC+2}:{vACC+3}], v[{vACC+6}:{vACC+7}]
v_cvt_f64_f32 v[{vACC+4}:{vACC+5}], v{vACC}
v_cvt_f64_f32 v[{vACC+6}:{vACC+7}], v{vACC+1}
ds_add_f64 v{vQ}, v[{vACC+4}:{vACC+5}]
ds_add_f64 v{vQ}, v[{vACC+6}:{vACC+7}] offset:{ACC_ROW}
v_cvt_f64_f32 v[{vACC}:{vACC+1}], v{vACC+2}
v_cvt_f64_f32 v[{vACC+2}:{vACC+3}], v{vACC+3}
ds_add_f64 v{vQ}, v[{vACC}:{vACC+1}] offset:{2*ACC_ROW}
ds_add_f64 v{vQ}, v[{vACC+2}:{vACC+3}] offset:{3*ACC_ROW}
""")
        for j in (2, 3, 0, 1):
            a(f"v_mov_b64 v[{vACC+2*j}:{vACC+2*j+1}], 0")
    def grab():
        a(f"""
v_mov_b32 v{vA1}, {L['MISC']}
s_mov_b64 exec, 1
ds_add_rtn_u32 v{vA1}, v{vA1}, v{vONE}
s_mov_b64 exec, -1
""")
    def grab_done():
        a(f"""
s_waitcnt lgkmcnt(0)
v_readfirstlane_b32 s{sNXT}, v{vA1}
s_add_u32 s{sNXT}, s{sNXT}, {NW}
s_cmp_lt_u32 s{sNXT}, s{sNBLK}
s_cselect_b32 s{sNXT}, s{sNXT}, {NULLB}
""")

    a(f"""
s_cmp_ge_u32 s{sWAVE}, s{sNBLK}
s_cbranch_scc1 L2_done
s_mov_b32 s{sNXT}, s{sWAVE}
""")
    block_addrs(sNXT)
    quad_read(0, 0)
    quad_read(1, 1)
    a("s_waitcnt lgkmcnt(0)")
    ef_issue()
    for s in range(8):
        for ins in x_load(s):
            a(ins)
    quad_read(2, 0)
    for j in range(4):
        a(f"v_mov_b64 v[{vACC+2*j}:{vACC+2*j+1}], 0")
    k_mfma()
    a("s_nop 7")
    k_cvt()
    a("s_waitcnt vmcnt(8)")
    stamp(a, o, 3)
    if o.get("stamps"):
        a("s_waitcnt lgkmcnt(0)")
    a("s_branch L2_enter")

    a("L2_block:")
    for d in range(8):
        s0, s1 = 2 * d, 2 * d + 1
        if d == 0:
            quad_read(3, 1)
            grab()
        n = 6 + (1 if 3 <= d <= 5 else 0)
        a(f"s_waitcnt vmcnt({n})")
        M = tp_ops(s0) + tp_ops(s1)
        if d < 7:
            E, A, R, U = silu_ops(d + 1)
        else:
            E = A = R = U = []
        for i in range(4):
            a(M[i])
            if E:
                a(E[i])
        if d == 1:
            grab_done()
            block_addrs(sNXT)
        if d in (0, 2, 4, 6):
            a("s_waitcnt lgkmcnt(0)" if d else "s_waitcnt lgkmcnt(2)")
        if d == 2:
            ef_issue()
        l0, l1 = x_load((s0 + 8) % 16), x_load((s1 + 8) % 16)
        a(l0[0]); a(l1[0]); a(l0[1]); a(l1[1])
        if d in (2, 4, 6):
            quad_read(d // 2 - 1, (d // 2 - 1) & 1)
        if d == 7:
            a("s_nop 2")
        for ins in A:
            a(ins)
        for ins in fma_ops(s0):
            a(ins)
        flush_check(s0)
        for ins in R:
            a(ins)
        for ins in fma_ops(s1):
            a(ins)
        flush_check(s1)
        for ins in U:
            a(ins)
        if d == 4:
            k_mfma()
            a("s_nop 7")
            k_cvt()
    a(f"""
s_cmp_eq_u32 s{sNXT}, {NULLB}
s_cbranch_scc1 L2_done
L2_enter:
""")
    u_mfma()
    a(f"""
v_mov_b64 v[{vK}:{vK+1}], v[{vKN}:{vKN+1}]
v_mov_b64 v[{vK+2}:{vK+3}], v[{vKN+2}:{vKN+3}]
v_mov_b32 v{vND}, v{vNDN}
s_mov_b32 s{sFM}, s{sFMN}
s_nop 7
""")
    E, A, R, U = silu_ops(0)
    for ins in E:
        a(ins)
    a("s_nop 0")
    for ins in A + R:
        a(ins)
    a("s_nop 0")
    for ins in U:
        a(ins)
    a("s_branch L2_block")
    for s in range(15):
        a(f"L2_fl{s}:")
        flush_body(s)
        a(f"s_branch L2_fr{s}")

    vB = base + (base & 1)
    vEA = vB + 32
    a(f"""
L2_done:
s_waitcnt vmcnt(0) lgkmcnt(0)
s_cmp_eq_u32 s{sQ}, s{sSPLIT}
s_cbranch_scc1 L2_lastq
s_add_u32 s{sQ}, s{sQ}, 1
s_barrier
s_branch L2_round
L2_lastq:
s_cmp_eq_u32 s{sMORE}, 0
s_cbranch_scc1 L2_epi
s_add_u32 s{sK}, s{sK}, 1
s_mov_b32 s{sQ}, 0
s_mov_b32 s{sSPLIT}, 0
s_barrier
s_branch L2_round
L2_epi:
v_lshlrev_b32 v2, 4, v{vLANE}
s_movk_i32 s{sT0}, {C_MIX}
""")
    for q in range(8):
        if q == 4:
            a(f"s_movk_i32 s{sT0}, {C_MIX + 4096}")
        a(f"buffer_load_dwordx4 v[{vB+4*q}:{vB+4*q+3}], v2, s[{S_CON}:{S_CON+3}], s{sT0} offen offset:{(q%4)*1024}")
    a(f"""
s_barrier
""")
    stamp(a, o, 4)
    a(f"""
L2_epi_job:
s_cmp_ge_u32 s{sWAVE}, 10
s_cbranch_scc1 L2_end
v_and_b32 v2, 15, v{vLANE}
v_mul_u32_u24 v2, {ACC_ROW}, v2
v_lshrrev_b32 v3, 4, v{vLANE}
v_lshl_add_u32 v2, v3, 6, v2
s_mul_i32 s{sT0}, s{sWAVE}, {4*ACC_NODE}
s_add_u32 s{sT0}, s{sT0}, {L['ACC']}
v_add_u32 v2, s{sT0}, v2
""")
    for ks in range(2):
        for hh in range(4):
            a(f"ds_read_b128 v[{vEA+16*ks+4*hh}:{vEA+16*ks+4*hh+3}], v2 offset:{ks*256+hh*16}")
    a(f"""
s_lshl_b32 s{sT0}, s{sWAVE}, 2
s_add_u32 s{sT0}, s{sT0}, s{sN0}
v_add_u32 v3, s{sT0}, v3
v_cmp_gt_u32 vcc, s{sNN}, v3
v_lshlrev_b32 v3, 9, v3
v_and_b32 v2, 15, v{vLANE}
v_lshl_add_u32 v3, v2, 4, v3
s_mov_b32 s{sT0}, {LN2:#x}
s_waitcnt lgkmcnt(0)
""")
    vPA = vEA + 32
    for j in range(16):
        a(f"v_cvt_f32_f64 v{vEA+j}, v[{vEA+2*j}:{vEA+2*j+1}]")
    for j in range(16):
        a(f"v_mul_f32 v{vEA+j}, s{sT0}, v{vEA+j}")
    for j in range(8):
        a(f"v_cvt_pk_bf16_f32 v{vPA+j}, v{vEA+2*j}, v{vEA+2*j+1}")
    a("s_waitcnt vmcnt(0)\ns_nop 1")
    vD = vPA + 8
    for ks in range(2):
        for t in range(4):
            c = "0" if ks == 0 else f"v[{vD+4*t}:{vD+4*t+3}]"
            a(f"v_mfma_f32_16x16x32_bf16 v[{vD+4*t}:{vD+4*t+3}], v[{vPA+4*ks}:{vPA+4*ks+3}], v[{vB+8*t+4*ks}:{vB+8*t+4*ks+3}], {c}")
    a("s_nop 7")
    for j in range(8):
        a(f"v_cvt_pk_bf16_f32 v{vEA+j}, v{vD+2*j}, v{vD+2*j+1}")
    a(f"""
s_and_b64 exec, exec, vcc
s_cbranch_execz L2_end
buffer_store_dwordx4 v[{vEA}:{vEA+3}], v3, s[{S_OUT}:{S_OUT+3}], 0 offen
buffer_store_dwordx4 v[{vEA+4}:{vEA+7}], v3, s[{S_OUT}:{S_OUT+3}], 0 offen offset:256
s_mov_b64 exec, -1
""")
    if NW < 10:
        a(f"s_add_u32 s{sWAVE}, s{sWAVE}, {NW}\ns_nop 1\ns_branch L2_epi_job")
    if o.get("stamps"):
        a("s_waitcnt vmcnt(0)")
    stamp(a, o, 5)
    stamp_out(a, o, 1, 6, "b")
    if o.get("stamps"):
        n_sgpr = 100
        assert sMASK + 4 * NG <= 76
    a("L2_end:\ns_endpgm")
    n_vgpr = max(n_vgpr, vD + 16)
    return a.text(), n_vgpr, n_sgpr, T, L["size"]

HEADER = open("cdna_kernels/" + NAME + ".s.ref").read().split("; Override launch")[0]

def build(o):
    k1, v1, s1 = gen_k1(o)
    k2, v2, s2, T2, lds2 = gen_k2(o)
    out = HEADER
    out += f"; @launch kernel=part_kernel grid=({NCH+1},1,1) block=({K1_T},1,1) lds={K1_LDS}\n"
    out += f"; @launch kernel=msg_kernel grid=({NB},1,1) block=({T2},1,1) lds={lds2}\n"
    out += '.amdgcn_target "amdgcn-amd-amdhsa--gfx950"\n.text\n'
    for name, body in (("part_kernel", k1), ("msg_kernel", k2)):
        out += f".globl {name}\n.p2align 8\n.type {name},@function\n{body}"
    out += '.section .rodata,"a"\n.p2align 6\n'
    out += descriptor("part_kernel", v1, s1)
    out += ".p2align 6\n"
    out += descriptor("msg_kernel", v2, s2)
    return out, dict(v2=v2, s2=s2, lds2=lds2)

if __name__ == "__main__":
    o = {}
    path = "cdna_kernels/" + NAME + ".s"
    for arg in sys.argv[1:]:
        k, v = arg.split("=", 1)
        if k == "out":
            path = v
        else:
            o[k] = int(v) if v.lstrip("-").isdigit() else v.replace("+", " ")
    txt, info = build(o)
    open(path, "w").write(txt)
    print(path, info)
```

```python
import gen
def add_kernels(txt, pre, defs):
    lines = txt.split("\n")
    idx = [i for i, l in enumerate(lines) if l.startswith("; @launch")]
    lines[idx[0]:idx[0]] = [f"; @launch kernel={k} grid=(256,1,1) block=(1024,1,1) lds=0" for k in pre]
    txt = "\n".join(lines)
    body = ""
    for k in dict.fromkeys(pre):
        body += f".globl {k}\n.p2align 8\n.type {k},@function\n{defs[k]}"
    txt = txt.replace('.section .rodata', body + '.section .rodata')
    for k in dict.fromkeys(pre):
        txt += ".p2align 6\n" + gen.descriptor(k, 64, 32)
    return txt
def stream(name, argoff, off, nbytes, write=False, mod=""):
    a = gen.Asm()
    per = 16384
    n = -(-nbytes // (256 * per))
    a(f"{name}:\ns_cmp_ge_u32 s2, 256\ns_cbranch_scc1 L_{name}_end\ns_load_dwordx2 s[4:5], s[0:1], {argoff}\ns_mul_i32 s3, s2, {n*per}\nv_lshl_add_u32 v1, v0, 4, s3\ns_waitcnt lgkmcnt(0)")
    gen.srd(a, 8, 4, nbytes, off)
    for j in range(n):
        if write:
            a(f"buffer_store_dwordx4 v[4:7], v1, s[8:11], 0 offen {mod}")
        else:
            a(f"buffer_load_dwordx4 v[{4+4*j}:{7+4*j}], v1, s[8:11], 0 offen {mod}")
        a(f"v_add_u32 v1, {per}, v1")
    a(f"s_waitcnt vmcnt(0)\nL_{name}_end:\ns_endpgm")
    return a.text()
defs = {
 "tef_kernel": stream("tef_kernel", 32, 0, 20480000),
 "tefnt_kernel": stream("tefnt_kernel", 32, 0, 20480000, mod="nt"),
 "wlo_kernel": stream("wlo_kernel", 80, 0x2000000, 20480000, write=True),
 "whi_kernel": stream("whi_kernel", 80, 0xE000000, 20480000, write=True),
 "rlo_kernel": stream("rlo_kernel", 80, 0x2000000, 20480000),
 "rhi_kernel": stream("rhi_kernel", 80, 0xE000000, 20480000),
}
base, _ = gen.build({})
K = "cdna_kernels/"
open(K + "p_nt.s", "w").write(gen.build({"k1ld": "nt"})[0])
for nm, pre in dict(tef=["tef_kernel"], tef2=["tef_kernel"]*2, tefnt=["tefnt_kernel"], wlo=["wlo_kernel"], whi=["whi_kernel"], rlo=["rlo_kernel"], rhi=["rhi_kernel"], wlo2=["wlo_kernel"]*2).items():
    open(K + f"p_{nm}.s", "w").write(add_kernels(base, pre, defs))
```

```python
import gen, sys
AMP = 20
def leak_kernel(ka, ia, na, opa, kb, ib, nb):
    a = gen.Asm()
    a(f"""leak_kernel:
s_cmp_ge_u32 s2, 1
s_cbranch_scc1 L_leak_end
s_load_dwordx2 s[4:5], s[0:1], 80
v_min_u32 v1, {na-1}, v0
v_lshlrev_b32 v1, 6, v1
v_min_u32 v2, {nb-1}, v0
v_lshlrev_b32 v2, 6, v2
v_mov_b32 v5, 0
v_mov_b32 v6, {0 if opa == 'max' else -1}
v_mov_b32 v7, -1
ds_write_b32 v5, v6
ds_write_b32 v5, v7 offset:4
s_waitcnt lgkmcnt(0)""")
    gen.srd(a, 8, 4, 0x20000, gen.WS_STAMP)
    a(f"""s_mov_b32 s12, {ka*0x10000 + ia*8}
s_mov_b32 s13, {kb*0x10000 + ib*8}
buffer_load_dword v3, v1, s[8:11], s12 offen
buffer_load_dword v4, v2, s[8:11], s13 offen
s_barrier
s_waitcnt vmcnt(0)
ds_{opa}_u32 v5, v3
ds_min_u32 v5, v4 offset:4
s_waitcnt lgkmcnt(0)
s_barrier
ds_read_b64 v[8:9], v5
s_waitcnt lgkmcnt(0)
v_sub_u32 v8, v8, v9
v_min_u32 v8, 0x2000, v8
v_mul_u32_u24 v8, {AMP}, v8
s_nop 1
v_readfirstlane_b32 s14, v8
s_memrealtime s[16:17]
s_waitcnt lgkmcnt(0)
L_leak_spin:
s_memrealtime s[18:19]
s_waitcnt lgkmcnt(0)
s_sub_u32 s18, s18, s16
s_cmp_lt_u32 s18, s14
s_cbranch_scc1 L_leak_spin
L_leak_end:
s_endpgm""")
    return a.text()
def add(txt, body):
    lines = txt.split("\n")
    idx = [i for i, l in enumerate(lines) if l.startswith("; @launch")]
    lines.insert(idx[-1] + 1, "; @launch kernel=leak_kernel grid=(1,1,1) block=(256,1,1) lds=64")
    txt = "\n".join(lines)
    txt = txt.replace('.section .rodata', ".globl leak_kernel\n.p2align 8\n.type leak_kernel,@function\n" + body + '.section .rodata')
    return txt + ".p2align 6\n" + gen.descriptor("leak_kernel", 16, 32)
if __name__ == "__main__":
    o = {"stamps": 1}
    for arg in sys.argv[1:]:
        k, v = arg.split("=", 1)
        o[k] = int(v) if v.lstrip("-").isdigit() else v.replace("+", " ")
    base, _ = gen.build(o)
    K = "cdna_kernels/"
    specs = {
        "zero": (0, 0, 1, "min", 0, 0, 1),
        "k1end": (0, 3, 250, "max", 0, 0, 250),
        "k2start": (1, 0, 256, "min", 0, 0, 250),
        "fe": (1, 2, 256, "max", 1, 0, 256),
        "main": (1, 4, 256, "max", 1, 0, 256),
        "k2end": (1, 5, 256, "max", 0, 0, 250),
        "k1s1": (0, 1, 250, "max", 0, 0, 250),
        "k1s0": (0, 0, 250, "max", 0, 0, 250),
        "k2s1": (1, 1, 256, "max", 1, 0, 256),
        "k2s3": (1, 3, 256, "max", 1, 0, 256),
        "k2s0": (1, 0, 256, "max", 1, 0, 256),
        "k1s2": (0, 2, 250, "max", 0, 0, 250),
    }
    for nm, sp in specs.items():
        open(K + f"l_{nm}.s", "w").write(add(base, leak_kernel(*sp)))
```

```python
import gen, sys, re
o = {"k1st": "sc1"}
for arg in sys.argv[1:]:
    k, v = arg.split("=", 1)
    o[k] = int(v) if v.lstrip("-").isdigit() else v.replace("+", " ")
k1, v1, s1 = gen.gen_k1(o)
k2, v2, s2, T2, lds2 = gen.gen_k2(o)
name = gen.NAME + "_kernel"
k1 = k1.replace("part_kernel:\n", f"""{name}:
    s_cmp_ge_u32 s2, 256
    s_cbranch_scc1 L2_end
    v_lshrrev_b32 v2, 6, v0
    s_nop 0
    v_readfirstlane_b32 s3, v2
    s_cmp_lt_u32 s3, 10
    s_cbranch_scc1 L_active
    s_cmp_ge_u32 s2, {gen.NCH}
    s_cbranch_scc1 L_join
    s_barrier
    s_barrier
    s_barrier
    s_barrier
    s_branch L_join
L_active:
""")
k1 = k1.replace("s_endpgm", "s_branch L_join")
k1 = re.sub(r"(buffer_store_dwordx4 v\[\d+:\d+\], v5, s\[24:27\], \S+ offen( offset:\d+)?)\n", r"\1 sc1\n", k1)
join = """L_join:
    s_waitcnt vmcnt(0) lgkmcnt(0)
    s_barrier
    s_load_dwordx2 s[4:5], s[0:1], 72
    v_cmp_eq_u32 vcc, 0, v0
    s_cbranch_vccz L_wait
    s_waitcnt lgkmcnt(0)
    s_mov_b32 s6, 256
    s_mov_b32 s7, 0x20000
    s_mov_b64 exec, 1
    v_mov_b32 v2, 0
    v_mov_b32 v3, 1
    buffer_atomic_add v3, v2, s[4:7], 0 offen
    s_mov_b32 s8, 0
L_poll:
    buffer_load_dword v3, v2, s[4:7], 0 offen sc1
    s_add_u32 s8, s8, 1
    s_waitcnt vmcnt(0)
    v_readfirstlane_b32 s9, v3
    s_cmp_ge_u32 s8, 0x100000
    s_cbranch_scc1 L_polled
    s_cmp_lt_u32 s9, 256
    s_cbranch_scc1 L_poll
L_polled:
    buffer_inv sc1
    s_waitcnt vmcnt(0)
    s_mov_b64 exec, -1
L_wait:
    s_waitcnt lgkmcnt(0)
    s_barrier
"""
k2 = k2.replace("msg_kernel:\n", join)
out = gen.HEADER
lst = o.get("aslist")
out += (f"; @launch kernel={name} " if lst else "; @launch ") + f"grid=(256,1,1) block=({T2},1,1) lds={lds2}\n"
out += '.amdgcn_target "amdgcn-amd-amdhsa--gfx950"\n.text\n'
out += f".globl {name}\n.p2align 8\n.type {name},@function\n{k1}{k2}"
out += '.section .rodata,"a"\n.p2align 6\n' + gen.descriptor(name, v2, max(s1, s2))
open(o["out"], "w").write(out)
```

```python
import sys, math

NAME = "standalone__tensor_product_equiv_tfn__graph"
N_NODES, N_EDGES = 10000, 640000
CH = 2560
NCH = 250
NB = 256
REC = 12
WS_ENT = 0
WS_TAB = 0x800000
WS_CONST = 0x900000
C_W, C_CG, C_MIX = 0, 4096, 6144
LOG2E = 0x3FB8AA3B
LN2 = 0x3F317218

def magic(mul, div, lim):
    for S in range(8, 32):
        M = -(-(mul << S) // div)
        if M >= 1 << 24 or (lim - 1) * M >= 1 << 32:
            continue
        if all((x * M) >> S == x * mul // div for x in range(lim)):
            return M, S
    raise ValueError

class Asm:
    def __init__(self):
        self.L = []
    def __call__(self, s):
        for line in s.split("\n"):
            line = line.strip()
            if line:
                self.L.append(line if line.endswith(":") else "    " + line)
    def text(self):
        return "\n".join(self.L) + "\n"

def srd(a, d, base, nbytes, off=0):
    if off:
        a(f"s_add_u32 s{d}, s{base}, {off:#x}\ns_addc_u32 s{d+1}, s{base+1}, 0")
    else:
        a(f"s_mov_b32 s{d}, s{base}\ns_mov_b32 s{d+1}, s{base+1}")
    a(f"s_mov_b32 s{d+2}, {nbytes}\ns_mov_b32 s{d+3}, 0x20000")

def wave_scan(a, v):
    for ctl in ("row_shr:1", "row_shr:2", "row_shr:4", "row_shr:8",
                "row_bcast:15 row_mask:0xa", "row_bcast:31 row_mask:0xc"):
        a(f"s_nop 1\nv_add_u32_dpp v{v}, v{v}, v{v} {ctl}")

def descriptor(name, vgpr, sgpr):
    acc = (vgpr + 3) // 4 * 4
    return f""".amdhsa_kernel {name}
  .amdhsa_next_free_vgpr {vgpr}
  .amdhsa_next_free_sgpr {sgpr}
  .amdhsa_accum_offset {acc}
  .amdhsa_group_segment_fixed_size 0
  .amdhsa_kernarg_size 88
  .amdhsa_user_sgpr_count 2
  .amdhsa_user_sgpr_kernarg_segment_ptr 1
  .amdhsa_system_sgpr_workgroup_id_x 1
  .amdhsa_float_denorm_mode_32 3
.end_amdhsa_kernel
"""

WS_STAMP = 0xA00000
def stamp(a, o, idx):
    if o.get("stamps"):
        a(f"s_memrealtime s[{84+2*idx}:{85+2*idx}]")
def stamp_out(a, o, kern, n, tag):
    if not o.get("stamps"):
        return
    a(f"s_waitcnt vmcnt(0) lgkmcnt(0)")
    a(f"s_load_dwordx2 s[80:81], s[0:1], 80\ns_waitcnt lgkmcnt(0)")
    srd(a, 76, 80, 0x10000, WS_STAMP + kern * 0x10000)
    a(f"s_mov_b64 exec, -1\nv_cmp_eq_u32 vcc, 0, v0\ns_and_b64 exec, exec, vcc\ns_cbranch_execz L_st{tag}")
    a(f"s_lshl_b32 s82, s2, 6\nv_mov_b32 v4, s82")
    for i in range(n):
        a(f"v_mov_b32 v2, s{84+2*i}\nv_mov_b32 v3, s{85+2*i}\nbuffer_store_dwordx2 v[2:3], v4, s[76:79], 0 offen offset:{8*i}")
    a(f"L_st{tag}:")

K1_T = 640
K1_HIST, K1_STG = 0, 1024
K1_LDS = K1_STG + CH * REC

def k1_prefetch(a, o):
    n = 0
    kinds = o.get("pf1", "").split()
    if kinds:
        a("s_load_dwordx2 s[40:41], s[0:1], 0\ns_load_dwordx2 s[44:45], s[0:1], 32\ns_waitcnt lgkmcnt(0)")
        a(f"s_mov_b32 s42, {N_NODES*512}\ns_mov_b32 s43, 0x20000\ns_mov_b32 s46, {N_EDGES*32}\ns_mov_b32 s47, 0x20000")
    for kind in kinds:
        lo, hi = (int(v) for v in kind[1:].split("-"))
        total = (N_EDGES * 32 if kind[0] == "e" else N_NODES * 512) // 128
        l0, l1 = total * lo // 16, total * hi // 16
        nshare = 256 if kind[0] == "e" else 32
        per = -(-(l1 - l0) // nshare)
        a("s_lshr_b32 s38, s2, 3" if kind[0] == "x" else "s_mov_b32 s38, s2")
        a(f"s_mul_i32 s38, s38, {per}\ns_add_u32 s38, s38, {l0}")
        for k in range(-(-per // K1_T)):
            sr = 44 if kind[0] == "e" else 40
            a(f"""v_add_u32 v50, {k*K1_T}, v0
v_cmp_gt_u32 vcc, {per}, v50
v_add_lshl_u32 v50, v50, s38, 7
s_nop 0
v_cndmask_b32 v50, -1, v50, vcc
buffer_load_dword v51, v50, s[{sr}:{sr+3}], 0 offen""")
            n += 1
    return n

def gen_k1(o):
    a = Asm()
    ld = o.get("k1ld", "")
    st = o.get("k1st", "sc1")
    MB, SB = magic(NB, N_NODES, N_NODES)
    a(f"""
part_kernel:
s_cmp_ge_u32 s2, {NCH}
s_cbranch_scc1 L1_other
""")
    stamp(a, o, 0)
    a(f"""
s_load_dwordx4 s[4:7], s[0:1], 8
s_load_dwordx2 s[8:9], s[0:1], 24
s_load_dwordx2 s[10:11], s[0:1], 80
v_lshlrev_b32 v1, 4, v0
v_lshlrev_b32 v2, 5, v0
v_lshlrev_b32 v3, 2, v0
v_mov_b32 v20, 0
s_mul_i32 s3, s2, {CH*4}
s_mul_i32 s33, s2, {CH*8}
s_waitcnt lgkmcnt(0)
""")
    srd(a, 16, 6, N_EDGES * 4)
    a(f"buffer_load_dwordx4 v[4:7], v1, s[16:19], s3 offen {ld}")
    srd(a, 12, 4, N_EDGES * 4)
    a(f"buffer_load_dwordx4 v[8:11], v1, s[12:15], s3 offen {ld}")
    srd(a, 20, 8, N_EDGES * 8)
    a(f"buffer_load_dwordx4 v[12:15], v2, s[20:23], s33 offen {ld}")
    a(f"buffer_load_dwordx4 v[16:19], v2, s[20:23], s33 offen offset:16 {ld}")
    srd(a, 24, 10, NCH * CH * REC, WS_ENT)
    srd(a, 28, 10, NCH * NB * 4, WS_TAB)
    a(f"""
v_cmp_gt_u32 vcc, {NB}, v0
s_and_saveexec_b64 s[34:35], vcc
ds_write_b32 v3, v20 offset:{K1_HIST}
s_mov_b64 exec, s[34:35]
s_mov_b32 s36, {MB}
s_movk_i32 s37, 625
v_mov_b32 v21, 1
s_waitcnt lgkmcnt(0)
s_barrier
""")
    n_pf = k1_prefetch(a, o)
    a(f"s_waitcnt vmcnt({3 + n_pf})")
    stamp(a, o, 1)
    for k in range(4):
        a(f"""
v_mul_u32_u24 v{24+k}, s36, v{4+k}
v_lshrrev_b32 v{24+k}, {SB}, v{24+k}
v_lshlrev_b32 v{28+k}, 2, v{24+k}
ds_add_rtn_u32 v{32+k}, v{28+k}, v21 offset:{K1_HIST}
""")
    for k in range(4):
        a(f"""
v_mad_u32_u24 v{24+k}, v{24+k}, s37, 15
v_lshrrev_b32 v{24+k}, 4, v{24+k}
v_sub_u32 v{24+k}, v{4+k}, v{24+k}
v_add_u32 v{36+k}, {k}, v3
v_lshlrev_b32 v{36+k}, 20, v{36+k}
v_lshl_or_b32 v{36+k}, v{24+k}, 14, v{36+k}
""")
    a(f"s_waitcnt vmcnt({2 + n_pf})")
    for k in range(4):
        a(f"v_or_b32 v{36+k}, v{36+k}, v{8+k}")
    a(f"""
s_waitcnt lgkmcnt(0)
s_barrier
v_cmp_gt_u32 vcc, 64, v0
s_cbranch_vccz L1_noscan
ds_read_b128 v[40:43], v1 offset:{K1_HIST}
s_waitcnt lgkmcnt(0)
v_add_u32 v45, v40, v41
v_add_u32 v46, v45, v42
v_add_u32 v47, v46, v43
v_mov_b32 v48, v47
""")
    wave_scan(a, 47)
    a(f"""
v_sub_u32 v44, v47, v48
v_add_u32 v47, v44, v46
v_add_u32 v46, v44, v45
v_add_u32 v45, v44, v40
ds_write_b128 v1, v[44:47] offset:{K1_HIST}
v_lshl_or_b32 v40, v40, 16, v44
v_lshl_or_b32 v41, v41, 16, v45
v_lshl_or_b32 v42, v42, 16, v46
v_lshl_or_b32 v43, v43, 16, v47
s_waitcnt lgkmcnt(0)
L1_noscan:
s_barrier
""")
    for k in range(4):
        a(f"ds_read_b32 v{24+k}, v{28+k} offset:{K1_HIST}")
    for k in range(4):
        a(f"""
s_waitcnt lgkmcnt({3-k})
v_add_u32 v{24+k}, v{24+k}, v{32+k}
v_mul_u32_u24 v{24+k}, {REC}, v{24+k}
""")
    a(f"s_waitcnt vmcnt({n_pf})")
    stamp(a, o, 2)
    for k in range(4):
        a(f"""
v_add_u32 v{24+k}, {K1_STG}, v{24+k}
ds_write2_b32 v{24+k}, v{12+2*k}, v{13+2*k} offset0:0 offset1:1
ds_write_b32 v{24+k}, v{36+k} offset:8
""")
    a(f"""
v_cmp_gt_u32 vcc, 64, v0
s_cbranch_vccz L1_notab
s_lshl_b32 s3, s2, 10
buffer_store_dwordx4 v[40:43], v1, s[28:31], s3 offen {st}
L1_notab:
s_mul_i32 s3, s2, {CH*REC}
s_waitcnt lgkmcnt(0)
s_barrier
""")
    for k in range(3):
        a(f"ds_read_b128 v[{4+4*k}:{7+4*k}], v1 offset:{K1_STG + k*K1_T*16}")
    for k in range(3):
        a(f"""
s_waitcnt lgkmcnt({2-k})
buffer_store_dwordx4 v[{4+4*k}:{7+4*k}], v1, s[24:27], s3 offen {st}
s_add_u32 s3, s3, {K1_T*16}
""")
    if o.get("stamps"):
        a("s_waitcnt vmcnt(0)")
    stamp(a, o, 3)
    stamp_out(a, o, 0, 4, "a")
    a("s_endpgm")
    a(f"""
L1_other:
s_cmp_ge_u32 s2, {NB}
s_cbranch_scc1 L1_end
""")
    k1_prefetch(a, o)
    a(f"""
s_cmp_lg_u32 s2, {NCH}
s_cbranch_scc1 L1_end
s_load_dwordx4 s[4:7], s[0:1], 40
s_load_dwordx2 s[8:9], s[0:1], 56
s_load_dwordx2 s[10:11], s[0:1], 80
v_and_b32 v1, 63, v0
v_lshrrev_b32 v2, 6, v0
s_nop 0
v_readfirstlane_b32 s3, v2
v_lshlrev_b32 v5, 4, v1
s_waitcnt lgkmcnt(0)
""")
    srd(a, 12, 4, 16 * 64 * 2)
    srd(a, 16, 6, 64 * 2)
    srd(a, 20, 8, 64 * 64 * 2)
    srd(a, 24, 10, 16384, WS_CONST)
    a(f"""
s_cmp_eq_u32 s3, 8
s_cbranch_scc1 L1_prep_w
s_cmp_eq_u32 s3, 9
s_cbranch_scc1 L1_prep_cg
""")
    a(f"""
s_and_b32 s28, s3, 1
s_lshl_b32 s28, s28, 7
s_bfe_u32 s29, s3, 0x10001
s_lshl_b32 s29, s29, 1
s_add_u32 s28, s28, s29
s_lshr_b32 s29, s3, 2
s_lshl_b32 s29, s29, 6
s_add_u32 s28, s28, s29
v_lshrrev_b32 v3, 4, v1
v_lshlrev_b32 v3, 11, v3
v_and_b32 v4, 15, v1
v_lshl_add_u32 v3, v4, 2, v3
""")
    for i in range(8):
        a(f"buffer_load_ushort v{16+i}, v3, s[20:23], s28 offen offset:{i*256}")
    a(f"""
s_lshl_b32 s28, s3, 10
s_add_u32 s28, s28, {C_MIX}
s_waitcnt vmcnt(0)
""")
    for j in range(4):
        a(f"v_lshl_or_b32 v{8+j}, v{17+2*j}, 16, v{16+2*j}")
    a(f"""
buffer_store_dwordx4 v[8:11], v5, s[24:27], s28 offen
s_endpgm
L1_prep_w:
v_lshrrev_b32 v3, 5, v1
v_lshlrev_b32 v3, 10, v3
v_and_b32 v4, 31, v1
v_lshl_add_u32 v3, v4, 2, v3
""")
    for i in range(8):
        a(f"buffer_load_dword v{8+i}, v3, s[12:15], 0 offen offset:{i*128}")
    a(f"s_mov_b32 s28, {LOG2E:#x}\ns_waitcnt vmcnt(0)")
    for i in range(8):
        a(f"""
v_lshlrev_b32 v{16+i}, 16, v{8+i}
v_and_b32 v{24+i}, 0xffff0000, v{8+i}
v_mul_f32 v{16+i}, s28, v{16+i}
v_mul_f32 v{24+i}, s28, v{24+i}
""")
    for j in range(8):
        a(f"v_cvt_pk_bf16_f32 v{32+j}, v{16+2*j}, v{17+2*j}")
    for j in range(8):
        a(f"""
v_lshlrev_b32 v6, 16, v{32+j}
v_and_b32 v7, 0xffff0000, v{32+j}
v_sub_f32 v{16+2*j}, v{16+2*j}, v6
v_sub_f32 v{17+2*j}, v{17+2*j}, v7
v_cvt_pk_bf16_f32 v{40+j}, v{16+2*j}, v{17+2*j}
""")
    for q in range(4):
        a(f"buffer_store_dwordx4 v[{32+4*q}:{35+4*q}], v5, s[24:27], 0 offen offset:{C_W + q*1024}")
    a(f"""
s_endpgm
L1_prep_cg:
v_and_b32 v3, 3, v1
v_lshlrev_b32 v3, 1, v3
""")
    for j in range(16):
        a(f"buffer_load_ushort v{16+j}, v3, s[16:19], 0 offen offset:{j*8}")
    a(f"s_movk_i32 s28, {C_CG}\ns_waitcnt vmcnt(0)")
    for j in range(8):
        a(f"v_lshl_or_b32 v{8+j}, v{17+2*j}, 16, v{16+2*j}")
    a(f"""
buffer_store_dwordx4 v[8:11], v5, s[24:27], s28 offen
buffer_store_dwordx4 v[12:15], v5, s[24:27], s28 offen offset:1024
L1_end:
s_endpgm
""")
    return a.text(), 52, (100 if o.get('stamps') else 48)

ACC_ROW = 528
ACC_NODE = 4 * ACC_ROW
PAD_X = 0x7FFF0000
PAD_E = 0x01FFFFE0

def k2_layout(o):
    cap = o.get("cap", 3072)
    slots = cap + 32
    L = {}
    L["cap"] = cap
    L["XO"] = 0
    L["EW"] = slots * 4
    L["YY"] = slots * 8
    L["ACC"] = slots * 16
    L["HIST"] = L["ACC"] + 40 * ACC_NODE
    L["MISC"] = L["HIST"] + 1024
    L["size"] = L["MISC"] + 64
    return L

def gen_k2(o):
    a = Asm()
    NW = o.get("nw", 16)
    T = NW * 64
    NG = -(-63 // NW)
    NPH = o.get("nph", 2)
    HILO = o.get("hilo", 0)
    efmod = o.get("efmod", "")
    L = k2_layout(o)
    CAP = L["cap"]
    slots = CAP + 32
    MP, SP = magic(NPH, N_NODES, N_NODES) if NPH > 1 else (0, 0)
    SLIDE = o.get("slide", 0)
    if SLIDE:
        MP = SLIDE * 65536 // (10 * N_NODES)
        assert ((N_NODES - 1) * MP + 40 * 1638) >> 16 <= 5
    NC = o.get("nc", NW)

    S_X, S_EF, S_ENT, S_TAB, S_CON, S_OUT = 12, 16, 20, 24, 28, 32
    sB, sN0, sNN, sWAVE, sK, sQ, sSPLIT, sNBLK = 36, 37, 38, 39, 40, 41, 42, 43
    sFMN, sNXT, sFM, sT0, sT1, sEMASK = 44, 46, 47, 48, 49, 50
    sMORE, sFIRST = 51, 4
    sMASK = 52
    n_sgpr = sMASK + 4 * NG

    vXL, vW, vCG = 1, 2, 2 + (16 if HILO else 8)
    r = vCG + 8
    vAL = r; vCX = r + 1; vCE = r + 2; vCY = r + 3; vEH = r + 4; vA0 = r + 5
    r += 6
    base = r
    vU = r; r += 32
    vX = r; r += 32
    vXO = r; r += 4
    vTP = r; r += 8
    vACC = r; r += 8
    vK = r; r += 4
    vEF = r; r += 4
    vT = r; r += 4
    vY = r; r += 2
    vTM = r; r += 2
    vEWC = r; vEWN = r + 1; vQ = r + 2; r += 3
    n_main = r
    r = base
    vTB = r; r += NG
    r += r & 1
    vEN = r; r += 4 * 2 * NG
    vRK = r; r += 2 * NG
    vKY = r; r += 2 * NG
    vF = r + (r & 1); r = vF + 16
    vLANE = r; vONE = r + 1; vS2 = r + 2; vS3 = r + 3; vCI = r + 4; r += 5
    vPF = max(n_main, r)
    n_vgpr = vPF + 1

    a(f"""
msg_kernel:
s_cmp_ge_u32 s2, {NB}
s_cbranch_scc1 L2_end
""")
    stamp(a, o, 0)
    a(f"""
s_load_dwordx2 s[4:5], s[0:1], 0
s_load_dwordx2 s[6:7], s[0:1], 32
s_load_dwordx2 s[8:9], s[0:1], 64
s_load_dwordx2 s[10:11], s[0:1], 80
s_and_b32 s{sB}, s2, 7
s_lshl_b32 s{sB}, s{sB}, 5
s_lshr_b32 s3, s2, 3
s_add_u32 s{sB}, s{sB}, s3
v_and_b32 v{vLANE}, 63, v0
v_lshrrev_b32 v{vS2}, 6, v0
s_nop 0
v_readfirstlane_b32 s{sWAVE}, v{vS2}
s_waitcnt lgkmcnt(0)
""")
    srd(a, S_TAB, 10, NCH * NB * 4, WS_TAB)
    def table_loads():
        a(f"v_lshrrev_b32 v{vS3}, 4, v0\ns_lshl_b32 s3, s{sB}, 2\nv_lshl_add_u32 v{vS3}, v{vS3}, 10, s3")
        for g in range(NG):
            a(f"buffer_load_dword v{vTB+g}, v{vS3}, s[{S_TAB}:{S_TAB+3}], 0 offen")
            if g + 1 < NG:
                a(f"v_add_u32 v{vS3}, {NW*4*1024}, v{vS3}")
    def lds_fill(start, nbytes, val):
        a(f"v_lshlrev_b32 v{vF+4}, 4, v0")
        for j in range(4):
            a(f"v_mov_b32 v{vF+j}, {val:#x}")
        n = nbytes // 16
        assert nbytes % 16 == 0
        if start >= 49152:
            a(f"v_add_u32 v{vF+4}, {start}, v{vF+4}")
            start = 0
        k = 0
        while k * T < n:
            rem = n - k * T
            if rem < T:
                a(f"v_cmp_gt_u32 vcc, {rem}, v0\ns_and_saveexec_b64 s[{sT0}:{sT1}], vcc")
            if start + k * T * 16 >= 65536:
                a(f"v_add_u32 v{vF+4}, {start + k*T*16}, v{vF+4}")
                start = -k * T * 16
            a(f"ds_write_b128 v{vF+4}, v[{vF}:{vF+3}] offset:{start + k*T*16}")
            if rem < T:
                a(f"s_mov_b64 exec, s[{sT0}:{sT1}]")
            k += 1
    table_loads()
    srd(a, S_ENT, 10, NCH * CH * REC, WS_ENT)
    srd(a, S_CON, 10, 16384, WS_CONST)
    srd(a, S_X, 4, 0 if o.get('nox') else N_NODES * 512)
    srd(a, S_EF, 6, 0 if o.get('noef') else N_EDGES * 32)
    srd(a, S_OUT, 8, N_NODES * 512)
    a(f"""
s_mul_i32 s{sN0}, s{sB}, 625
s_add_u32 s{sNN}, s{sN0}, {625+15}
s_add_u32 s{sN0}, s{sN0}, 15
s_lshr_b32 s{sN0}, s{sN0}, 4
s_lshr_b32 s{sNN}, s{sNN}, 4
s_mov_b32 s{sK}, 0
s_mov_b32 s{sQ}, 0
s_mov_b32 s{sSPLIT}, 0
s_mov_b32 s{sFIRST}, 1
s_mov_b32 s{sEMASK}, {o.get('emask', 0x01ffffff):#x}
v_and_b32 v{vS2}, 31, v{vLANE}
v_lshlrev_b32 v{vXL}, 4, v{vS2}
v_lshlrev_b32 v{vAL}, 3, v{vS2}
v_add_u32 v{vAL}, {L['ACC']}, v{vAL}
v_lshrrev_b32 v{vEH}, 5, v{vLANE}
v_lshlrev_b32 v{vCX}, 6, v{vEH}
v_lshlrev_b32 v{vCY}, 4, v{vEH}
v_lshlrev_b32 v{vEH}, 4, v{vEH}
v_bfe_u32 v{vCE}, v{vLANE}, 2, 1
v_lshlrev_b32 v{vCE}, 4, v{vCE}
v_bfe_u32 v{vCI}, v{vLANE}, 3, 2
v_lshl_add_u32 v{vCE}, v{vCI}, 2, v{vCE}
v_and_b32 v{vCI}, 3, v{vLANE}
v_add_u32 v{vCE}, v{vCE}, v{vCI}
v_lshlrev_b32 v{vCE}, 2, v{vCE}
v_and_b32 v{vCI}, 1, v{vLANE}
v_lshl_add_u32 v{vCY}, v{vCI}, 3, v{vCY}
v_bfe_u32 v{vCI}, v{vLANE}, 2, 3
v_add_u32 v{vCY}, v{vCY}, v{vCI}
v_lshlrev_b32 v{vCY}, 3, v{vCY}
s_branch L2_round1
L2_round:
""")
    table_loads()
    a(f"L2_round1:\nv_mov_b32 v{vONE}, 1")
    lds_fill(L["HIST"], 1024 + 64, 0)
    lds_fill(L["YY"], slots * 8, 0)
    lds_fill(L["XO"], slots * 4, PAD_X)
    lds_fill(L["EW"], slots * 4, PAD_E)
    a(f"""
v_and_b32 v{vS2}, 15, v0
s_lshl_b32 s{sT0}, s{sK}, 5
v_add_u32 v{vS2}, s{sT0}, v{vS2}
v_lshrrev_b32 v{vS3}, 4, v0
s_mov_b32 s{sMORE}, 0
""")
    for g in range(NG):
        a(f"""
s_waitcnt vmcnt({NG-1})
v_add_u32 v{vF}, {g*NW*4}, v{vS3}
v_lshrrev_b32 v{vF+1}, 16, v{vTB+g}
v_and_b32 v{vF+2}, 0xffff, v{vTB+g}
s_add_u32 s{sT1}, s{sT0}, 32
v_cmp_lt_u32 vcc, s{sT1}, v{vF+1}
s_cmp_lg_u64 vcc, 0
s_cselect_b32 s{sMORE}, 1, s{sMORE}
v_lshrrev_b32 v{vF+3}, 6, v{vF}
v_and_b32 v{vF+3}, s{sSPLIT}, v{vF+3}
v_cmp_eq_u32 vcc, s{sQ}, v{vF+3}
v_mul_u32_u24 v{vTB+g}, {CH}, v{vF}
v_add3_u32 v{vF+2}, v{vF+2}, v{vTB+g}, v{vS2}
v_cndmask_b32 v{vF+1}, 0, v{vF+1}, vcc
v_mul_u32_u24 v{vF+2}, {REC}, v{vF+2}
v_cmp_lt_u32 s[{sMASK+4*g}:{sMASK+4*g+1}], v{vS2}, v{vF+1}
v_add_u32 v{vF+3}, 16, v{vS2}
v_cmp_lt_u32 s[{sMASK+4*g+2}:{sMASK+4*g+3}], v{vF+3}, v{vF+1}
v_cndmask_b32 v{vF+4}, -1, v{vF+2}, s[{sMASK+4*g}:{sMASK+4*g+1}]
buffer_load_dwordx3 v[{vEN+8*g}:{vEN+8*g+2}], v{vF+4}, s[{S_ENT}:{S_ENT+3}], 0 offen
v_cndmask_b32 v{vEN+8*g+7}, -1, v{vF+2}, s[{sMASK+4*g+2}:{sMASK+4*g+3}]
""")
    for g in range(NG):
        a(f"""
s_cmp_eq_u64 s[{sMASK+4*g+2}:{sMASK+4*g+3}], 0
s_cbranch_scc1 L2_nold{g}
buffer_load_dwordx3 v[{vEN+8*g+4}:{vEN+8*g+6}], v{vEN+8*g+7}, s[{S_ENT}:{S_ENT+3}], 0 offen offset:{16*REC}
L2_nold{g}:
""")
    n_young = 0
    a(f"v_and_b32 v{vS2}, 63, v0\nv_lshlrev_b32 v{vS2}, 4, v{vS2}")
    for q in range(4 if HILO else 2):
        a(f"buffer_load_dwordx4 v[{vW+4*q}:{vW+4*q+3}], v{vS2}, s[{S_CON}:{S_CON+3}], 0 offen offset:{C_W + q*1024}")
        n_young += 1
    a(f"s_movk_i32 s{sT0}, {C_CG}")
    for q in range(2):
        a(f"buffer_load_dwordx4 v[{vCG+4*q}:{vCG+4*q+3}], v{vS2}, s[{S_CON}:{S_CON+3}], s{sT0} offen offset:{q*1024}")
        n_young += 1
    a(f"s_cmp_eq_u32 s{sFIRST}, 0\ns_cbranch_scc1 L2_noclear\ns_mov_b32 s{sFIRST}, 0")
    lds_fill(L["ACC"], 40 * ACC_NODE, 0)
    a(f"""
L2_noclear:
s_waitcnt lgkmcnt(0)
s_barrier
""")
    for kind in o.get("pf2", "").split():
        lo, hi = (int(v) for v in kind[1:].split("-"))
        total = (N_EDGES * 32 if kind[0] == "e" else N_NODES * 512) // 128
        l0, l1 = total * lo // 16, total * hi // 16
        nshare = 256 if kind[0] == "e" else 32
        per = -(-(l1 - l0) // nshare)
        a(f"s_lshr_b32 s{sT0}, s2, 3" if kind[0] == "x" else f"s_mov_b32 s{sT0}, s2")
        a(f"s_mul_i32 s{sT0}, s{sT0}, {per}\ns_add_u32 s{sT0}, s{sT0}, {l0}")
        for k in range(-(-per // T)):
            a(f"""v_add_u32 v{vF+8}, {k*T}, v0
v_cmp_gt_u32 vcc, {per}, v{vF+8}
v_add_lshl_u32 v{vF+8}, v{vF+8}, s{sT0}, 7
s_nop 0
v_cndmask_b32 v{vF+8}, -1, v{vF+8}, vcc
buffer_load_dword v{vPF}, v{vF+8}, s[{S_EF if kind[0] == 'e' else S_X}:{(S_EF if kind[0] == 'e' else S_X)+3}], 0 offen""")
            n_young += 1
    a(f"""
s_cmp_eq_u32 s{sMORE}, 0
s_cbranch_scc1 L2_nomore
v_mov_b32 v{vF}, {L['MISC']+8}
ds_write_b32 v{vF}, v{vONE}
L2_nomore:
s_mov_b32 s{sT0}, {MP}
s_mov_b32 s{sT1}, -1638
v_mov_b32 v{vF+2}, {40*1638}
s_waitcnt vmcnt({n_young})
""")
    stamp(a, o, 1)
    def for_parts(body, tag):
        for g in range(NG):
            for p in range(2):
                i = 2 * g + p
                a(f"s_mov_b64 exec, s[{sMASK+2*i}:{sMASK+2*i+1}]")
                if p:
                    a(f"s_cbranch_execz L2_{tag}{g}")
                body(g, i, vEN + 4 * i)
                if p:
                    a(f"L2_{tag}{g}:")
        a("s_mov_b64 exec, -1")
    def rank_body(g, i, e):
        a(f"v_bfe_u32 v{vKY+i}, v{e+2}, 14, 6")
        if SLIDE:
            a(f"""
v_and_b32 v{vF}, 0x3fff, v{e+2}
v_mad_i32_i24 v{vF+1}, v{vKY+i}, s{sT1}, v{vF+2}
v_mad_u32_u24 v{vF}, v{vF}, s{sT0}, v{vF+1}
v_lshrrev_b32 v{vF}, 16, v{vF}
v_mad_u32_u24 v{vKY+i}, v{vF}, 40, v{vKY+i}
""")
        elif NPH > 1:
            a(f"""
v_and_b32 v{vF}, 0x3fff, v{e+2}
v_mul_u32_u24 v{vF}, s{sT0}, v{vF}
v_lshrrev_b32 v{vF}, {SP}, v{vF}
v_mad_u32_u24 v{vKY+i}, v{vF}, 40, v{vKY+i}
""")
        a(f"""
v_lshlrev_b32 v{vKY+i}, 2, v{vKY+i}
v_add_u32 v{vKY+i}, {L['HIST']}, v{vKY+i}
ds_add_rtn_u32 v{vRK+i}, v{vKY+i}, v{vONE}
""")
    for_parts(rank_body, "rk")
    a(f"""
s_waitcnt lgkmcnt(0)
s_barrier
s_cmp_lg_u32 s{sWAVE}, 0
s_cbranch_scc1 L2_noscan
v_lshlrev_b32 v{vF+9}, 4, v0
v_add_u32 v{vF+9}, {L['HIST']}, v{vF+9}
ds_read_b128 v[{vF}:{vF+3}], v{vF+9}
s_waitcnt lgkmcnt(0)
""")
    for j in range(4):
        a(f"v_add_u32 v{vF+j}, 1, v{vF+j}\nv_and_b32 v{vF+j}, -2, v{vF+j}")
    a(f"""
v_add_u32 v{vF+5}, v{vF}, v{vF+1}
v_add_u32 v{vF+6}, v{vF+5}, v{vF+2}
v_add_u32 v{vF+7}, v{vF+6}, v{vF+3}
v_mov_b32 v{vF+8}, v{vF+7}
""")
    wave_scan(a, vF + 7)
    a(f"""
v_sub_u32 v{vF+4}, v{vF+7}, v{vF+8}
v_add_u32 v{vF+7}, v{vF+4}, v{vF+6}
v_add_u32 v{vF+6}, v{vF+4}, v{vF+5}
v_add_u32 v{vF+5}, v{vF+4}, v{vF}
ds_write_b128 v{vF+9}, v[{vF+4}:{vF+7}]
s_waitcnt lgkmcnt(0)
L2_noscan:
s_barrier
v_mov_b32 v{vF}, {L['HIST']+1020}
ds_read_b32 v{vF+1}, v{vF}
ds_read_b32 v{vF+2}, v{vF} offset:12
""")
    def start_body(g, i, e):
        a(f"ds_read_b32 v{vKY+i}, v{vKY+i}")
    for_parts(start_body, "st")
    a(f"""
s_waitcnt lgkmcnt(0)
v_readfirstlane_b32 s{sNBLK}, v{vF+1}
v_readfirstlane_b32 s{sMORE}, v{vF+2}
s_cmp_le_u32 s{sNBLK}, {CAP}
s_cbranch_scc1 L2_fits
s_mov_b32 s{sSPLIT}, 3
s_barrier
s_branch L2_round
L2_fits:
s_bfe_u32 s{sT0}, s{sNBLK}, 0x40001
s_and_b32 s{sT1}, s{sNBLK}, -32
s_add_u32 s{sT0}, s{sT0}, s{sT1}
s_lshl_b32 s{sT0}, s{sT0}, 2
v_mov_b32 v{vF}, s{sT0}
v_mov_b32 v{vF+1}, {PAD_E | 0x80000000:#x}
ds_write_b32 v{vF}, v{vF+1} offset:{L['EW']}
s_brev_b32 s{sT1}, 1
s_add_u32 s{sNBLK}, s{sNBLK}, 31
s_lshr_b32 s{sNBLK}, s{sNBLK}, 5
""")
    def scat_body(g, i, e):
        a(f"""
v_add_u32 v{vF}, v{vKY+i}, v{vRK+i}
v_and_b32 v{vF+1}, 1, v{vF}
v_bfe_u32 v{vF+2}, v{vF}, 1, 4
v_and_b32 v{vF}, -32, v{vF}
v_lshl_or_b32 v{vF}, v{vF+1}, 4, v{vF}
v_or_b32 v{vF}, v{vF}, v{vF+2}
v_lshlrev_b32 v{vF+1}, 3, v{vF}
v_lshlrev_b32 v{vF}, 2, v{vF}
ds_write_b64 v{vF+1}, v[{e}:{e+1}] offset:{L['YY']}
v_and_b32 v{vF+2}, {o.get('xmask', 0x3fff):#x}, v{e+2}
v_lshlrev_b32 v{vF+2}, 9, v{vF+2}
ds_write_b32 v{vF}, v{vF+2} offset:{L['XO']}
v_lshrrev_b32 v{vF+3}, 20, v{e+2}
v_add_lshl_u32 v{vF+3}, v{vF+3}, v{vTB+g}, 5
v_bfe_u32 v{vF+4}, v{e+2}, 14, 6
v_lshl_or_b32 v{vF+3}, v{vF+4}, 25, v{vF+3}
v_add_u32 v{vF+4}, -1, v{vRK+i}
v_and_or_b32 v{vF+3}, v{vF+4}, s{sT1}, v{vF+3}
ds_write_b32 v{vF}, v{vF+3} offset:{L['EW']}
""")
    for_parts(scat_body, "sc")
    a(f"""
s_waitcnt lgkmcnt(0)
s_barrier
""")

    stamp(a, o, 2)
    if o.get("stamps"):
        a("s_memtime s[96:97]\ns_waitcnt lgkmcnt(0)")
    main_start = len(a.L)
    NULLB = CAP // 32
    def emit(lst):
        for ins in lst:
            a(ins)
    def rho(step):
        return 8 * (step // 4) + step % 4
    def block_reads(sreg):
        a(f"""
s_lshl_b32 s{sT0}, s{sreg}, 7
s_lshl_b32 s{sT1}, s{sreg}, 8
v_add_u32 v{vEWN}, s{sT0}, v{vCE}
v_add_u32 v{vY}, s{sT1}, v{vCY}
ds_read_b32 v{vEWN}, v{vEWN} offset:{L['EW']}
ds_read_b64 v[{vY}:{vY+1}], v{vY} offset:{L['YY']}
""")
    def xo_addr(sreg):
        a(f"s_lshl_b32 s{sT0}, s{sreg}, 7\nv_add_u32 v{vA0}, s{sT0}, v{vCX}")
    def quad_read(q, dst=None):
        dst = vXO if dst is None else dst
        a(f"ds_read_b128 v[{dst}:{dst+3}], v{vA0} offset:{L['XO'] + q*16}")
    def x_load(step, src=None):
        xo = (vXO if src is None else src) + step % 4
        d = vX + 4 * (step % 8)
        return [f"v_add_u32 v{xo}, v{xo}, v{vXL}",
                f"buffer_load_dwordx4 v[{d}:{d+3}], v{xo}, s[{S_X}:{S_X+3}], 0 offen"]
    nbatch = [0]
    def ef_issue(sreg=None):
        kb = o.get("efbatch")
        if kb:
            nbatch[0] += 1
            sreg = sNXT if sreg is None else sreg
            a(f"s_lshr_b32 s{sT1}, s2, 3\ns_xor_b32 s{sT0}, s{sreg}, s{sT1}\ns_and_b32 s{sT0}, s{sT0}, {kb-1}\ns_cbranch_scc1 L2_nb{nbatch[0]}")
            a(f"s_and_b32 s{sT0}, s{sreg}, {-kb}\ns_lshl_b32 s{sT0}, s{sT0}, 7\nv_add_u32 v{vTM}, s{sT0}, v{vCE}")
            for i in range(kb):
                a(f"ds_read_b32 v{vU+i}, v{vTM} offset:{L['EW'] + 128*i}")
            a("s_waitcnt lgkmcnt(0)")
            for i in range(kb):
                a(f"v_and_or_b32 v{vU+i}, v{vU+i}, s{sEMASK}, v{vEH}")
            for i in range(kb):
                a(f"buffer_load_dwordx4 v[{vEF}:{vEF+3}], v{vU+i}, s[{S_EF}:{S_EF+3}], 0 offen {efmod}")
            if o.get("xtouch") is not None:
                share = 32 // kb
                nl = 496 // share
                a(f"""s_mul_i32 s{sT0}, s{sreg}, 496
s_lshr_b32 s{sT1}, s2, {3 + kb.bit_length() - 1}
s_mul_i32 s{sT1}, s{sT1}, {nl}
s_add_u32 s{sT0}, s{sT0}, s{sT1}
s_add_u32 s{sT0}, s{sT0}, {4 * o['xtouch']}
v_and_b32 v{vTM}, 63, v0
v_add_lshl_u32 v{vTM}, v{vTM}, s{sT0}, 7""")
                for i in range(-(-nl // 64)):
                    a(f"buffer_load_dword v{vPF}, v{vTM}, s[{S_X}:{S_X+3}], 0 offen\nv_add_u32 v{vTM}, {62*128}, v{vTM}")
            a(f"L2_nb{nbatch[0]}:\nv_cmp_gt_i32 s[{sFMN}:{sFMN+1}], 0, v{vEWN}")
            return
        a(f"""
v_and_or_b32 v{vEF}, v{vEWN}, s{sEMASK}, v{vEH}
v_cmp_gt_i32 s[{sFMN}:{sFMN+1}], 0, v{vEWN}
buffer_load_dwordx4 v[{vEF}:{vEF+3}], v{vEF}, s[{S_EF}:{S_EF+3}], 0 offen {efmod}
""")
    KT = [vU, vU + 4, vU + 16, vU + 20]
    def k_mfma():
        return [f"v_mfma_f32_4x4x4_16b_bf16 v[{KT[i]}:{KT[i]+3}], v[{vY}:{vY+1}], v[{vCG+2*i}:{vCG+2*i+1}], 0" for i in range(4)]
    def k_cvt(j):
        return [f"v_cvt_pk_bf16_f32 v{vK+2*j}, v{KT[0]+j}, v{KT[1]+j}",
                f"v_cvt_pk_bf16_f32 v{vK+2*j+1}, v{KT[2]+j}, v{KT[3]+j}"]
    def u_mfma():
        out = [f"v_mfma_f32_32x32x16_bf16 v[{vU+16*p}:{vU+16*p+15}], v[{vEF}:{vEF+3}], v[{vW+4*p}:{vW+4*p+3}], 0" for p in range(2)]
        if HILO:
            out += [f"v_mfma_f32_32x32x16_bf16 v[{vU+16*p}:{vU+16*p+15}], v[{vEF}:{vEF+3}], v[{vW+8+4*p}:{vW+8+4*p+3}], v[{vU+16*p}:{vU+16*p+15}]" for p in range(2)]
        return out
    def silu_ops(d):
        u = vU
        E = [f"v_exp_f32 v{vT+2*p+j}, -v{u+16*p+2*d+j}" for p in range(2) for j in range(2)]
        A = [f"v_pk_add_f32 v[{vT+2*p}:{vT+2*p+1}], v[{vT+2*p}:{vT+2*p+1}], 1.0 op_sel_hi:[1,0]" for p in range(2)]
        R = [f"v_rcp_f32 v{vT+2*p+j}, v{vT+2*p+j}" for p in range(2) for j in range(2)]
        M = [f"v_pk_mul_f32 v[{u+16*p+2*d}:{u+16*p+2*d+1}], v[{u+16*p+2*d}:{u+16*p+2*d+1}], v[{vT+2*p}:{vT+2*p+1}]" for p in range(2)]
        return E, A, R, M
    def fma_ops(step, first=False):
        d, j = divmod(step, 2)
        out = []
        for p in range(2):
            rr = vU + 16 * p + 2 * d
            for hh in range(2):
                t = vTP + 4 * p + 2 * hh
                c = vACC + 4 * p + 2 * hh
                if first:
                    out.append(f"v_pk_mul_f32 v[{c}:{c+1}], v[{t}:{t+1}], v[{rr}:{rr+1}] op_sel:[0,{j}] op_sel_hi:[1,{j}]")
                else:
                    out.append(f"v_pk_fma_f32 v[{c}:{c+1}], v[{t}:{t+1}], v[{rr}:{rr+1}], v[{c}:{c+1}] op_sel:[0,{j},0] op_sel_hi:[1,{j},1]")
        return out
    def tp_ops(step):
        out = []
        for p in range(2):
            t = vTP + 4 * p
            x = vX + 4 * (step % 8) + 2 * p
            k = vK + 2 * (step // 8)
            out.append(f"v_mfma_f32_4x4x4_16b_bf16 v[{t}:{t+3}], v[{k}:{k+1}], v[{x}:{x+1}], 0 cbsz:3 abid:{step%8}")
        return out
    def flush_body(step):
        a(f"""
v_readlane_b32 s{sT0}, v{vEWC}, {rho(step)}
v_cvt_f64_f32 v[{vTM}:{vTM+1}], v{vACC}
s_bfe_u32 s{sT0}, s{sT0}, 0x60019
s_mul_i32 s{sT0}, s{sT0}, {ACC_NODE}
v_add_u32 v{vQ}, s{sT0}, v{vAL}
""")
        for i in range(0, 8, 2):
            off = (i % 4) * ACC_ROW + (i // 4) * 256
            if i:
                a(f"v_cvt_f64_f32 v[{vTM}:{vTM+1}], v{vACC+i}")
            a(f"""
v_cvt_f64_f32 v[{vACC+i}:{vACC+i+1}], v{vACC+i+1}
ds_add_f64 v{vQ}, v[{vTM}:{vTM+1}] offset:{off}
ds_add_f64 v{vQ}, v[{vACC+i}:{vACC+i+1}] offset:{off + ACC_ROW}
""")
    def clamp(sreg):
        a(f"s_cmp_lt_u32 s{sreg}, s{sNBLK}\ns_cselect_b32 s{sreg}, s{sreg}, {NULLB}")

    if NC < NW:
        NP = NW - NC
        RPW = o.get("rpw", 2)
        r0 = o.get("pfr0", N_NODES * 10 // SLIDE if SLIDE else 0)
        lead = (N_NODES * 5 // SLIDE if SLIDE else 0) + o.get("lead", 600)
        a(f"""
s_cmp_lt_u32 s{sWAVE}, {NC}
s_cbranch_scc1 L2_compute
s_lshr_b32 s{sT0}, s2, 3
s_mul_i32 s{sT0}, s{sT0}, {NP}
s_add_u32 s{sT0}, s{sT0}, s{sWAVE}
s_sub_u32 s{sT0}, s{sT0}, {NC}
s_mul_i32 s{sT0}, s{sT0}, {RPW}
s_add_u32 s{sNXT}, s{sT0}, {r0}
v_mov_b32 v{vTM}, {L['MISC']}
L2_pf_loop:
s_cmp_gt_u32 s{sNXT}, {N_NODES - RPW}
s_cbranch_scc1 L2_done
ds_read_b32 v{vTM+1}, v{vTM}
s_waitcnt lgkmcnt(0)
v_readfirstlane_b32 s{sT0}, v{vTM+1}
s_add_u32 s{sT0}, s{sT0}, {NC}
s_cmp_ge_u32 s{sT0}, s{sNBLK}
s_cbranch_scc1 L2_done
s_mul_i32 s{sT0}, s{sT0}, {N_NODES}
s_sub_i32 s{sT1}, s{sNXT}, {lead}
s_mul_i32 s{sT1}, s{sT1}, s{sNBLK}
s_cmp_le_i32 s{sT1}, s{sT0}
s_cbranch_scc1 L2_pf_go
s_sleep 4
s_branch L2_pf_loop
L2_pf_go:
s_lshl_b32 s{sT0}, s{sNXT}, 9
""")
        for j in range(8 * RPW):
            a(f"s_load_dword s{sFMN}, s[{S_X}:{S_X+1}], s{sT0} offset:{64*j}")
        a(f"""
s_add_u32 s{sNXT}, s{sNXT}, {32 * NP * RPW}
s_branch L2_pf_loop
L2_compute:
""")
    a(f"""
s_cmp_ge_u32 s{sWAVE}, s{sNBLK}
s_cbranch_scc1 L2_done
""")
    if o.get("prio"):
        a("s_setprio 3")
    block_reads(sWAVE)
    xo_addr(sWAVE)
    quad_read(0)
    quad_read(1, vTP)
    a("s_waitcnt lgkmcnt(0)")
    ef_issue(sWAVE)
    for s in range(4):
        emit(x_load(s))
    for s in range(4, 8):
        emit(x_load(s, vTP))
    quad_read(2)
    a("s_waitcnt vmcnt(9)")
    emit(k_mfma())
    a("s_nop 4")
    emit(k_cvt(0) + k_cvt(1))
    a("s_waitcnt vmcnt(8)")
    stamp(a, o, 3)
    a("s_waitcnt lgkmcnt(0)")
    emit(u_mfma())
    a("s_nop 7\ns_branch L2_enter")

    E0 = 4
    def body(tail):
        tag = "t" if tail else ""
        for s in range(2 if tail else 0, 16):
            d, j = divmod(s, 2)
            M = tp_ops(s)
            TR, PK = [], []
            if d < 7:
                E, A, R, U = silu_ops(d + 1)
                TR, PK = (R, U) if j else (E, A)
            if not (tail and s == 2):
                if tail:
                    a(f"s_waitcnt vmcnt({min(7, 15 - s)})")
                else:
                    a(f"s_waitcnt vmcnt({8 if E0 < s < E0 + 8 else 7})")
                a(M[0])
                emit(TR[:1])
                a(M[1])
                if s in (9, 10) and not tail:
                    KM = k_mfma()[2 * (s - 9):2 * (s - 9) + 2]
                    a(TR[1]); a(KM[0]); a(TR[2]); a(KM[1]); a(TR[3])
                else:
                    emit(TR[1:])
                if s == 15 and not tail:
                    emit(k_cvt(1))
                if s == 12 and not tail:
                    emit(k_cvt(0))
                if (s % 4 == 0 or s == 2) and not (tail and s >= 8):
                    a(f"s_waitcnt lgkmcnt({8 if s == 0 else 0})")
                if s == 2:
                    a(f"""v_readfirstlane_b32 s{sNXT}, v{vEWN}
s_add_u32 s{sNXT}, s{sNXT}, {NC}
s_cmp_ge_u32 s{sNXT}, s{sNBLK}
s_cbranch_scc1 L2_tail""")
                    block_reads(sNXT)
            if s == E0 and not tail:
                ef_issue()
                xo_addr(sNXT)
            if not (tail and s >= 8):
                emit(x_load(s))
            if s % 4 == 3 and not (tail and s > 3):
                quad_read((s // 4 + 3) & 3)
            if s == 0:
                a(f"""
v_mov_b32 v{vEWN}, {L['MISC']}
v_mov_b32 v{vY}, 1
s_mov_b64 exec, 1
ds_add_rtn_u32 v{vEWN}, v{vEWN}, v{vY}
s_mov_b64 exec, -1
""")
                emit(fma_ops(0, True))
            else:
                if s >= 14:
                    a("s_nop 1" if tail else "s_nop 0" if s == 14 else "")
                a(f"s_bitcmp1_b32 s{sFM}, {rho(s)}\ns_cbranch_scc1 L2_fl{tag}{s}")
                emit(fma_ops(s))
                a(f"L2_fr{tag}{s}:")
            emit(PK)
    def stubs(tail):
        tag = "t" if tail else ""
        for s in range(2 if tail else 1, 16):
            a(f"L2_fl{tag}{s}:")
            flush_body(s - 1)
            emit(fma_ops(s, True))
            a(f"s_branch L2_fr{tag}{s}")
    a("L2_block:")
    body(False)
    emit(u_mfma())
    flush_body(15)
    if o.get("prio"):
        a(f"s_lshl_b32 s{sT0}, s{sNXT}, 2")
        for lvl in (2, 1, 0):
            a(f"s_sub_u32 s{sT0}, s{sT0}, s{sNBLK}\ns_cbranch_scc1 L2_prio\ns_setprio {lvl}")
        a("L2_prio:")
    a(f"""
L2_enter:
v_mov_b32 v{vEWC}, v{vEWN}
s_mov_b32 s{sFM}, s{sFMN}
""")
    E, A, R, U = silu_ops(0)
    emit(E)
    a("s_nop 0")
    emit(A + R)
    a("s_nop 0")
    emit(U)
    a("s_branch L2_block")
    stubs(False)
    stubs(True)
    a("L2_tail:")
    body(True)
    flush_body(15)

    if o.get("drop"):
        import re
        pat = re.compile(o["drop"].replace(" ", "|"))
        a.L[main_start:] = [l for l in a.L[main_start:] if not pat.search(l)]
    vB = base + (base & 1)
    vEA = vB + 32
    a(f"""
L2_done:
s_waitcnt vmcnt(0) lgkmcnt(0)
s_cmp_eq_u32 s{sQ}, s{sSPLIT}
s_cbranch_scc1 L2_lastq
s_add_u32 s{sQ}, s{sQ}, 1
s_barrier
s_branch L2_round
L2_lastq:
s_cmp_eq_u32 s{sMORE}, 0
s_cbranch_scc1 L2_epi
s_add_u32 s{sK}, s{sK}, 1
s_mov_b32 s{sQ}, 0
s_mov_b32 s{sSPLIT}, 0
s_barrier
s_branch L2_round
L2_epi:
v_and_b32 v4, 63, v0
v_lshlrev_b32 v2, 4, v4
s_movk_i32 s{sT0}, {C_MIX}
""")
    for q in range(8):
        if q == 4:
            a(f"s_movk_i32 s{sT0}, {C_MIX + 4096}")
        a(f"buffer_load_dwordx4 v[{vB+4*q}:{vB+4*q+3}], v2, s[{S_CON}:{S_CON+3}], s{sT0} offen offset:{(q%4)*1024}")
    a(f"""
s_barrier
""")
    stamp(a, o, 4)
    if o.get("stamps"):
        a("s_memtime s[98:99]")
    a(f"""
L2_epi_job:
s_cmp_ge_u32 s{sWAVE}, 10
s_cbranch_scc1 L2_end
v_and_b32 v2, 15, v4
v_mul_u32_u24 v2, {ACC_ROW}, v2
v_lshrrev_b32 v3, 4, v4
v_lshl_add_u32 v2, v3, 6, v2
s_mul_i32 s{sT0}, s{sWAVE}, {4*ACC_NODE}
s_add_u32 s{sT0}, s{sT0}, {L['ACC']}
v_add_u32 v2, s{sT0}, v2
""")
    for ks in range(2):
        for hh in range(4):
            a(f"ds_read_b128 v[{vEA+16*ks+4*hh}:{vEA+16*ks+4*hh+3}], v2 offset:{ks*256+hh*16}")
    a(f"""
s_lshl_b32 s{sT0}, s{sWAVE}, 2
s_add_u32 s{sT0}, s{sT0}, s{sN0}
v_add_u32 v3, s{sT0}, v3
v_cmp_gt_u32 vcc, s{sNN}, v3
v_lshlrev_b32 v3, 9, v3
v_and_b32 v2, 15, v4
v_lshl_add_u32 v3, v2, 4, v3
s_mov_b32 s{sT0}, {LN2:#x}
s_waitcnt lgkmcnt(0)
""")
    vPA = vEA + 32
    for j in range(16):
        a(f"v_cvt_f32_f64 v{vEA+j}, v[{vEA+2*j}:{vEA+2*j+1}]")
    for j in range(16):
        a(f"v_mul_f32 v{vEA+j}, s{sT0}, v{vEA+j}")
    for j in range(8):
        a(f"v_cvt_pk_bf16_f32 v{vPA+j}, v{vEA+2*j}, v{vEA+2*j+1}")
    a("s_waitcnt vmcnt(0)\ns_nop 1")
    vD = vPA + 8
    for ks in range(2):
        for t in range(4):
            c = "0" if ks == 0 else f"v[{vD+4*t}:{vD+4*t+3}]"
            a(f"v_mfma_f32_16x16x32_bf16 v[{vD+4*t}:{vD+4*t+3}], v[{vPA+4*ks}:{vPA+4*ks+3}], v[{vB+8*t+4*ks}:{vB+8*t+4*ks+3}], {c}")
    a("s_nop 7")
    for j in range(8):
        a(f"v_cvt_pk_bf16_f32 v{vEA+j}, v{vD+2*j}, v{vD+2*j+1}")
    a(f"""
s_and_b64 exec, exec, vcc
s_cbranch_execz L2_end
buffer_store_dwordx4 v[{vEA}:{vEA+3}], v3, s[{S_OUT}:{S_OUT+3}], 0 offen {o.get('outst', '')}
buffer_store_dwordx4 v[{vEA+4}:{vEA+7}], v3, s[{S_OUT}:{S_OUT+3}], 0 offen offset:256 {o.get('outst', '')}
s_mov_b64 exec, -1
""")
    if NW < 10:
        a(f"s_add_u32 s{sWAVE}, s{sWAVE}, {NW}\ns_cmp_lt_u32 s{sWAVE}, 10\ns_cbranch_scc1 L2_epi_job")
    if o.get("stamps"):
        a("s_waitcnt vmcnt(0)")
    stamp(a, o, 5)
    stamp_out(a, o, 1, 8, "b")
    if o.get("stamps"):
        n_sgpr = 100
        assert sMASK + 4 * NG <= 84
    a("L2_end:\ns_endpgm")
    n_vgpr = max(n_vgpr, vD + 16)
    return a.text(), n_vgpr, n_sgpr, T, L["size"]

HEADER = open("cdna_kernels/" + NAME + ".s.ref").read().split("; Override launch")[0]

def build(o):
    k1, v1, s1 = gen_k1(o)
    k2, v2, s2, T2, lds2 = gen_k2(o)
    out = HEADER
    out += f"; @launch kernel=part_kernel grid=({NB if o.get('pf1') else NCH+1},1,1) block=({K1_T},1,1) lds={K1_LDS}\n"
    out += f"; @launch kernel=msg_kernel grid=({NB},1,1) block=({T2},1,1) lds={lds2}\n"
    out += '.amdgcn_target "amdgcn-amd-amdhsa--gfx950"\n.text\n'
    for name, body in (("part_kernel", k1), ("msg_kernel", k2)):
        out += f".globl {name}\n.p2align 8\n.type {name},@function\n{body}"
    out += '.section .rodata,"a"\n.p2align 6\n'
    out += descriptor("part_kernel", v1, s1)
    out += ".p2align 6\n"
    out += descriptor("msg_kernel", v2, s2)
    return out, dict(v2=v2, s2=s2, lds2=lds2)

if __name__ == "__main__":
    o = {}
    path = "cdna_kernels/" + NAME + ".s"
    for arg in sys.argv[1:]:
        k, v = arg.split("=", 1)
        if k == "out":
            path = v
        else:
            o[k] = int(v) if v.lstrip("-").isdigit() else v.replace("+", " ")
    txt, info = build(o)
    open(path, "w").write(txt)
    print(path, info)
```

```python
import sys
from gen import (NAME, N_NODES, N_EDGES, CH, NCH, NB, LOG2E, LN2, magic, Asm, srd, wave_scan,
                 descriptor, HEADER, WS_STAMP)

WS_ENT = 0x1000000
WS_TAB = 0x800000
ACC_ROW = 528
ACC_NODE = 4 * ACC_ROW
PAD_X = 0x7FFF0000
PAD_E = 0x01FFFFE0
NW, T, NG = 16, 1024, 4
PW = 10
SPIN = 1 << 18

def gen(o):
    a = Asm()
    NPH = o.get("nph", 4)
    HILO = o.get("hilo", 0)
    CAP = o.get("cap", 3072)
    NP = CAP // 2 + 16
    assert NP % 32 == 16
    STAMPS = o.get("stamps")
    TAGREC = o.get("tagrec", 0)
    REC = 16 if TAGREC else 12
    MIXROW = 144
    XO, EW, YY, ACC = 0, NP * 8, NP * 16, NP * 32
    H1 = ACC + 40 * ACC_NODE
    H2 = H1 + 1024 + 64
    MISC = H2 + 1024
    CW = MISC + 64
    CCG = CW + (4096 if HILO else 2048)
    CMIX = CCG + 2048
    LDS = CMIX + 64 * MIXROW
    EPOCH = H1 + 1024 + 16
    STG = 0
    MB, SB = magic(NB, N_NODES, N_NODES)
    MP, SP = magic(NPH, N_NODES, N_NODES) if NPH > 1 else (0, 0)

    S_X, S_EF, S_ENT, S_TAB, S_A, S_OUT = 12, 16, 20, 24, 28, 32
    sB, sN0, sNN, sWAVE, sK, sQ, sSPLIT, sNBLK = 36, 37, 38, 39, 40, 41, 42, 43
    sFMN, sNXT, sFM, sT0, sT1, sEMASK, sMORE = 44, 46, 47, 48, 49, 50, 51
    sMASK = 52
    sTAGL, sTAGH, sCNT = 4, 5, 6
    n_sgpr = 100 if STAMPS else 76

    vXL, vW, vCG = 1, 2, 2 + (16 if HILO else 8)
    r = vCG + 8
    vAL = r; vCX = r + 1; vCE = r + 2; vCY = r + 3; vEH = r + 4; vA0 = r + 5
    r += 6
    base = r
    vU = r; r += 32
    vX = r; r += 32
    vXO = r; r += 4
    vTP = r; r += 8
    vACC = r; r += 8
    vK = r; r += 4
    vEF = r; r += 4
    vT = r; r += 4
    vY = r; r += 2
    vTM = r; r += 2
    vEWC = r; vEWN = r + 1; vQ = r + 2; r += 3
    n_main = r
    r = base
    vTB = r; r += 2 * NG
    vEN = r; r += 8 * NG
    vRK = r; r += 2 * NG
    vKY = r; r += 2 * NG
    vF = r; r += 16
    vONE = r; vS2 = r + 1; vS3 = r + 2; vWC = r + 3; r += 3 + NG
    vPF = max(n_main, r)
    n_vgpr = vPF + 1

    def emit(lst):
        for ins in lst:
            a(ins)
    marks = o.get("marks", "start dst Y join join poll ent sort main end").split()
    def stamp(name):
        if STAMPS:
            for i, m in enumerate(marks):
                if m == name:
                    a(f"s_memrealtime s[{76+2*i}:{77+2*i}]")
    def prefetch(kinds, vtid, nthr, vtmp):
        n = 0
        for kind in kinds.split():
            lo, hi = (int(v) for v in kind[1:].split("-"))
            total = (N_EDGES * 32 if kind[0] == "e" else N_NODES * 512) // 128
            l0, l1 = total * lo // 32, total * hi // 32
            per = -(-(l1 - l0) // (32 if kind[0] == "x" else 256))
            sr = S_EF if kind[0] == "e" else S_X
            a(f"s_lshr_b32 s{sT0}, s2, 3" if kind[0] == "x" else f"s_mov_b32 s{sT0}, s2")
            a(f"s_mul_i32 s{sT0}, s{sT0}, {per}\ns_add_u32 s{sT0}, s{sT0}, {l0}")
            for k in range(-(-per // nthr)):
                a(f"""v_add_u32 v{vtmp}, {k*nthr}, v{vtid}
v_cmp_gt_u32 vcc, {per}, v{vtmp}
v_add_lshl_u32 v{vtmp}, v{vtmp}, s{sT0}, 7
s_nop 0
v_cndmask_b32 v{vtmp}, -1, v{vtmp}, vcc
buffer_load_dword v{vPF}, v{vtmp}, s[{sr}:{sr+3}], 0 offen""")
                n += 1
        return n
    def lds_fill(start, nbytes, val, vtid, nthr, v):
        a(f"v_lshlrev_b32 v{v+4}, 4, v{vtid}")
        for j in range(4):
            a(f"v_mov_b32 v{v+j}, {val:#x}")
        n = nbytes // 16
        assert nbytes % 16 == 0
        k = 0
        while k * nthr < n:
            rem = n - k * nthr
            if start + k * nthr * 16 >= 65536:
                a(f"v_add_u32 v{v+4}, {start + k*nthr*16}, v{v+4}")
                start = -k * nthr * 16
            if rem < nthr:
                a(f"v_cmp_gt_u32 vcc, {rem}, v{vtid}\ns_and_saveexec_b64 s[{sT0}:{sT1}], vcc")
            a(f"ds_write_b128 v{v+4}, v[{v}:{v+3}] offset:{start + k*nthr*16}")
            if rem < nthr:
                a(f"s_mov_b64 exec, s[{sT0}:{sT1}]")
            k += 1
    def slot_fills(vtid, nthr, v):
        lds_fill(H2, 1024 + 64, 0, vtid, nthr, v)
        lds_fill(YY, NP * 16, 0, vtid, nthr, v)
        lds_fill(XO, NP * 8, PAD_X, vtid, nthr, v)
        lds_fill(EW, NP * 8, PAD_E, vtid, nthr, v)
    def common_srds():
        srd(a, S_X, 56, 0 if o.get("nox") else N_NODES * 512)
        srd(a, S_EF, 64, 0 if o.get("noef") else N_EDGES * 32)
        srd(a, S_OUT, 72, N_NODES * 512)
        srd(a, S_ENT, 10, NCH * CH * REC, WS_ENT)
        srd(a, S_TAB, 10, NCH * NB * 8, WS_TAB)

    K = NAME + "_kernel"
    a(f"""
{K}:
s_cmp_ge_u32 s2, {NB}
s_cbranch_scc1 L_end
""")
    stamp("start")
    a(f"""
s_load_dwordx16 s[56:71], s[0:1], 0
s_load_dwordx4 s[72:75], s[0:1], 64
s_load_dwordx2 s[10:11], s[0:1], 80
v_lshrrev_b32 v2, 6, v0
v_lshlrev_b32 v1, 4, v0
v_readfirstlane_b32 s{sWAVE}, v2
s_cmp_ge_u32 s{sWAVE}, {PW}
s_cbranch_scc1 L_helper
s_cmp_ge_u32 s2, {NCH}
s_cbranch_scc1 L_idle
v_lshlrev_b32 v2, 5, v0
v_lshlrev_b32 v3, 2, v0
s_mul_i32 s3, s2, {CH*4}
s_mul_i32 s7, s2, {CH*8}
s_waitcnt lgkmcnt(0)
""")
    srd(a, S_A, 60, N_EDGES * 4)
    a(f"buffer_load_dwordx4 v[4:7], v1, s[{S_A}:{S_A+3}], s3 offen")
    srd(a, 40, 58, N_EDGES * 4)
    a(f"buffer_load_dwordx4 v[8:11], v1, s[40:43], s3 offen")
    srd(a, 44, 62, N_EDGES * 8)
    a(f"buffer_load_dwordx4 v[12:15], v2, s[44:47], s7 offen")
    a(f"buffer_load_dwordx4 v[16:19], v2, s[44:47], s7 offen offset:16")
    a("s_barrier")
    common_srds()
    a(f"""
s_mov_b32 s8, {MB}
s_movk_i32 s9, 625
v_mov_b32 v21, 1
v_mov_b32 v22, {H1}
s_waitcnt vmcnt(3)
""")
    stamp("dst")
    for k in range(4):
        a(f"""
v_mul_u32_u24 v{24+k}, s8, v{4+k}
v_lshrrev_b32 v{24+k}, {SB}, v{24+k}
v_lshl_add_u32 v{28+k}, v{24+k}, 2, v22
ds_add_rtn_u32 v{32+k}, v{28+k}, v21
""")
    for k in range(4):
        a(f"""
v_mad_u32_u24 v{24+k}, v{24+k}, s9, 15
v_lshrrev_b32 v{24+k}, 4, v{24+k}
v_sub_u32 v{24+k}, v{4+k}, v{24+k}
v_add_u32 v{36+k}, {k}, v3
v_lshlrev_b32 v{36+k}, 20, v{36+k}
v_lshl_or_b32 v{36+k}, v{24+k}, 14, v{36+k}
""")
    a(f"""
s_waitcnt lgkmcnt(0)
s_barrier
s_cmp_lg_u32 s{sWAVE}, 0
s_cbranch_scc1 L_a_noscan
v_add_u32 v49, v1, v22
ds_read_b128 v[40:43], v49
s_waitcnt lgkmcnt(0)
v_add_u32 v45, v40, v41
v_add_u32 v46, v45, v42
v_add_u32 v47, v46, v43
v_mov_b32 v48, v47
""")
    wave_scan(a, 47)
    a(f"""
v_sub_u32 v44, v47, v48
v_add_u32 v47, v44, v46
v_add_u32 v46, v44, v45
v_add_u32 v45, v44, v40
ds_write_b128 v49, v[44:47]
s_waitcnt lgkmcnt(0)
L_a_noscan:
s_barrier
""")
    for k in range(4):
        a(f"ds_read_b32 v{24+k}, v{28+k}")
    a(f"""
v_and_b32 v49, 0x7f, v0
v_lshl_add_u32 v49, v49, 3, v22
ds_read_b64 v[40:41], v49
ds_read_b32 v42, v49 offset:8
s_waitcnt vmcnt(2)
""")
    for k in range(4):
        a(f"v_or_b32 v{36+k}, v{36+k}, v{8+k}\ns_waitcnt lgkmcnt({5-k})")
        if TAGREC:
            a(f"v_add_lshl_u32 v{24+k}, v{24+k}, v{32+k}, 2")
        else:
            a(f"v_add_u32 v{24+k}, v{24+k}, v{32+k}\nv_mul_u32_u24 v{24+k}, {REC}, v{24+k}")
    for k in range(4):
        a(f"ds_write_b32 v{24+k}, v{36+k} offset:{STG + (CH*8 if TAGREC else 8)}")
    if TAGREC:
        for k in range(4):
            a(f"v_lshlrev_b32 v{24+k}, 1, v{24+k}")
        a("v_lshlrev_b32 v2, 3, v0")
    tabwords = """
v_lshl_or_b32 v42, v45, 24, v42
v_lshl_or_b32 v40, v45, 24, v40
v_mov_b32 v41, v44
v_mov_b32 v43, v44
"""
    a(f"""
s_waitcnt lgkmcnt(4)
v_sub_u32 v42, v42, v41
v_sub_u32 v43, v41, v40
v_lshl_or_b32 v42, v42, 12, v41
v_lshl_or_b32 v40, v43, 12, v40
v_mov_b32 v49, {EPOCH}
s_mul_i32 s3, s2, {CH*REC}
s_lshl_b32 s7, s2, 11
s_waitcnt vmcnt(0)
""")
    stamp("Y")
    for k in range(4):
        if TAGREC:
            a(f"ds_write_b64 v{24+k}, v[{12+2*k}:{13+2*k}] offset:{STG}")
        else:
            a(f"ds_write2_b32 v{24+k}, v{12+2*k}, v{13+2*k} offset0:{STG//4} offset1:{STG//4+1}")
    a("s_waitcnt lgkmcnt(0)")
    stamp("preB4")
    a("s_barrier")
    stamp("B4")
    if STAMPS:
        a("s_waitcnt lgkmcnt(0)")
    a("ds_read_b64 v[44:45], v49")
    if TAGREC:
        for k in range(4):
            a(f"ds_read_b64 v[{4+4*k}:{5+4*k}], v2 offset:{STG + k*PW*512}")
            a(f"ds_read_b32 v{6+4*k}, v3 offset:{STG + CH*8 + k*PW*256}")
        a(f"""
s_waitcnt lgkmcnt(8)
s_cmp_ge_u32 s{sWAVE}, 2
s_cbranch_scc1 L_a_notab
{tabwords}
buffer_store_dwordx4 v[40:43], v1, s[{S_TAB}:{S_TAB+3}], s7 offen sc1
L_a_notab:
""")
        for k in range(4):
            a(f"v_mov_b32 v{7+4*k}, v44")
    else:
        for k in range(3):
            a(f"ds_read_b128 v[{4+4*k}:{7+4*k}], v1 offset:{STG + k*PW*1024}")
    nst = REC // 4
    for k in range(nst):
        a(f"""
s_waitcnt lgkmcnt({(nst-1-k) * (2 if TAGREC else 1)})
buffer_store_dwordx4 v[{4+4*k}:{7+4*k}], v1, s[{S_ENT}:{S_ENT+3}], s3 offen sc1
s_add_u32 s3, s3, {PW*1024}
""")
    if not TAGREC:
        a(tabwords)
    stamp("preB4b")
    a("L_a_fill:\ns_barrier")
    stamp("B4b")
    slot_fills(0, PW * 64, 50)
    a("s_waitcnt lgkmcnt(0)" if TAGREC else "s_waitcnt vmcnt(0) lgkmcnt(0)")
    stamp("preB5")
    a("s_barrier")
    if not TAGREC:
        a(f"""
s_cmp_ge_u32 s{sWAVE}, 2
s_cbranch_scc1 L_join
s_cmp_ge_u32 s2, {NCH}
s_cbranch_scc1 L_join
buffer_store_dwordx4 v[40:43], v1, s[{S_TAB}:{S_TAB+3}], s7 offen sc1
""")
    a(f"""
s_branch L_join
L_idle:
s_waitcnt lgkmcnt(0)
""")
    common_srds()
    a("s_barrier\n" * 4 + "s_branch L_a_fill")

    HT = (NW - PW) * 64
    a(f"""
L_helper:
v_subrev_u32 v2, {PW*64}, v0
v_and_b32 v3, 63, v0
s_waitcnt lgkmcnt(0)
""")
    srd(a, S_A, 74, 256)
    a(f"""
s_cmp_lg_u32 s{sWAVE}, {PW+1}
s_cbranch_scc1 L_h_nopub
s_cmp_lg_u32 s2, {NB-1}
s_cbranch_scc1 L_h_nopub
s_memrealtime s[8:9]
v_mov_b32 v6, 0
s_waitcnt lgkmcnt(0)
s_and_b32 s9, s9, 0xff
s_or_b32 s9, s9, 0x100
v_mov_b32 v4, s8
v_mov_b32 v5, s9
s_mov_b64 exec, 1
buffer_store_dwordx2 v[4:5], v6, s[{S_A}:{S_A+3}], 0 offen sc1
s_mov_b64 exec, -1
L_h_nopub:
""")
    lds_fill(H1, 1024, 0, 2, HT, 4)
    a(f"""
v_mov_b32 v9, {H1+1024}
v_mov_b32 v10, {CH}
ds_write_b32 v9, v10
s_waitcnt lgkmcnt(0)
s_barrier
""")
    common_srds()
    lds_fill(ACC, 40 * ACC_NODE, 0, 2, HT, 4)
    a(f"""
s_barrier
v_mov_b32 v12, 0
s_cmp_lg_u32 s{sWAVE}, {NW-1}
s_cbranch_scc1 L_h_nopoll1
buffer_load_dwordx2 v[14:15], v12, s[{S_A}:{S_A+3}], 0 offen sc1
L_h_nopoll1:
s_barrier
""")
    a(f"""
s_cmp_eq_u32 s{sWAVE}, {PW}
s_cbranch_scc1 L_h_ldw
s_cmp_eq_u32 s{sWAVE}, {PW+1}
s_cbranch_scc1 L_h_ldcg
""")
    srd(a, 40, 70, 64 * 64 * 2)
    a(f"""
v_subrev_u32 v10, {(PW+2)*64*16}, v1
buffer_load_dwordx4 v[16:19], v10, s[40:43], 0 offen
v_add_u32 v11, 4096, v10
buffer_load_dwordx4 v[20:23], v11, s[40:43], 0 offen
s_branch L_h_ld_done
L_h_ldw:
""")
    srd(a, 40, 66, 16 * 64 * 2)
    a("""
v_lshrrev_b32 v10, 5, v3
v_lshlrev_b32 v10, 10, v10
v_and_b32 v11, 31, v3
v_lshl_add_u32 v10, v11, 2, v10
""")
    for i in range(8):
        a(f"buffer_load_dword v{16+i}, v10, s[40:43], 0 offen offset:{i*128}")
    a("s_branch L_h_ld_done\nL_h_ldcg:")
    srd(a, 40, 68, 64 * 2)
    a("v_and_b32 v10, 3, v3\nv_lshlrev_b32 v10, 1, v10")
    for j in range(16):
        a(f"buffer_load_ushort v{16+j}, v10, s[40:43], 0 offen offset:{j*8}")
    a("L_h_ld_done:")
    n1 = prefetch(o.get("pfa", ""), 2, HT, 9)
    a(f"""
s_cmp_lg_u32 s{sWAVE}, {NW-1}
s_cbranch_scc1 L_h_noepoch
s_mov_b32 s{sCNT}, 0
s_waitcnt vmcnt({n1 + 2})
L_h_poll:
v_readfirstlane_b32 s{sT0}, v15
s_cmp_lg_u32 s{sT0}, 0
s_cbranch_scc1 L_h_polled
s_add_u32 s{sCNT}, s{sCNT}, 1
s_cmp_ge_u32 s{sCNT}, {SPIN}
s_cbranch_scc1 L_end
buffer_load_dwordx2 v[14:15], v12, s[{S_A}:{S_A+3}], 0 offen sc1
s_waitcnt vmcnt(0)
s_branch L_h_poll
L_h_polled:
v_mov_b32 v12, {EPOCH}
v_and_b32 v15, 0xff, v15
ds_write_b64 v12, v[14:15]
L_h_noepoch:
s_waitcnt lgkmcnt(0)
s_barrier
s_barrier
""")
    n2 = prefetch(o.get("pfb", ""), 2, HT, 9)
    a(f"""
s_waitcnt vmcnt({n1 + n2})
v_lshlrev_b32 v9, 4, v3
s_cmp_eq_u32 s{sWAVE}, {PW}
s_cbranch_scc1 L_h_dow
s_cmp_eq_u32 s{sWAVE}, {PW+1}
s_cbranch_scc1 L_h_docg
""")
    a(f"""
v_lshrrev_b32 v4, 7, v10
v_mul_u32_u24 v5, {MIXROW}, v4
v_and_b32 v6, 7, v3
v_lshl_add_u32 v5, v6, 3, v5
v_add_u32 v5, {CMIX}, v5
s_mov_b32 s8, 0x05040100
s_mov_b32 s9, 0x07060302
""")
    for half in range(2):
        q = 16 + 4 * half
        a(f"""
v_perm_b32 v24, v{q+1}, v{q}, s8
v_perm_b32 v25, v{q+3}, v{q+2}, s8
v_perm_b32 v26, v{q+1}, v{q}, s9
v_perm_b32 v27, v{q+3}, v{q+2}, s9
ds_write_b64 v5, v[24:25] offset:{half*32*MIXROW}
ds_write_b64 v5, v[26:27] offset:{half*32*MIXROW + 64}
""")
    a(f"""
s_branch L_h_const_done
L_h_dow:
s_mov_b32 s8, {LOG2E:#x}
v_add_u32 v9, {CW}, v9
""")
    for i in range(8):
        a(f"""
v_lshlrev_b32 v{24+i}, 16, v{16+i}
v_and_b32 v{32+i}, 0xffff0000, v{16+i}
v_mul_f32 v{24+i}, s8, v{24+i}
v_mul_f32 v{32+i}, s8, v{32+i}
""")
    for j in range(8):
        a(f"v_cvt_pk_bf16_f32 v{40+j}, v{24+2*j}, v{25+2*j}")
    a("ds_write_b128 v9, v[40:43]\nds_write_b128 v9, v[44:47] offset:1024")
    if HILO:
        for j in range(8):
            a(f"""
v_lshlrev_b32 v6, 16, v{40+j}
v_and_b32 v7, 0xffff0000, v{40+j}
v_sub_f32 v{24+2*j}, v{24+2*j}, v6
v_sub_f32 v{25+2*j}, v{25+2*j}, v7
v_cvt_pk_bf16_f32 v{16+j}, v{24+2*j}, v{25+2*j}
""")
        a("ds_write_b128 v9, v[16:19] offset:2048\nds_write_b128 v9, v[20:23] offset:3072")
    a(f"s_branch L_h_const_done\nL_h_docg:\nv_add_u32 v9, {CCG}, v9")
    for j in range(8):
        a(f"v_lshl_or_b32 v{32+j}, v{17+2*j}, 16, v{16+2*j}")
    a(f"""
ds_write_b128 v9, v[32:35]
ds_write_b128 v9, v[36:39] offset:1024
L_h_const_done:
""")
    a("s_waitcnt lgkmcnt(0)\ns_barrier")

    a("L_join:")
    stamp("join")
    a(f"""
s_and_b32 s{sB}, s2, 7
s_lshl_b32 s{sB}, s{sB}, 5
s_lshr_b32 s3, s2, 3
s_add_u32 s{sB}, s{sB}, s3
v_and_b32 v{vF}, 63, v0
v_lshlrev_b32 v{vF+1}, 4, v{vF}
v_add_u32 v{vF+1}, {CW}, v{vF+1}
v_mov_b32 v{vF+2}, {EPOCH}
ds_read_b64 v[{vF+4}:{vF+5}], v{vF+2}
""")
    for q in range(4 if HILO else 2):
        a(f"ds_read_b128 v[{vW+4*q}:{vW+4*q+3}], v{vF+1} offset:{q*1024}")
    for q in range(2):
        a(f"ds_read_b128 v[{vCG+4*q}:{vCG+4*q+3}], v{vF+1} offset:{CCG - CW + q*1024}")
    lane, tmp = vF, vF + 3
    a(f"""
s_mul_i32 s{sN0}, s{sB}, 625
s_add_u32 s{sNN}, s{sN0}, {625+15}
s_add_u32 s{sN0}, s{sN0}, 15
s_lshr_b32 s{sN0}, s{sN0}, 4
s_lshr_b32 s{sNN}, s{sNN}, 4
s_mov_b32 s{sK}, 0
s_mov_b32 s{sQ}, 0
s_mov_b32 s{sSPLIT}, 0
s_mov_b32 s{sEMASK}, {o.get('emask', 0x01ffffff):#x}
v_and_b32 v{tmp}, 31, v{lane}
v_lshlrev_b32 v{vXL}, 4, v{tmp}
v_lshlrev_b32 v{vAL}, 3, v{tmp}
v_add_u32 v{vAL}, {ACC}, v{vAL}
v_lshrrev_b32 v{vEH}, 5, v{lane}
v_mul_u32_u24 v{vCX}, {NP*4}, v{vEH}
v_mul_u32_u24 v{vCY}, {NP}, v{vEH}
v_lshlrev_b32 v{vEH}, 4, v{vEH}
v_bfe_u32 v{vCE}, v{lane}, 2, 1
v_mul_u32_u24 v{vCE}, {NP}, v{vCE}
v_bfe_u32 v{tmp}, v{lane}, 3, 2
v_lshl_add_u32 v{vCE}, v{tmp}, 2, v{vCE}
v_and_b32 v{tmp}, 3, v{lane}
v_add_lshl_u32 v{vCE}, v{vCE}, v{tmp}, 2
v_and_b32 v{tmp}, 1, v{lane}
v_lshl_add_u32 v{vCY}, v{tmp}, 3, v{vCY}
v_bfe_u32 v{tmp}, v{lane}, 2, 3
v_add_lshl_u32 v{vCY}, v{vCY}, v{tmp}, 3
s_waitcnt lgkmcnt(0)
v_readfirstlane_b32 s{sTAGH}, v{vF+4}
v_readfirstlane_b32 s{sTAGL}, v{vF+5}
s_branch L_round1
L_round:
""")
    slot_fills(0, T, vF)
    a(f"""
s_waitcnt lgkmcnt(0)
s_barrier
L_round1:
v_mov_b32 v{vONE}, 1
v_lshrrev_b32 v{vS3}, 4, v0
s_lshl_b32 s3, s{sB}, 3
v_lshl_add_u32 v{vF+8}, v{vS3}, 11, s3
""")
    for g in range(1, NG):
        a(f"v_add_u32 v{vF+8+g}, {g*NW*4*2048}, v{vF+8}")
    a(f"""
v_cmp_gt_u32 s[8:9], {NCH - (NG-1)*NW*4}, v{vS3}
s_mov_b32 s{sCNT}, 0
""")
    if o.get("sl0"):
        a(f"s_sleep {o['sl0']}")
    a("L_poll:")
    if o.get("sl1"):
        a(f"s_sleep {o['sl1']}")
    for g in range(NG):
        a(f"buffer_load_dwordx2 v[{vTB+2*g}:{vTB+2*g+1}], v{vF+8+g}, s[{S_TAB}:{S_TAB+3}], 0 offen sc1")
    a(f"""
s_add_u32 s{sCNT}, s{sCNT}, 1
s_cmp_ge_u32 s{sCNT}, {SPIN}
s_cbranch_scc1 L_end
""")
    for g in range(NG):
        a(f"""
s_waitcnt vmcnt({NG-1-g})
v_lshrrev_b32 v{vF}, 24, v{vTB+2*g}
v_xor_b32 v{vF}, s{sTAGL}, v{vF}
v_xor_b32 v{vF+1}, s{sTAGH}, v{vTB+2*g+1}
""")
        if g == 0:
            a(f"v_or_b32 v{vF+2}, v{vF}, v{vF+1}")
        elif g < NG - 1:
            a(f"v_or3_b32 v{vF+2}, v{vF}, v{vF+1}, v{vF+2}")
        else:
            a(f"v_or_b32 v{vF}, v{vF}, v{vF+1}\nv_cndmask_b32 v{vF}, 0, v{vF}, s[8:9]\nv_or_b32 v{vF+2}, v{vF}, v{vF+2}")
    a(f"""
v_cmp_ne_u32 vcc, 0, v{vF+2}
s_cbranch_vccnz L_poll
""")
    stamp("poll")
    a(f"""
v_and_b32 v{vS2}, 15, v0
s_lshl_b32 s{sT0}, s{sK}, 5
v_add_u32 v{vS2}, s{sT0}, v{vS2}
s_add_u32 s{sT1}, s{sT0}, 32
s_mov_b32 s{sMORE}, 0
v_add_u32 v{vF+5}, 16, v{vS2}
""")
    for g in range(NG):
        m0, m1 = sMASK + 4 * g, sMASK + 4 * g + 2
        a(f"""
v_add_u32 v{vF}, {g*NW*4}, v{vS3}
v_bfe_u32 v{vF+1}, v{vTB+2*g}, 12, 12
v_and_b32 v{vF+2}, 0xfff, v{vTB+2*g}
v_lshrrev_b32 v{vF+3}, 6, v{vF}
v_and_b32 v{vF+3}, s{sSPLIT}, v{vF+3}
v_cmp_eq_u32 vcc, s{sQ}, v{vF+3}
v_mul_u32_u24 v{vWC+g}, {CH}, v{vF}
v_add3_u32 v{vF+2}, v{vF+2}, v{vWC+g}, v{vS2}
v_cndmask_b32 v{vF+3}, 0, v{vF+1}, vcc
v_mul_u32_u24 v{vF+2}, {REC}, v{vF+2}
v_cmp_lt_u32 s[{m0}:{m0+1}], v{vS2}, v{vF+3}
v_cmp_lt_u32 s[{m1}:{m1+1}], v{vF+5}, v{vF+3}
v_cmp_lt_u32 vcc, s{sT1}, v{vF+1}
v_cndmask_b32 v{vTB+2*g}, -1, v{vF+2}, s[{m0}:{m0+1}]
buffer_load_dwordx{nst} v[{vEN+8*g}:{vEN+8*g+nst-1}], v{vTB+2*g}, s[{S_ENT}:{S_ENT+3}], 0 offen sc1
v_cndmask_b32 v{vTB+2*g+1}, -1, v{vF+2}, s[{m1}:{m1+1}]
s_cmp_lg_u64 vcc, 0
s_cselect_b32 s{sMORE}, 1, s{sMORE}
""")
    def second_loads(tag):
        for g in range(NG):
            a(f"""
s_cmp_eq_u64 s[{sMASK+4*g+2}:{sMASK+4*g+3}], 0
s_cbranch_scc1 L_no{tag}{g}
buffer_load_dwordx{nst} v[{vEN+8*g+4}:{vEN+8*g+3+nst}], v{vTB+2*g+1}, s[{S_ENT}:{S_ENT+3}], 0 offen offset:{16*REC} sc1
L_no{tag}{g}:
""")
    second_loads("ld")
    stamp("entiss")
    n3 = 0
    if o.get("pfc"):
        a("s_barrier")
        n3 = prefetch(o.get("pfc", ""), 0, T, vF + 8)
    a(f"""
s_cmp_eq_u32 s{sMORE}, 0
s_cbranch_scc1 L_nomore
v_mov_b32 v{vF}, {MISC+8}
ds_write_b32 v{vF}, v{vONE}
L_nomore:
s_mov_b32 s{sT0}, {MP}
s_brev_b32 s{sT1}, 1
v_mov_b32 v{vF+6}, {H2}
s_waitcnt vmcnt({n3})
""")
    stamp("ent0")
    if TAGREC:
        a(f"L_check:\ns_mov_b64 s[8:9], 0")
        for i in range(2 * NG):
            a(f"""
v_cmp_ne_u32 vcc, s{sTAGH}, v{vEN+4*i+3}
s_and_b64 vcc, vcc, s[{sMASK+2*i}:{sMASK+2*i+1}]
s_or_b64 s[8:9], s[8:9], vcc
""")
        a(f"""
s_cbranch_scc0 L_valid
s_add_u32 s{sCNT}, s{sCNT}, 1
s_cmp_ge_u32 s{sCNT}, {SPIN}
s_cbranch_scc1 L_end
""")
        for g in range(NG):
            a(f"buffer_load_dwordx{nst} v[{vEN+8*g}:{vEN+8*g+nst-1}], v{vTB+2*g}, s[{S_ENT}:{S_ENT+3}], 0 offen sc1")
        second_loads("re")
        a("s_waitcnt vmcnt(0)\ns_branch L_check\nL_valid:")
    stamp("ent")
    def for_parts(body, tag):
        for g in range(NG):
            for p in range(2):
                i = 2 * g + p
                a(f"s_mov_b64 exec, s[{sMASK+2*i}:{sMASK+2*i+1}]")
                if p:
                    a(f"s_cbranch_execz L_{tag}{g}")
                body(g, i, vEN + 4 * i)
                if p:
                    a(f"L_{tag}{g}:")
        a("s_mov_b64 exec, -1")
    def rank_body(g, i, e):
        a(f"v_bfe_u32 v{vF+1}, v{e+2}, 14, 6\nv_and_b32 v{vF}, 0x3fff, v{e+2}")
        if NPH > 1:
            a(f"""
v_mul_u32_u24 v{vF+2}, s{sT0}, v{vF}
v_lshrrev_b32 v{vF+2}, {SP}, v{vF+2}
v_mad_u32_u24 v{vF+2}, v{vF+2}, 40, v{vF+1}
v_lshl_add_u32 v{vKY+i}, v{vF+2}, 2, v{vF+6}
""")
        else:
            a(f"v_lshl_add_u32 v{vKY+i}, v{vF+1}, 2, v{vF+6}")
        a(f"""
ds_add_rtn_u32 v{vRK+i}, v{vKY+i}, v{vONE}
v_lshrrev_b32 v{e+3}, 20, v{e+2}
v_add_lshl_u32 v{e+3}, v{e+3}, v{vWC+g}, 5
v_lshl_or_b32 v{e+3}, v{vF+1}, 25, v{e+3}
""")
        if o.get("xmask"):
            a(f"v_and_b32 v{vF}, {o['xmask']:#x}, v{vF}")
        a(f"v_lshlrev_b32 v{e+2}, 9, v{vF}")
    for_parts(rank_body, "rk")
    a("s_waitcnt lgkmcnt(0)")
    stamp("rank")
    a("s_barrier")
    stamp("F2")
    prefetch(o.get("pfd", ""), 0, T, vF + 8)
    a(f"""
s_cmp_lg_u32 s{sWAVE}, 0
s_cbranch_scc1 L_noscan
v_lshl_add_u32 v{vF+9}, v0, 4, v{vF+6}
ds_read_b128 v[{vF}:{vF+3}], v{vF+9}
s_waitcnt lgkmcnt(0)
""")
    for j in range(4):
        a(f"v_add_lshl_u32 v{vF+j}, v{vF+j}, 1, 1\nv_and_b32 v{vF+j}, -4, v{vF+j}")
    a(f"""
v_add_u32 v{vF+5}, v{vF}, v{vF+1}
v_add_u32 v{vF+6}, v{vF+5}, v{vF+2}
v_add_u32 v{vF+7}, v{vF+6}, v{vF+3}
v_mov_b32 v{vF+8}, v{vF+7}
""")
    wave_scan(a, vF + 7)
    a(f"""
v_sub_u32 v{vF+4}, v{vF+7}, v{vF+8}
v_add_u32 v{vF+7}, v{vF+4}, v{vF+6}
v_add_u32 v{vF+6}, v{vF+4}, v{vF+5}
v_add_u32 v{vF+5}, v{vF+4}, v{vF}
ds_write_b128 v{vF+9}, v[{vF+4}:{vF+7}]
L_noscan:
s_movk_i32 s{sT0}, {NP*4 - 2}
""")
    def pre_body(g, i, e):
        a(f"""
v_add_u32 v{vF+10}, -1, v{vRK+i}
v_and_or_b32 v{e+3}, v{vF+10}, s{sT1}, v{e+3}
v_and_b32 v{vF+10}, 1, v{vRK+i}
v_lshlrev_b32 v{vRK+i}, 1, v{vRK+i}
v_mad_u32_u24 v{vRK+i}, v{vF+10}, s{sT0}, v{vRK+i}
""")
    for_parts(pre_body, "pr")
    a(f"""
v_mov_b32 v{vF}, {H2+1020}
s_waitcnt lgkmcnt(0)
""")
    stamp("scan")
    a("s_barrier")
    stamp("F3")
    a(f"""
ds_read_b32 v{vF+1}, v{vF}
ds_read_b32 v{vF+2}, v{vF} offset:12
""")
    for_parts(lambda g, i, e: a(f"ds_read_b32 v{vKY+i}, v{vKY+i}"), "st")
    a(f"""
s_waitcnt lgkmcnt(0)
v_readfirstlane_b32 s{sNBLK}, v{vF+1}
v_readfirstlane_b32 s{sMORE}, v{vF+2}
s_cmp_le_u32 s{sNBLK}, {CAP*2}
s_cbranch_scc1 L_fits
s_mov_b32 s{sSPLIT}, 3
s_barrier
s_branch L_round
L_fits:
""")
    stamp("fits")
    def scat_body(g, i, e):
        a(f"""
v_add_u32 v{vF}, v{vKY+i}, v{vRK+i}
v_lshlrev_b32 v{vF+3}, 1, v{vF}
ds_write_b32 v{vF}, v{e+2} offset:{XO}
ds_write_b32 v{vF}, v{e+3} offset:{EW}
ds_write_b64 v{vF+3}, v[{e}:{e+1}] offset:{YY}
""")
    for_parts(scat_body, "sc")
    a(f"""
v_mov_b32 v{vF+2}, {PAD_E | 0x80000000:#x}
s_add_u32 s{sNBLK}, s{sNBLK}, 63
s_lshr_b32 s{sNBLK}, s{sNBLK}, 6
ds_write_b32 v{vF+1}, v{vF+2} offset:{EW}
s_waitcnt lgkmcnt(0)
""")
    stamp("scat")
    a("s_barrier")
    stamp("sort")
    if STAMPS:
        a("s_memtime s[96:97]\ns_waitcnt lgkmcnt(0)")
    main_start = len(a.L)

    def rho(step):
        return 8 * (step // 4) + step % 4
    def block_reads(sreg):
        a(f"""
s_lshl_b32 s{sT0}, s{sreg}, 6
s_lshl_b32 s{sT1}, s{sreg}, 7
v_add_u32 v{vEWN}, s{sT0}, v{vCE}
v_add_u32 v{vY}, s{sT1}, v{vCY}
ds_read_b32 v{vEWN}, v{vEWN} offset:{EW}
ds_read_b64 v[{vY}:{vY+1}], v{vY} offset:{YY}
""")
    def xo_addr(sreg):
        a(f"s_lshl_b32 s{sT0}, s{sreg}, 6\nv_add_u32 v{vA0}, s{sT0}, v{vCX}")
    def quad_read(q, dst=None):
        dst = vXO if dst is None else dst
        a(f"ds_read_b128 v[{dst}:{dst+3}], v{vA0} offset:{XO + q*16}")
    def x_load(step, src=None):
        xo = (vXO if src is None else src) + step % 4
        d = vX + 4 * (step % 8)
        return [f"v_add_u32 v{xo}, v{xo}, v{vXL}",
                f"buffer_load_dwordx4 v[{d}:{d+3}], v{xo}, s[{S_X}:{S_X+3}], 0 offen"]
    def ef_issue():
        a(f"""
v_and_or_b32 v{vEF}, v{vEWN}, s{sEMASK}, v{vEH}
v_cmp_gt_i32 s[{sFMN}:{sFMN+1}], 0, v{vEWN}
buffer_load_dwordx4 v[{vEF}:{vEF+3}], v{vEF}, s[{S_EF}:{S_EF+3}], 0 offen {o.get('efmod', '')}
""")
    KT = [vU, vU + 4, vU + 16, vU + 20]
    def k_mfma():
        return [f"v_mfma_f32_4x4x4_16b_bf16 v[{KT[i]}:{KT[i]+3}], v[{vY}:{vY+1}], v[{vCG+2*i}:{vCG+2*i+1}], 0" for i in range(4)]
    def k_cvt(j):
        return [f"v_cvt_pk_bf16_f32 v{vK+2*j}, v{KT[0]+j}, v{KT[1]+j}",
                f"v_cvt_pk_bf16_f32 v{vK+2*j+1}, v{KT[2]+j}, v{KT[3]+j}"]
    def u_mfma():
        out = [f"v_mfma_f32_32x32x16_bf16 v[{vU+16*p}:{vU+16*p+15}], v[{vEF}:{vEF+3}], v[{vW+4*p}:{vW+4*p+3}], 0" for p in range(2)]
        if HILO:
            out += [f"v_mfma_f32_32x32x16_bf16 v[{vU+16*p}:{vU+16*p+15}], v[{vEF}:{vEF+3}], v[{vW+8+4*p}:{vW+8+4*p+3}], v[{vU+16*p}:{vU+16*p+15}]" for p in range(2)]
        return out
    def silu_ops(d):
        u = vU
        E = [f"v_exp_f32 v{vT+2*p+j}, -v{u+16*p+2*d+j}" for p in range(2) for j in range(2)]
        A = [f"v_pk_add_f32 v[{vT+2*p}:{vT+2*p+1}], v[{vT+2*p}:{vT+2*p+1}], 1.0 op_sel_hi:[1,0]" for p in range(2)]
        R = [f"v_rcp_f32 v{vT+2*p+j}, v{vT+2*p+j}" for p in range(2) for j in range(2)]
        M = [f"v_pk_mul_f32 v[{u+16*p+2*d}:{u+16*p+2*d+1}], v[{u+16*p+2*d}:{u+16*p+2*d+1}], v[{vT+2*p}:{vT+2*p+1}]" for p in range(2)]
        return E, A, R, M
    def fma_ops(step, first=False):
        d, j = divmod(step, 2)
        out = []
        for p in range(2):
            rr = vU + 16 * p + 2 * d
            for hh in range(2):
                t = vTP + 4 * p + 2 * hh
                c = vACC + 4 * p + 2 * hh
                if first:
                    out.append(f"v_pk_mul_f32 v[{c}:{c+1}], v[{t}:{t+1}], v[{rr}:{rr+1}] op_sel:[0,{j}] op_sel_hi:[1,{j}]")
                else:
                    out.append(f"v_pk_fma_f32 v[{c}:{c+1}], v[{t}:{t+1}], v[{rr}:{rr+1}], v[{c}:{c+1}] op_sel:[0,{j},0] op_sel_hi:[1,{j},1]")
        return out
    def tp_ops(step):
        out = []
        for p in range(2):
            t = vTP + 4 * p
            x = vX + 4 * (step % 8) + 2 * p
            k = vK + 2 * (step // 8)
            out.append(f"v_mfma_f32_4x4x4_16b_bf16 v[{t}:{t+3}], v[{k}:{k+1}], v[{x}:{x+1}], 0 cbsz:3 abid:{step%8}")
        return out
    def flush_body(step):
        a(f"""
v_readlane_b32 s{sT0}, v{vEWC}, {rho(step)}
v_cvt_f64_f32 v[{vTM}:{vTM+1}], v{vACC}
s_bfe_u32 s{sT0}, s{sT0}, 0x60019
s_mul_i32 s{sT0}, s{sT0}, {ACC_NODE}
v_add_u32 v{vQ}, s{sT0}, v{vAL}
""")
        for i in range(0, 8, 2):
            off = (i % 4) * ACC_ROW + (i // 4) * 256
            if i:
                a(f"v_cvt_f64_f32 v[{vTM}:{vTM+1}], v{vACC+i}")
            a(f"""
v_cvt_f64_f32 v[{vACC+i}:{vACC+i+1}], v{vACC+i+1}
ds_add_f64 v{vQ}, v[{vTM}:{vTM+1}] offset:{off}
ds_add_f64 v{vQ}, v[{vACC+i}:{vACC+i+1}] offset:{off + ACC_ROW}
""")

    a(f"""
s_cmp_ge_u32 s{sWAVE}, s{sNBLK}
s_cbranch_scc1 L_done
s_setprio 3
""")
    block_reads(sWAVE)
    xo_addr(sWAVE)
    quad_read(0)
    quad_read(1, vTP)
    a("s_waitcnt lgkmcnt(0)")
    ef_issue()
    for s in range(4):
        emit(x_load(s))
    for s in range(4, 8):
        emit(x_load(s, vTP))
    quad_read(2)
    emit(k_mfma())
    a("s_nop 4")
    emit(k_cvt(0) + k_cvt(1))
    a("s_waitcnt vmcnt(8) lgkmcnt(0)")
    emit(u_mfma())
    a("s_nop 7\ns_branch L_enter")

    E0 = 4
    def body(tail):
        tag = "t" if tail else ""
        for s in range(2 if tail else 0, 16):
            d, j = divmod(s, 2)
            M = tp_ops(s)
            TR, PK = [], []
            if d < 7:
                E, A, R, U = silu_ops(d + 1)
                TR, PK = (R, U) if j else (E, A)
            if not (tail and s == 2):
                if tail:
                    a(f"s_waitcnt vmcnt({min(7, 15 - s)})")
                else:
                    a(f"s_waitcnt vmcnt({8 if E0 < s < E0 + 8 else 7})")
                a(M[0])
                emit(TR[:1])
                a(M[1])
                if s in (9, 10) and not tail:
                    KM = k_mfma()[2 * (s - 9):2 * (s - 9) + 2]
                    a(TR[1]); a(KM[0]); a(TR[2]); a(KM[1]); a(TR[3])
                else:
                    emit(TR[1:])
                if s == 15 and not tail:
                    emit(k_cvt(1))
                if s == 12 and not tail:
                    emit(k_cvt(0))
                if (s % 4 == 0 or s == 2) and not (tail and s >= 8):
                    a(f"s_waitcnt lgkmcnt({8 if s == 0 else 0})")
                if s == 2:
                    a(f"""v_readfirstlane_b32 s{sNXT}, v{vEWN}
s_add_u32 s{sNXT}, s{sNXT}, {NW}
s_cmp_ge_u32 s{sNXT}, s{sNBLK}
s_cbranch_scc1 L_tail""")
                    block_reads(sNXT)
            if s == E0 and not tail:
                ef_issue()
                xo_addr(sNXT)
            if not (tail and s >= 8):
                emit(x_load(s))
            if s % 4 == 3 and not (tail and s > 3):
                quad_read((s // 4 + 3) & 3)
            if s == 0:
                a(f"""
v_mov_b32 v{vEWN}, {MISC}
v_mov_b32 v{vY}, 1
s_mov_b64 exec, 1
ds_add_rtn_u32 v{vEWN}, v{vEWN}, v{vY}
s_mov_b64 exec, -1
""")
                emit(fma_ops(0, True))
            else:
                if s >= 14:
                    a("s_nop 1" if tail else "s_nop 0" if s == 14 else "")
                a(f"s_bitcmp1_b32 s{sFM}, {rho(s)}\ns_cbranch_scc1 L_fl{tag}{s}")
                emit(fma_ops(s))
                a(f"L_fr{tag}{s}:")
            emit(PK)
    def stubs(tail):
        tag = "t" if tail else ""
        for s in range(2 if tail else 1, 16):
            a(f"L_fl{tag}{s}:")
            flush_body(s - 1)
            emit(fma_ops(s, True))
            a(f"s_branch L_fr{tag}{s}")
    a("L_block:")
    body(False)
    emit(u_mfma())
    flush_body(15)
    a(f"s_lshl_b32 s{sT0}, s{sNXT}, 2")
    for lvl in (2, 1, 0):
        a(f"s_sub_u32 s{sT0}, s{sT0}, s{sNBLK}\ns_cbranch_scc1 L_enter\ns_setprio {lvl}")
    a(f"""
L_enter:
v_mov_b32 v{vEWC}, v{vEWN}
s_mov_b32 s{sFM}, s{sFMN}
""")
    E, A, R, U = silu_ops(0)
    emit(E)
    a("s_nop 0")
    emit(A + R)
    a("s_nop 0")
    emit(U)
    a("s_branch L_block")
    stubs(False)
    stubs(True)
    a("L_tail:")
    body(True)
    flush_body(15)
    if o.get("drop"):
        import re
        pat = re.compile(o["drop"].replace(" ", "|"))
        a.L[main_start:] = [l for l in a.L[main_start:] if not pat.search(l)]

    vB = base
    vEA = vB + 32
    vPA = vEA + 32
    vD = vPA + 8
    assert vD + 16 <= vPF
    a(f"""
L_done:
s_setprio 0
s_waitcnt vmcnt(0) lgkmcnt(0)
s_cmp_eq_u32 s{sQ}, s{sSPLIT}
s_cbranch_scc1 L_lastq
s_add_u32 s{sQ}, s{sQ}, 1
s_barrier
s_branch L_round
L_lastq:
s_cmp_eq_u32 s{sMORE}, 0
s_cbranch_scc1 L_epi
s_add_u32 s{sK}, s{sK}, 1
s_mov_b32 s{sQ}, 0
s_mov_b32 s{sSPLIT}, 0
s_barrier
s_branch L_round
L_epi:
v_and_b32 v4, 63, v0
v_lshrrev_b32 v2, 4, v4
v_bfe_u32 v3, v4, 2, 2
v_lshl_add_u32 v2, v2, 3, v3
v_mul_u32_u24 v2, {2*MIXROW}, v2
v_and_b32 v3, 3, v4
v_lshl_add_u32 v2, v3, 3, v2
v_add_u32 v2, {CMIX}, v2
""")
    for t in range(4):
        for ks in range(2):
            for q in range(2):
                d = vB + 8 * t + 4 * ks + 2 * q
                a(f"ds_read_b64_tr_b16 v[{d}:{d+1}], v2 offset:{(8*q + ks)*MIXROW + (t&1)*64 + (t>>1)*32}")
    a(f"""
v_and_b32 v5, 15, v4
v_mul_u32_u24 v2, {ACC_ROW}, v5
v_lshrrev_b32 v3, 4, v4
v_lshl_add_u32 v2, v3, 6, v2
s_mul_i32 s{sT0}, s{sWAVE}, {4*ACC_NODE}
s_add_u32 s{sT0}, s{sT0}, {ACC}
v_add_u32 v2, s{sT0}, v2
s_lshl_b32 s{sT0}, s{sWAVE}, 2
s_add_u32 s{sT0}, s{sT0}, s{sN0}
v_add_u32 v3, s{sT0}, v3
v_cmp_gt_u32 vcc, s{sNN}, v3
v_lshlrev_b32 v3, 9, v3
v_lshl_add_u32 v3, v5, 4, v3
s_mov_b32 s{sT0}, {LN2:#x}
s_barrier
""")
    stamp("main")
    if STAMPS:
        a("s_memtime s[98:99]")
    a(f"""
s_cmp_ge_u32 s{sWAVE}, 10
s_cbranch_scc1 L_end
""")
    for ks in range(2):
        for hh in range(4):
            a(f"ds_read_b128 v[{vEA+16*ks+4*hh}:{vEA+16*ks+4*hh+3}], v2 offset:{ks*256+hh*16}")
    a("s_waitcnt lgkmcnt(0)")
    for j in range(16):
        a(f"v_cvt_f32_f64 v{vEA+j}, v[{vEA+2*j}:{vEA+2*j+1}]")
    for j in range(16):
        a(f"v_mul_f32 v{vEA+j}, s{sT0}, v{vEA+j}")
    for j in range(8):
        a(f"v_cvt_pk_bf16_f32 v{vPA+j}, v{vEA+2*j}, v{vEA+2*j+1}")
    a("s_nop 1")
    for ks in range(2):
        for t in range(4):
            c = "0" if ks == 0 else f"v[{vD+4*t}:{vD+4*t+3}]"
            a(f"v_mfma_f32_16x16x32_bf16 v[{vD+4*t}:{vD+4*t+3}], v[{vPA+4*ks}:{vPA+4*ks+3}], v[{vB+8*t+4*ks}:{vB+8*t+4*ks+3}], {c}")
    a("s_nop 7")
    for j in range(8):
        a(f"v_cvt_pk_bf16_f32 v{vEA+j}, v{vD+2*j}, v{vD+2*j+1}")
    a(f"""
s_and_b64 exec, exec, vcc
s_cbranch_execz L_end
buffer_store_dwordx4 v[{vEA}:{vEA+3}], v3, s[{S_OUT}:{S_OUT+3}], 0 offen sc1
buffer_store_dwordx4 v[{vEA+4}:{vEA+7}], v3, s[{S_OUT}:{S_OUT+3}], 0 offen offset:256 sc1
""")
    if STAMPS:
        a("s_waitcnt vmcnt(0)")
        stamp("end")
        a("s_waitcnt lgkmcnt(0)")
        srd(a, 56, 10, 0x20000, WS_STAMP)
        a("s_mov_b64 exec, -1\nv_cmp_eq_u32 vcc, " + str(64 * o.get('stw', 0)) + ", v0\ns_and_b64 exec, exec, vcc\ns_cbranch_execz L_end")
        a("s_lshl_b32 s3, s2, 7\nv_mov_b32 v4, s3")
        for i in range(12):
            a(f"v_mov_b32 v2, s{76+2*i}\nv_mov_b32 v3, s{77+2*i}\nbuffer_store_dwordx2 v[2:3], v4, s[56:59], 0 offen offset:{8*i}")
    a("L_end:\ns_endpgm")

    out = HEADER
    out += f"; @launch grid=({NB},1,1) block=({T},1,1) lds={LDS}\n"
    out += '.amdgcn_target "amdgcn-amd-amdhsa--gfx950"\n.text\n'
    out += f".globl {K}\n.p2align 8\n.type {K},@function\n{a.text()}"
    out += '.section .rodata,"a"\n.p2align 6\n' + descriptor(K, n_vgpr, n_sgpr)
    return out, dict(vgpr=n_vgpr, sgpr=n_sgpr, lds=LDS)

if __name__ == "__main__":
    o = {}
    path = "cdna_kernels/" + NAME + ".s"
    for arg in sys.argv[1:]:
        k, v = arg.split("=", 1)
        if k == "out":
            path = v
        else:
            o[k] = int(v) if v.lstrip("-").isdigit() else v.replace("+", " ")
    txt, info = gen(o)
    open(path, "w").write(txt)
    print(path, info)
```

```python
import sys, math

NAME = "standalone__tensor_product_equiv_tfn__graph"
N_NODES, N_EDGES = 10000, 640000
CH = 2560
NCH = 250
NB = 256
REC = 12
WS_ENT = 0
WS_TAB = 0x800000
WS_CONST = 0x900000
C_W, C_CG, C_MIX = 0, 4096, 6144
LOG2E = 0x3FB8AA3B
LN2 = 0x3F317218

def magic(mul, div, lim):
    for S in range(8, 32):
        M = -(-(mul << S) // div)
        if M >= 1 << 24 or (lim - 1) * M >= 1 << 32:
            continue
        if all((x * M) >> S == x * mul // div for x in range(lim)):
            return M, S
    raise ValueError

class Asm:
    def __init__(self):
        self.L = []
    def __call__(self, s):
        for line in s.split("\n"):
            line = line.strip()
            if line:
                self.L.append(line if line.endswith(":") else "    " + line)
    def text(self):
        return "\n".join(self.L) + "\n"

def srd(a, d, base, nbytes, off=0):
    if off:
        a(f"s_add_u32 s{d}, s{base}, {off:#x}\ns_addc_u32 s{d+1}, s{base+1}, 0")
    else:
        a(f"s_mov_b32 s{d}, s{base}\ns_mov_b32 s{d+1}, s{base+1}")
    a(f"s_mov_b32 s{d+2}, {nbytes}\ns_mov_b32 s{d+3}, 0x20000")

def wave_scan(a, v):
    for ctl in ("row_shr:1", "row_shr:2", "row_shr:4", "row_shr:8",
                "row_bcast:15 row_mask:0xa", "row_bcast:31 row_mask:0xc"):
        a(f"s_nop 1\nv_add_u32_dpp v{v}, v{v}, v{v} {ctl}")

def descriptor(name, vgpr, sgpr):
    acc = (vgpr + 3) // 4 * 4
    return f""".amdhsa_kernel {name}
  .amdhsa_next_free_vgpr {vgpr}
  .amdhsa_next_free_sgpr {sgpr}
  .amdhsa_accum_offset {acc}
  .amdhsa_group_segment_fixed_size 0
  .amdhsa_kernarg_size 88
  .amdhsa_user_sgpr_count 2
  .amdhsa_user_sgpr_kernarg_segment_ptr 1
  .amdhsa_system_sgpr_workgroup_id_x 1
  .amdhsa_float_denorm_mode_32 3
.end_amdhsa_kernel
"""

WS_STAMP = 0xA00000
def stamp(a, o, idx):
    if o.get("stamps"):
        a(f"s_memrealtime s[{84+2*idx}:{85+2*idx}]")
def stamp_out(a, o, kern, n, tag):
    if not o.get("stamps"):
        return
    a(f"s_waitcnt vmcnt(0) lgkmcnt(0)")
    a(f"s_load_dwordx2 s[80:81], s[0:1], 80\ns_waitcnt lgkmcnt(0)")
    srd(a, 76, 80, 0x10000, WS_STAMP + kern * 0x10000)
    a(f"s_mov_b64 exec, -1\nv_cmp_eq_u32 vcc, 0, v0\ns_and_b64 exec, exec, vcc\ns_cbranch_execz L_st{tag}")
    a(f"s_lshl_b32 s82, s2, 6\nv_mov_b32 v4, s82")
    for i in range(n):
        a(f"v_mov_b32 v2, s{84+2*i}\nv_mov_b32 v3, s{85+2*i}\nbuffer_store_dwordx2 v[2:3], v4, s[76:79], 0 offen offset:{8*i}")
    a(f"L_st{tag}:")

K1_T = 640
K1_HIST, K1_STG = 0, 1024
K1_LDS = K1_STG + CH * REC

def k1_prefetch(a, o):
    n = 0
    kinds = o.get("pf1", "").split()
    if kinds:
        a("s_load_dwordx2 s[40:41], s[0:1], 0\ns_load_dwordx2 s[44:45], s[0:1], 32\ns_waitcnt lgkmcnt(0)")
        a(f"s_mov_b32 s42, {N_NODES*512}\ns_mov_b32 s43, 0x20000\ns_mov_b32 s46, {N_EDGES*32}\ns_mov_b32 s47, 0x20000")
    for kind in kinds:
        lo, hi = (int(v) for v in kind[1:].split("-"))
        total = (N_EDGES * 32 if kind[0] == "e" else N_NODES * 512) // 128
        l0, l1 = total * lo // 16, total * hi // 16
        nshare = 256 if kind[0] == "e" else 32
        per = -(-(l1 - l0) // nshare)
        a("s_lshr_b32 s38, s2, 3" if kind[0] == "x" else "s_mov_b32 s38, s2")
        a(f"s_mul_i32 s38, s38, {per}\ns_add_u32 s38, s38, {l0}")
        for k in range(-(-per // K1_T)):
            sr = 44 if kind[0] == "e" else 40
            a(f"""v_add_u32 v50, {k*K1_T}, v0
v_cmp_gt_u32 vcc, {per}, v50
v_add_lshl_u32 v50, v50, s38, 7
s_nop 0
v_cndmask_b32 v50, -1, v50, vcc
buffer_load_dword v51, v50, s[{sr}:{sr+3}], 0 offen""")
            n += 1
    return n

def gen_k1(o):
    a = Asm()
    ld = o.get("k1ld", "")
    st = o.get("k1st", "sc1")
    MB, SB = magic(NB, N_NODES, N_NODES)
    a(f"""
part_kernel:
s_cmp_ge_u32 s2, {NCH}
s_cbranch_scc1 L1_other
""")
    stamp(a, o, 0)
    a(f"""
s_load_dwordx4 s[4:7], s[0:1], 8
s_load_dwordx2 s[8:9], s[0:1], 24
s_load_dwordx2 s[10:11], s[0:1], 80
v_lshlrev_b32 v1, 4, v0
v_lshlrev_b32 v2, 5, v0
v_lshlrev_b32 v3, 2, v0
v_mov_b32 v20, 0
s_mul_i32 s3, s2, {CH*4}
s_mul_i32 s33, s2, {CH*8}
s_waitcnt lgkmcnt(0)
""")
    srd(a, 16, 6, N_EDGES * 4)
    a(f"buffer_load_dwordx4 v[4:7], v1, s[16:19], s3 offen {ld}")
    srd(a, 12, 4, N_EDGES * 4)
    a(f"buffer_load_dwordx4 v[8:11], v1, s[12:15], s3 offen {ld}")
    srd(a, 20, 8, N_EDGES * 8)
    a(f"buffer_load_dwordx4 v[12:15], v2, s[20:23], s33 offen {ld}")
    a(f"buffer_load_dwordx4 v[16:19], v2, s[20:23], s33 offen offset:16 {ld}")
    srd(a, 24, 10, NCH * CH * REC, WS_ENT)
    srd(a, 28, 10, NCH * NB * 4, WS_TAB)
    a(f"""
v_cmp_gt_u32 vcc, {NB}, v0
s_and_saveexec_b64 s[34:35], vcc
ds_write_b32 v3, v20 offset:{K1_HIST}
s_mov_b64 exec, s[34:35]
s_mov_b32 s36, {MB}
s_movk_i32 s37, 625
v_mov_b32 v21, 1
s_waitcnt lgkmcnt(0)
s_barrier
""")
    n_pf = k1_prefetch(a, o)
    a(f"s_waitcnt vmcnt({3 + n_pf})")
    stamp(a, o, 1)
    for k in range(4):
        a(f"""
v_mul_u32_u24 v{24+k}, s36, v{4+k}
v_lshrrev_b32 v{24+k}, {SB}, v{24+k}
v_lshlrev_b32 v{28+k}, 2, v{24+k}
ds_add_rtn_u32 v{32+k}, v{28+k}, v21 offset:{K1_HIST}
""")
    for k in range(4):
        a(f"""
v_mad_u32_u24 v{24+k}, v{24+k}, s37, 15
v_lshrrev_b32 v{24+k}, 4, v{24+k}
v_sub_u32 v{24+k}, v{4+k}, v{24+k}
v_add_u32 v{36+k}, {k}, v3
v_lshlrev_b32 v{36+k}, 20, v{36+k}
v_lshl_or_b32 v{36+k}, v{24+k}, 14, v{36+k}
""")
    a(f"s_waitcnt vmcnt({2 + n_pf})")
    for k in range(4):
        a(f"v_or_b32 v{36+k}, v{36+k}, v{8+k}")
    a(f"""
s_waitcnt lgkmcnt(0)
s_barrier
v_cmp_gt_u32 vcc, 64, v0
s_cbranch_vccz L1_noscan
ds_read_b128 v[40:43], v1 offset:{K1_HIST}
s_waitcnt lgkmcnt(0)
v_add_u32 v45, v40, v41
v_add_u32 v46, v45, v42
v_add_u32 v47, v46, v43
v_mov_b32 v48, v47
""")
    wave_scan(a, 47)
    a(f"""
v_sub_u32 v44, v47, v48
v_add_u32 v47, v44, v46
v_add_u32 v46, v44, v45
v_add_u32 v45, v44, v40
ds_write_b128 v1, v[44:47] offset:{K1_HIST}
v_lshl_or_b32 v40, v40, 16, v44
v_lshl_or_b32 v41, v41, 16, v45
v_lshl_or_b32 v42, v42, 16, v46
v_lshl_or_b32 v43, v43, 16, v47
s_waitcnt lgkmcnt(0)
L1_noscan:
s_barrier
""")
    for k in range(4):
        a(f"ds_read_b32 v{24+k}, v{28+k} offset:{K1_HIST}")
    for k in range(4):
        a(f"""
s_waitcnt lgkmcnt({3-k})
v_add_u32 v{24+k}, v{24+k}, v{32+k}
v_mul_u32_u24 v{24+k}, {REC}, v{24+k}
""")
    a(f"s_waitcnt vmcnt({n_pf})")
    stamp(a, o, 2)
    for k in range(4):
        a(f"""
v_add_u32 v{24+k}, {K1_STG}, v{24+k}
ds_write2_b32 v{24+k}, v{12+2*k}, v{13+2*k} offset0:0 offset1:1
ds_write_b32 v{24+k}, v{36+k} offset:8
""")
    a(f"""
v_cmp_gt_u32 vcc, 64, v0
s_cbranch_vccz L1_notab
s_lshl_b32 s3, s2, 10
buffer_store_dwordx4 v[40:43], v1, s[28:31], s3 offen {st}
L1_notab:
s_mul_i32 s3, s2, {CH*REC}
s_waitcnt lgkmcnt(0)
s_barrier
""")
    for k in range(3):
        a(f"ds_read_b128 v[{4+4*k}:{7+4*k}], v1 offset:{K1_STG + k*K1_T*16}")
    for k in range(3):
        a(f"""
s_waitcnt lgkmcnt({2-k})
buffer_store_dwordx4 v[{4+4*k}:{7+4*k}], v1, s[24:27], s3 offen {st}
s_add_u32 s3, s3, {K1_T*16}
""")
    if o.get("stamps"):
        a("s_waitcnt vmcnt(0)")
    stamp(a, o, 3)
    stamp_out(a, o, 0, 4, "a")
    a("s_endpgm")
    a(f"""
L1_other:
s_cmp_ge_u32 s2, {NB}
s_cbranch_scc1 L1_end
""")
    k1_prefetch(a, o)
    a(f"""
s_cmp_lg_u32 s2, {NCH}
s_cbranch_scc1 L1_end
s_load_dwordx4 s[4:7], s[0:1], 40
s_load_dwordx2 s[8:9], s[0:1], 56
s_load_dwordx2 s[10:11], s[0:1], 80
v_and_b32 v1, 63, v0
v_lshrrev_b32 v2, 6, v0
s_nop 0
v_readfirstlane_b32 s3, v2
v_lshlrev_b32 v5, 4, v1
s_waitcnt lgkmcnt(0)
""")
    srd(a, 12, 4, 16 * 64 * 2)
    srd(a, 16, 6, 64 * 2)
    srd(a, 20, 8, 64 * 64 * 2)
    srd(a, 24, 10, 16384, WS_CONST)
    a(f"""
s_cmp_eq_u32 s3, 8
s_cbranch_scc1 L1_prep_w
s_cmp_eq_u32 s3, 9
s_cbranch_scc1 L1_prep_cg
""")
    a(f"""
s_and_b32 s28, s3, 1
s_lshl_b32 s28, s28, 7
s_bfe_u32 s29, s3, 0x10001
s_lshl_b32 s29, s29, 1
s_add_u32 s28, s28, s29
s_lshr_b32 s29, s3, 2
s_lshl_b32 s29, s29, 6
s_add_u32 s28, s28, s29
v_lshrrev_b32 v3, 4, v1
v_lshlrev_b32 v3, 11, v3
v_and_b32 v4, 15, v1
v_lshl_add_u32 v3, v4, 2, v3
""")
    for i in range(8):
        a(f"buffer_load_ushort v{16+i}, v3, s[20:23], s28 offen offset:{i*256}")
    a(f"""
s_lshl_b32 s28, s3, 10
s_add_u32 s28, s28, {C_MIX}
s_waitcnt vmcnt(0)
""")
    for j in range(4):
        a(f"v_lshl_or_b32 v{8+j}, v{17+2*j}, 16, v{16+2*j}")
    a(f"""
buffer_store_dwordx4 v[8:11], v5, s[24:27], s28 offen
s_endpgm
L1_prep_w:
v_lshrrev_b32 v3, 5, v1
v_lshlrev_b32 v3, 10, v3
v_and_b32 v4, 31, v1
v_lshl_add_u32 v3, v4, 2, v3
""")
    for i in range(8):
        a(f"buffer_load_dword v{8+i}, v3, s[12:15], 0 offen offset:{i*128}")
    a(f"s_mov_b32 s28, {LOG2E:#x}\ns_waitcnt vmcnt(0)")
    for i in range(8):
        a(f"""
v_lshlrev_b32 v{16+i}, 16, v{8+i}
v_and_b32 v{24+i}, 0xffff0000, v{8+i}
v_mul_f32 v{16+i}, s28, v{16+i}
v_mul_f32 v{24+i}, s28, v{24+i}
""")
    for j in range(8):
        a(f"v_cvt_pk_bf16_f32 v{32+j}, v{16+2*j}, v{17+2*j}")
    for j in range(8):
        a(f"""
v_lshlrev_b32 v6, 16, v{32+j}
v_and_b32 v7, 0xffff0000, v{32+j}
v_sub_f32 v{16+2*j}, v{16+2*j}, v6
v_sub_f32 v{17+2*j}, v{17+2*j}, v7
v_cvt_pk_bf16_f32 v{40+j}, v{16+2*j}, v{17+2*j}
""")
    for q in range(4):
        a(f"buffer_store_dwordx4 v[{32+4*q}:{35+4*q}], v5, s[24:27], 0 offen offset:{C_W + q*1024}")
    a(f"""
s_endpgm
L1_prep_cg:
v_and_b32 v3, 3, v1
v_lshlrev_b32 v3, 1, v3
""")
    for j in range(16):
        a(f"buffer_load_ushort v{16+j}, v3, s[16:19], 0 offen offset:{j*8}")
    a(f"s_movk_i32 s28, {C_CG}\ns_waitcnt vmcnt(0)")
    for j in range(8):
        a(f"v_lshl_or_b32 v{8+j}, v{17+2*j}, 16, v{16+2*j}")
    a(f"""
buffer_store_dwordx4 v[8:11], v5, s[24:27], s28 offen
buffer_store_dwordx4 v[12:15], v5, s[24:27], s28 offen offset:1024
L1_end:
s_endpgm
""")
    return a.text(), 52, (100 if o.get('stamps') else 48)

ACC_ROW = 528
ACC_NODE = 4 * ACC_ROW
PAD_X = 0x7FFF0000
PAD_E = 0x01FFFFE0

def k2_layout(o):
    cap = o.get("cap", 3072)
    slots = cap + 32
    L = {}
    L["cap"] = cap
    L["XO"] = 0
    L["EW"] = slots * 4
    L["YY"] = slots * 8
    L["ACC"] = slots * 16
    L["HIST"] = L["ACC"] + 40 * ACC_NODE
    L["MISC"] = L["HIST"] + 1024
    L["size"] = L["MISC"] + 64
    return L

def gen_k2(o):
    a = Asm()
    NW = o.get("nw", 16)
    T = NW * 64
    NG = -(-63 // NW)
    NPH = o.get("nph", 2)
    HILO = o.get("hilo", 0)
    efmod = o.get("efmod", "")
    L = k2_layout(o)
    CAP = L["cap"]
    slots = CAP + 32
    MP, SP = magic(NPH, N_NODES, N_NODES) if NPH > 1 else (0, 0)
    SLIDE = o.get("slide", 0)
    if SLIDE:
        MP = SLIDE * 65536 // (10 * N_NODES)
        assert ((N_NODES - 1) * MP + 40 * 1638) >> 16 <= 5
    NC = o.get("nc", NW)

    S_X, S_EF, S_ENT, S_TAB, S_CON, S_OUT = 12, 16, 20, 24, 28, 32
    sB, sN0, sNN, sWAVE, sK, sQ, sSPLIT, sNBLK = 36, 37, 38, 39, 40, 41, 42, 43
    sFMN, sNXT, sFM, sT0, sT1, sEMASK = 44, 46, 47, 48, 49, 50
    sMORE, sFIRST = 51, 4
    sMASK = 52
    n_sgpr = sMASK + 4 * NG

    vXL, vW, vCG = 1, 2, 2 + (16 if HILO else 8)
    r = vCG + 8
    vAL = r; vCX = r + 1; vCE = r + 2; vCY = r + 3; vEH = r + 4; vA0 = r + 5
    r += 6
    base = r
    vU = r; r += 32
    vX = r; r += 32
    vXO = r; r += 4
    vTP = r; r += 8
    vACC = r; r += 8
    vK = r; r += 4
    vEF = r; r += 4
    vT = r; r += 4
    vY = r; r += 2
    vTM = r; r += 2
    vEWC = r; vEWN = r + 1; vQ = r + 2; r += 3
    n_main = r
    r = base
    vTB = r; r += NG
    r += r & 1
    vEN = r; r += 4 * 2 * NG
    vRK = r; r += 2 * NG
    vKY = r; r += 2 * NG
    vF = r + (r & 1); r = vF + 16
    vLANE = r; vONE = r + 1; vS2 = r + 2; vS3 = r + 3; vCI = r + 4; r += 5
    vPF = max(n_main, r)
    n_vgpr = vPF + 1

    a(f"""
msg_kernel:
s_cmp_ge_u32 s2, {NB}
s_cbranch_scc1 L2_end
""")
    stamp(a, o, 0)
    a(f"""
s_load_dwordx2 s[4:5], s[0:1], 0
s_load_dwordx2 s[6:7], s[0:1], 32
s_load_dwordx2 s[8:9], s[0:1], 64
s_load_dwordx2 s[10:11], s[0:1], 80
s_and_b32 s{sB}, s2, 7
s_lshl_b32 s{sB}, s{sB}, 5
s_lshr_b32 s3, s2, 3
s_add_u32 s{sB}, s{sB}, s3
v_and_b32 v{vLANE}, 63, v0
v_lshrrev_b32 v{vS2}, 6, v0
s_nop 0
v_readfirstlane_b32 s{sWAVE}, v{vS2}
s_waitcnt lgkmcnt(0)
""")
    srd(a, S_TAB, 10, NCH * NB * 4, WS_TAB)
    def table_loads():
        a(f"v_lshrrev_b32 v{vS3}, 4, v0\ns_lshl_b32 s3, s{sB}, 2\nv_lshl_add_u32 v{vS3}, v{vS3}, 10, s3")
        for g in range(NG):
            a(f"buffer_load_dword v{vTB+g}, v{vS3}, s[{S_TAB}:{S_TAB+3}], 0 offen")
            if g + 1 < NG:
                a(f"v_add_u32 v{vS3}, {NW*4*1024}, v{vS3}")
    def lds_fill(start, nbytes, val):
        a(f"v_lshlrev_b32 v{vF+4}, 4, v0")
        for j in range(4):
            a(f"v_mov_b32 v{vF+j}, {val:#x}")
        n = nbytes // 16
        assert nbytes % 16 == 0
        if start >= 49152:
            a(f"v_add_u32 v{vF+4}, {start}, v{vF+4}")
            start = 0
        k = 0
        while k * T < n:
            rem = n - k * T
            if rem < T:
                a(f"v_cmp_gt_u32 vcc, {rem}, v0\ns_and_saveexec_b64 s[{sT0}:{sT1}], vcc")
            if start + k * T * 16 >= 65536:
                a(f"v_add_u32 v{vF+4}, {start + k*T*16}, v{vF+4}")
                start = -k * T * 16
            a(f"ds_write_b128 v{vF+4}, v[{vF}:{vF+3}] offset:{start + k*T*16}")
            if rem < T:
                a(f"s_mov_b64 exec, s[{sT0}:{sT1}]")
            k += 1
    table_loads()
    srd(a, S_ENT, 10, NCH * CH * REC, WS_ENT)
    srd(a, S_CON, 10, 16384, WS_CONST)
    srd(a, S_X, 4, 0 if o.get('nox') else N_NODES * 512)
    srd(a, S_EF, 6, 0 if o.get('noef') else N_EDGES * 32)
    srd(a, S_OUT, 8, N_NODES * 512)
    a(f"""
s_mul_i32 s{sN0}, s{sB}, 625
s_add_u32 s{sNN}, s{sN0}, {625+15}
s_add_u32 s{sN0}, s{sN0}, 15
s_lshr_b32 s{sN0}, s{sN0}, 4
s_lshr_b32 s{sNN}, s{sNN}, 4
s_mov_b32 s{sK}, 0
s_mov_b32 s{sQ}, 0
s_mov_b32 s{sSPLIT}, 0
s_mov_b32 s{sFIRST}, 1
s_mov_b32 s{sEMASK}, {o.get('emask', 0x01ffffff):#x}
v_and_b32 v{vS2}, 31, v{vLANE}
v_lshlrev_b32 v{vXL}, 4, v{vS2}
v_lshlrev_b32 v{vAL}, 3, v{vS2}
v_add_u32 v{vAL}, {L['ACC']}, v{vAL}
v_lshrrev_b32 v{vEH}, 5, v{vLANE}
v_lshlrev_b32 v{vCX}, 6, v{vEH}
v_lshlrev_b32 v{vCY}, 4, v{vEH}
v_lshlrev_b32 v{vEH}, 4, v{vEH}
v_bfe_u32 v{vCE}, v{vLANE}, 2, 1
v_lshlrev_b32 v{vCE}, 4, v{vCE}
v_bfe_u32 v{vCI}, v{vLANE}, 3, 2
v_lshl_add_u32 v{vCE}, v{vCI}, 2, v{vCE}
v_and_b32 v{vCI}, 3, v{vLANE}
v_add_u32 v{vCE}, v{vCE}, v{vCI}
v_lshlrev_b32 v{vCE}, 2, v{vCE}
v_and_b32 v{vCI}, 1, v{vLANE}
v_lshl_add_u32 v{vCY}, v{vCI}, 3, v{vCY}
v_bfe_u32 v{vCI}, v{vLANE}, 2, 3
v_add_u32 v{vCY}, v{vCY}, v{vCI}
v_lshlrev_b32 v{vCY}, 3, v{vCY}
s_branch L2_round1
L2_round:
""")
    table_loads()
    a(f"L2_round1:\nv_mov_b32 v{vONE}, 1")
    lds_fill(L["HIST"], 1024 + 64, 0)
    lds_fill(L["YY"], slots * 8, 0)
    lds_fill(L["XO"], slots * 4, PAD_X)
    lds_fill(L["EW"], slots * 4, PAD_E)
    a(f"""
v_and_b32 v{vS2}, 15, v0
s_lshl_b32 s{sT0}, s{sK}, 5
v_add_u32 v{vS2}, s{sT0}, v{vS2}
v_lshrrev_b32 v{vS3}, 4, v0
s_mov_b32 s{sMORE}, 0
""")
    for g in range(NG):
        a(f"""
s_waitcnt vmcnt({NG-1})
v_add_u32 v{vF}, {g*NW*4}, v{vS3}
v_lshrrev_b32 v{vF+1}, 16, v{vTB+g}
v_and_b32 v{vF+2}, 0xffff, v{vTB+g}
s_add_u32 s{sT1}, s{sT0}, 32
v_cmp_lt_u32 vcc, s{sT1}, v{vF+1}
s_cmp_lg_u64 vcc, 0
s_cselect_b32 s{sMORE}, 1, s{sMORE}
v_lshrrev_b32 v{vF+3}, 6, v{vF}
v_and_b32 v{vF+3}, s{sSPLIT}, v{vF+3}
v_cmp_eq_u32 vcc, s{sQ}, v{vF+3}
v_mul_u32_u24 v{vTB+g}, {CH}, v{vF}
v_add3_u32 v{vF+2}, v{vF+2}, v{vTB+g}, v{vS2}
v_cndmask_b32 v{vF+1}, 0, v{vF+1}, vcc
v_mul_u32_u24 v{vF+2}, {REC}, v{vF+2}
v_cmp_lt_u32 s[{sMASK+4*g}:{sMASK+4*g+1}], v{vS2}, v{vF+1}
v_add_u32 v{vF+3}, 16, v{vS2}
v_cmp_lt_u32 s[{sMASK+4*g+2}:{sMASK+4*g+3}], v{vF+3}, v{vF+1}
v_cndmask_b32 v{vF+4}, -1, v{vF+2}, s[{sMASK+4*g}:{sMASK+4*g+1}]
buffer_load_dwordx3 v[{vEN+8*g}:{vEN+8*g+2}], v{vF+4}, s[{S_ENT}:{S_ENT+3}], 0 offen
v_cndmask_b32 v{vEN+8*g+7}, -1, v{vF+2}, s[{sMASK+4*g+2}:{sMASK+4*g+3}]
""")
    for g in range(NG):
        a(f"""
s_cmp_eq_u64 s[{sMASK+4*g+2}:{sMASK+4*g+3}], 0
s_cbranch_scc1 L2_nold{g}
buffer_load_dwordx3 v[{vEN+8*g+4}:{vEN+8*g+6}], v{vEN+8*g+7}, s[{S_ENT}:{S_ENT+3}], 0 offen offset:{16*REC}
L2_nold{g}:
""")
    n_young = 0
    a(f"v_and_b32 v{vS2}, 63, v0\nv_lshlrev_b32 v{vS2}, 4, v{vS2}")
    for q in range(4 if HILO else 2):
        a(f"buffer_load_dwordx4 v[{vW+4*q}:{vW+4*q+3}], v{vS2}, s[{S_CON}:{S_CON+3}], 0 offen offset:{C_W + q*1024}")
        n_young += 1
    a(f"s_movk_i32 s{sT0}, {C_CG}")
    for q in range(2):
        a(f"buffer_load_dwordx4 v[{vCG+4*q}:{vCG+4*q+3}], v{vS2}, s[{S_CON}:{S_CON+3}], s{sT0} offen offset:{q*1024}")
        n_young += 1
    a(f"s_cmp_eq_u32 s{sFIRST}, 0\ns_cbranch_scc1 L2_noclear\ns_mov_b32 s{sFIRST}, 0")
    lds_fill(L["ACC"], 40 * ACC_NODE, 0)
    a(f"""
L2_noclear:
s_waitcnt lgkmcnt(0)
s_barrier
""")
    for kind in o.get("pf2", "").split():
        lo, hi = (int(v) for v in kind[1:].split("-"))
        total = (N_EDGES * 32 if kind[0] == "e" else N_NODES * 512) // 128
        l0, l1 = total * lo // 16, total * hi // 16
        nshare = 256 if kind[0] == "e" else 32
        per = -(-(l1 - l0) // nshare)
        a(f"s_lshr_b32 s{sT0}, s2, 3" if kind[0] == "x" else f"s_mov_b32 s{sT0}, s2")
        a(f"s_mul_i32 s{sT0}, s{sT0}, {per}\ns_add_u32 s{sT0}, s{sT0}, {l0}")
        for k in range(-(-per // T)):
            a(f"""v_add_u32 v{vF+8}, {k*T}, v0
v_cmp_gt_u32 vcc, {per}, v{vF+8}
v_add_lshl_u32 v{vF+8}, v{vF+8}, s{sT0}, 7
s_nop 0
v_cndmask_b32 v{vF+8}, -1, v{vF+8}, vcc
buffer_load_dword v{vPF}, v{vF+8}, s[{S_EF if kind[0] == 'e' else S_X}:{(S_EF if kind[0] == 'e' else S_X)+3}], 0 offen""")
            n_young += 1
    a(f"""
s_cmp_eq_u32 s{sMORE}, 0
s_cbranch_scc1 L2_nomore
v_mov_b32 v{vF}, {L['MISC']+8}
ds_write_b32 v{vF}, v{vONE}
L2_nomore:
s_mov_b32 s{sT0}, {MP}
s_mov_b32 s{sT1}, -1638
v_mov_b32 v{vF+2}, {40*1638}
s_waitcnt vmcnt({n_young})
""")
    stamp(a, o, 1)
    def for_parts(body, tag):
        for g in range(NG):
            for p in range(2):
                i = 2 * g + p
                a(f"s_mov_b64 exec, s[{sMASK+2*i}:{sMASK+2*i+1}]")
                if p:
                    a(f"s_cbranch_execz L2_{tag}{g}")
                body(g, i, vEN + 4 * i)
                if p:
                    a(f"L2_{tag}{g}:")
        a("s_mov_b64 exec, -1")
    def rank_body(g, i, e):
        a(f"v_bfe_u32 v{vKY+i}, v{e+2}, 14, 6")
        if SLIDE:
            a(f"""
v_and_b32 v{vF}, 0x3fff, v{e+2}
v_mad_i32_i24 v{vF+1}, v{vKY+i}, s{sT1}, v{vF+2}
v_mad_u32_u24 v{vF}, v{vF}, s{sT0}, v{vF+1}
v_lshrrev_b32 v{vF}, 16, v{vF}
v_mad_u32_u24 v{vKY+i}, v{vF}, 40, v{vKY+i}
""")
        elif NPH > 1:
            a(f"""
v_and_b32 v{vF}, 0x3fff, v{e+2}
v_mul_u32_u24 v{vF}, s{sT0}, v{vF}
v_lshrrev_b32 v{vF}, {SP}, v{vF}
v_mad_u32_u24 v{vKY+i}, v{vF}, 40, v{vKY+i}
""")
        a(f"""
v_lshlrev_b32 v{vKY+i}, 2, v{vKY+i}
v_add_u32 v{vKY+i}, {L['HIST']}, v{vKY+i}
ds_add_rtn_u32 v{vRK+i}, v{vKY+i}, v{vONE}
""")
    for_parts(rank_body, "rk")
    a(f"""
s_waitcnt lgkmcnt(0)
s_barrier
s_cmp_lg_u32 s{sWAVE}, 0
s_cbranch_scc1 L2_noscan
v_lshlrev_b32 v{vF+9}, 4, v0
v_add_u32 v{vF+9}, {L['HIST']}, v{vF+9}
ds_read_b128 v[{vF}:{vF+3}], v{vF+9}
s_waitcnt lgkmcnt(0)
""")
    for j in range(4):
        a(f"v_add_u32 v{vF+j}, 1, v{vF+j}\nv_and_b32 v{vF+j}, -2, v{vF+j}")
    a(f"""
v_add_u32 v{vF+5}, v{vF}, v{vF+1}
v_add_u32 v{vF+6}, v{vF+5}, v{vF+2}
v_add_u32 v{vF+7}, v{vF+6}, v{vF+3}
v_mov_b32 v{vF+8}, v{vF+7}
""")
    wave_scan(a, vF + 7)
    a(f"""
v_sub_u32 v{vF+4}, v{vF+7}, v{vF+8}
v_add_u32 v{vF+7}, v{vF+4}, v{vF+6}
v_add_u32 v{vF+6}, v{vF+4}, v{vF+5}
v_add_u32 v{vF+5}, v{vF+4}, v{vF}
ds_write_b128 v{vF+9}, v[{vF+4}:{vF+7}]
s_waitcnt lgkmcnt(0)
L2_noscan:
s_barrier
v_mov_b32 v{vF}, {L['HIST']+1020}
ds_read_b32 v{vF+1}, v{vF}
ds_read_b32 v{vF+2}, v{vF} offset:12
""")
    def start_body(g, i, e):
        a(f"ds_read_b32 v{vKY+i}, v{vKY+i}")
    for_parts(start_body, "st")
    a(f"""
s_waitcnt lgkmcnt(0)
v_readfirstlane_b32 s{sNBLK}, v{vF+1}
v_readfirstlane_b32 s{sMORE}, v{vF+2}
s_cmp_le_u32 s{sNBLK}, {CAP}
s_cbranch_scc1 L2_fits
s_mov_b32 s{sSPLIT}, 3
s_barrier
s_branch L2_round
L2_fits:
s_bfe_u32 s{sT0}, s{sNBLK}, 0x40001
s_and_b32 s{sT1}, s{sNBLK}, -32
s_add_u32 s{sT0}, s{sT0}, s{sT1}
s_lshl_b32 s{sT0}, s{sT0}, 2
v_mov_b32 v{vF}, s{sT0}
v_mov_b32 v{vF+1}, {PAD_E | 0x80000000:#x}
ds_write_b32 v{vF}, v{vF+1} offset:{L['EW']}
s_brev_b32 s{sT1}, 1
s_add_u32 s{sNBLK}, s{sNBLK}, 31
s_lshr_b32 s{sNBLK}, s{sNBLK}, 5
""")
    def scat_body(g, i, e):
        a(f"""
v_add_u32 v{vF}, v{vKY+i}, v{vRK+i}
v_and_b32 v{vF+1}, 1, v{vF}
v_bfe_u32 v{vF+2}, v{vF}, 1, 4
v_and_b32 v{vF}, -32, v{vF}
v_lshl_or_b32 v{vF}, v{vF+1}, 4, v{vF}
v_or_b32 v{vF}, v{vF}, v{vF+2}
v_lshlrev_b32 v{vF+1}, 3, v{vF}
v_lshlrev_b32 v{vF}, 2, v{vF}
ds_write_b64 v{vF+1}, v[{e}:{e+1}] offset:{L['YY']}
v_and_b32 v{vF+2}, {o.get('xmask', 0x3fff):#x}, v{e+2}
v_lshlrev_b32 v{vF+2}, 9, v{vF+2}
ds_write_b32 v{vF}, v{vF+2} offset:{L['XO']}
v_lshrrev_b32 v{vF+3}, 20, v{e+2}
v_add_lshl_u32 v{vF+3}, v{vF+3}, v{vTB+g}, 5
v_bfe_u32 v{vF+4}, v{e+2}, 14, 6
v_lshl_or_b32 v{vF+3}, v{vF+4}, 25, v{vF+3}
v_add_u32 v{vF+4}, -1, v{vRK+i}
v_and_or_b32 v{vF+3}, v{vF+4}, s{sT1}, v{vF+3}
ds_write_b32 v{vF}, v{vF+3} offset:{L['EW']}
""")
    for_parts(scat_body, "sc")
    a(f"""
s_waitcnt lgkmcnt(0)
s_barrier
""")

    stamp(a, o, 2)
    if o.get("stamps"):
        a("s_memtime s[96:97]\ns_waitcnt lgkmcnt(0)")
    main_start = len(a.L)
    NULLB = CAP // 32
    def emit(lst):
        for ins in lst:
            a(ins)
    def rho(step):
        return 8 * (step // 4) + step % 4
    def block_reads(sreg):
        a(f"""
s_lshl_b32 s{sT0}, s{sreg}, 7
s_lshl_b32 s{sT1}, s{sreg}, 8
v_add_u32 v{vEWN}, s{sT0}, v{vCE}
v_add_u32 v{vY}, s{sT1}, v{vCY}
ds_read_b32 v{vEWN}, v{vEWN} offset:{L['EW']}
ds_read_b64 v[{vY}:{vY+1}], v{vY} offset:{L['YY']}
""")
    def xo_addr(sreg):
        a(f"s_lshl_b32 s{sT0}, s{sreg}, 7\nv_add_u32 v{vA0}, s{sT0}, v{vCX}")
    def quad_read(q, dst=None):
        dst = vXO if dst is None else dst
        a(f"ds_read_b128 v[{dst}:{dst+3}], v{vA0} offset:{L['XO'] + q*16}")
    def x_load(step, src=None):
        xo = (vXO if src is None else src) + step % 4
        d = vX + 4 * (step % 8)
        return [f"v_add_u32 v{xo}, v{xo}, v{vXL}",
                f"buffer_load_dwordx4 v[{d}:{d+3}], v{xo}, s[{S_X}:{S_X+3}], 0 offen"]
    nbatch = [0]
    def x_burst():
        dl = o.get("xburst")
        if dl is None:
            return
        per = -(-40000 // NPH // 32)
        for p in range(1, NPH):
            a(f"""s_mul_i32 s{sT0}, s{sNBLK}, {p * 65536 // NPH}
s_lshr_b32 s{sT0}, s{sT0}, 16
s_sub_u32 s{sT0}, s{sT0}, {dl}
s_cmp_eq_u32 s{sT0}, s{sNXT}
s_movk_i32 s{sT1}, {p * 40000 // NPH}
s_cbranch_scc1 L2_xb""")
        a(f"""s_branch L2_xb_skip
L2_xb:
s_and_b32 s{sT1}, s{sT1}, 0xffff
s_lshr_b32 s{sT0}, s2, 3
s_mul_i32 s{sT0}, s{sT0}, {per}
s_add_u32 s{sT0}, s{sT0}, s{sT1}
v_and_b32 v{vTM}, 63, v0
v_add_lshl_u32 v{vTM}, v{vTM}, s{sT0}, 7""")
        n = -(-per // 64)
        step = -(-per // n)
        for i in range(n):
            a(f"buffer_load_dword v{vPF}, v{vTM}, s[{S_X}:{S_X+3}], 0 offen\nv_add_u32 v{vTM}, {step*128}, v{vTM}")
        a("L2_xb_skip:")
    def ef_issue(sreg=None):
        kb = o.get("efbatch")
        if kb:
            nbatch[0] += 1
            sreg = sNXT if sreg is None else sreg
            a(f"s_lshr_b32 s{sT1}, s2, 3\ns_xor_b32 s{sT0}, s{sreg}, s{sT1}\ns_and_b32 s{sT0}, s{sT0}, {kb-1}\ns_cbranch_scc1 L2_nb{nbatch[0]}")
            a(f"s_and_b32 s{sT0}, s{sreg}, {-kb}\ns_lshl_b32 s{sT0}, s{sT0}, 7\nv_add_u32 v{vTM}, s{sT0}, v{vCE}")
            for i in range(kb):
                a(f"ds_read_b32 v{vU+i}, v{vTM} offset:{L['EW'] + 128*i}")
            a("s_waitcnt lgkmcnt(0)")
            for i in range(kb):
                a(f"v_and_or_b32 v{vU+i}, v{vU+i}, s{sEMASK}, v{vEH}")
            for i in range(kb):
                a(f"buffer_load_dwordx4 v[{vEF}:{vEF+3}], v{vU+i}, s[{S_EF}:{S_EF+3}], 0 offen {efmod}")
            if o.get("xtouch") is not None:
                share = 32 // kb
                nl = 496 // share
                a(f"""s_mul_i32 s{sT0}, s{sreg}, 496
s_lshr_b32 s{sT1}, s2, {3 + kb.bit_length() - 1}
s_mul_i32 s{sT1}, s{sT1}, {nl}
s_add_u32 s{sT0}, s{sT0}, s{sT1}
s_add_u32 s{sT0}, s{sT0}, {4 * o['xtouch']}
v_and_b32 v{vTM}, 63, v0
v_add_lshl_u32 v{vTM}, v{vTM}, s{sT0}, 7""")
                for i in range(-(-nl // 64)):
                    a(f"buffer_load_dword v{vPF}, v{vTM}, s[{S_X}:{S_X+3}], 0 offen\nv_add_u32 v{vTM}, {62*128}, v{vTM}")
            a(f"L2_nb{nbatch[0]}:\nv_cmp_gt_i32 s[{sFMN}:{sFMN+1}], 0, v{vEWN}")
            return
        a(f"""
v_and_or_b32 v{vEF}, v{vEWN}, s{sEMASK}, v{vEH}
v_cmp_gt_i32 s[{sFMN}:{sFMN+1}], 0, v{vEWN}
buffer_load_dwordx4 v[{vEF}:{vEF+3}], v{vEF}, s[{S_EF}:{S_EF+3}], 0 offen {efmod}
""")
    KT = [vU, vU + 4, vU + 16, vU + 20]
    def k_mfma():
        return [f"v_mfma_f32_4x4x4_16b_bf16 v[{KT[i]}:{KT[i]+3}], v[{vY}:{vY+1}], v[{vCG+2*i}:{vCG+2*i+1}], 0" for i in range(4)]
    def k_cvt(j):
        return [f"v_cvt_pk_bf16_f32 v{vK+2*j}, v{KT[0]+j}, v{KT[1]+j}",
                f"v_cvt_pk_bf16_f32 v{vK+2*j+1}, v{KT[2]+j}, v{KT[3]+j}"]
    def u_mfma():
        out = [f"v_mfma_f32_32x32x16_bf16 v[{vU+16*p}:{vU+16*p+15}], v[{vEF}:{vEF+3}], v[{vW+4*p}:{vW+4*p+3}], 0" for p in range(2)]
        if HILO:
            out += [f"v_mfma_f32_32x32x16_bf16 v[{vU+16*p}:{vU+16*p+15}], v[{vEF}:{vEF+3}], v[{vW+8+4*p}:{vW+8+4*p+3}], v[{vU+16*p}:{vU+16*p+15}]" for p in range(2)]
        return out
    def silu_ops(d):
        u = vU
        E = [f"v_exp_f32 v{vT+2*p+j}, -v{u+16*p+2*d+j}" for p in range(2) for j in range(2)]
        A = [f"v_pk_add_f32 v[{vT+2*p}:{vT+2*p+1}], v[{vT+2*p}:{vT+2*p+1}], 1.0 op_sel_hi:[1,0]" for p in range(2)]
        R = [f"v_rcp_f32 v{vT+2*p+j}, v{vT+2*p+j}" for p in range(2) for j in range(2)]
        M = [f"v_pk_mul_f32 v[{u+16*p+2*d}:{u+16*p+2*d+1}], v[{u+16*p+2*d}:{u+16*p+2*d+1}], v[{vT+2*p}:{vT+2*p+1}]" for p in range(2)]
        return E, A, R, M
    def fma_ops(step, first=False):
        d, j = divmod(step, 2)
        out = []
        for p in range(2):
            rr = vU + 16 * p + 2 * d
            for hh in range(2):
                t = vTP + 4 * p + 2 * hh
                c = vACC + 4 * p + 2 * hh
                if first:
                    out.append(f"v_pk_mul_f32 v[{c}:{c+1}], v[{t}:{t+1}], v[{rr}:{rr+1}] op_sel:[0,{j}] op_sel_hi:[1,{j}]")
                else:
                    out.append(f"v_pk_fma_f32 v[{c}:{c+1}], v[{t}:{t+1}], v[{rr}:{rr+1}], v[{c}:{c+1}] op_sel:[0,{j},0] op_sel_hi:[1,{j},1]")
        return out
    def tp_ops(step):
        out = []
        for p in range(2):
            t = vTP + 4 * p
            x = vX + 4 * (step % 8) + 2 * p
            k = vK + 2 * (step // 8)
            out.append(f"v_mfma_f32_4x4x4_16b_bf16 v[{t}:{t+3}], v[{k}:{k+1}], v[{x}:{x+1}], 0 cbsz:3 abid:{step%8}")
        return out
    def flush_body(step):
        a(f"""
v_readlane_b32 s{sT0}, v{vEWC}, {rho(step)}
v_cvt_f64_f32 v[{vTM}:{vTM+1}], v{vACC}
s_bfe_u32 s{sT0}, s{sT0}, 0x60019
s_mul_i32 s{sT0}, s{sT0}, {ACC_NODE}
v_add_u32 v{vQ}, s{sT0}, v{vAL}
""")
        for i in range(0, 8, 2):
            off = (i % 4) * ACC_ROW + (i // 4) * 256
            if i:
                a(f"v_cvt_f64_f32 v[{vTM}:{vTM+1}], v{vACC+i}")
            a(f"""
v_cvt_f64_f32 v[{vACC+i}:{vACC+i+1}], v{vACC+i+1}
ds_add_f64 v{vQ}, v[{vTM}:{vTM+1}] offset:{off}
ds_add_f64 v{vQ}, v[{vACC+i}:{vACC+i+1}] offset:{off + ACC_ROW}
""")
    def clamp(sreg):
        a(f"s_cmp_lt_u32 s{sreg}, s{sNBLK}\ns_cselect_b32 s{sreg}, s{sreg}, {NULLB}")

    if NC < NW:
        NP = NW - NC
        RPW = o.get("rpw", 2)
        r0 = o.get("pfr0", N_NODES * 10 // SLIDE if SLIDE else 0)
        lead = (N_NODES * 5 // SLIDE if SLIDE else 0) + o.get("lead", 600)
        a(f"""
s_cmp_lt_u32 s{sWAVE}, {NC}
s_cbranch_scc1 L2_compute
s_lshr_b32 s{sT0}, s2, 3
s_mul_i32 s{sT0}, s{sT0}, {NP}
s_add_u32 s{sT0}, s{sT0}, s{sWAVE}
s_sub_u32 s{sT0}, s{sT0}, {NC}
s_mul_i32 s{sT0}, s{sT0}, {RPW}
s_add_u32 s{sNXT}, s{sT0}, {r0}
v_mov_b32 v{vTM}, {L['MISC']}
L2_pf_loop:
s_cmp_gt_u32 s{sNXT}, {N_NODES - RPW}
s_cbranch_scc1 L2_done
ds_read_b32 v{vTM+1}, v{vTM}
s_waitcnt lgkmcnt(0)
v_readfirstlane_b32 s{sT0}, v{vTM+1}
s_add_u32 s{sT0}, s{sT0}, {NC}
s_cmp_ge_u32 s{sT0}, s{sNBLK}
s_cbranch_scc1 L2_done
s_mul_i32 s{sT0}, s{sT0}, {N_NODES}
s_sub_i32 s{sT1}, s{sNXT}, {lead}
s_mul_i32 s{sT1}, s{sT1}, s{sNBLK}
s_cmp_le_i32 s{sT1}, s{sT0}
s_cbranch_scc1 L2_pf_go
s_sleep 4
s_branch L2_pf_loop
L2_pf_go:
s_lshl_b32 s{sT0}, s{sNXT}, 9
""")
        for j in range(8 * RPW):
            a(f"s_load_dword s{sFMN}, s[{S_X}:{S_X+1}], s{sT0} offset:{64*j}")
        a(f"""
s_add_u32 s{sNXT}, s{sNXT}, {32 * NP * RPW}
s_branch L2_pf_loop
L2_compute:
""")
    a(f"""
s_cmp_ge_u32 s{sWAVE}, s{sNBLK}
s_cbranch_scc1 L2_done
""")
    if o.get("prio"):
        a("s_setprio 3")
    block_reads(sWAVE)
    xo_addr(sWAVE)
    quad_read(0)
    quad_read(1, vTP)
    a("s_waitcnt lgkmcnt(0)")
    ef_issue(sWAVE)
    for s in range(4):
        emit(x_load(s))
    for s in range(4, 8):
        emit(x_load(s, vTP))
    quad_read(2)
    a("s_waitcnt vmcnt(9)")
    emit(k_mfma())
    a("s_nop 4")
    emit(k_cvt(0) + k_cvt(1))
    a("s_waitcnt vmcnt(8)")
    stamp(a, o, 3)
    a("s_waitcnt lgkmcnt(0)")
    emit(u_mfma())
    a("s_nop 7\ns_branch L2_enter")

    E0 = 4
    def body(tail):
        tag = "t" if tail else ""
        for s in range(2 if tail else 0, 16):
            d, j = divmod(s, 2)
            M = tp_ops(s)
            TR, PK = [], []
            if d < 7:
                E, A, R, U = silu_ops(d + 1)
                TR, PK = (R, U) if j else (E, A)
            if not (tail and s == 2):
                if tail:
                    a(f"s_waitcnt vmcnt({min(7, 15 - s)})")
                else:
                    a(f"s_waitcnt vmcnt({8 if E0 < s < E0 + 8 else 7})")
                a(M[0])
                emit(TR[:1])
                a(M[1])
                if s in (9, 10) and not tail:
                    KM = k_mfma()[2 * (s - 9):2 * (s - 9) + 2]
                    a(TR[1]); a(KM[0]); a(TR[2]); a(KM[1]); a(TR[3])
                else:
                    emit(TR[1:])
                if s == 15 and not tail:
                    emit(k_cvt(1))
                if s == 12 and not tail:
                    emit(k_cvt(0))
                if (s % 4 == 0 or s == 2) and not (tail and s >= 8):
                    a(f"s_waitcnt lgkmcnt({8 if s == 0 else 0})")
                if s == 2:
                    a(f"""v_readfirstlane_b32 s{sNXT}, v{vEWN}
s_add_u32 s{sNXT}, s{sNXT}, {NC}
s_cmp_ge_u32 s{sNXT}, s{sNBLK}
s_cbranch_scc1 L2_tail""")
                    block_reads(sNXT)
            if s == E0 and not tail:
                x_burst()
                ef_issue()
                xo_addr(sNXT)
            if not (tail and s >= 8):
                emit(x_load(s))
            if s % 4 == 3 and not (tail and s > 3):
                quad_read((s // 4 + 3) & 3)
            if s == 0:
                a(f"""
v_mov_b32 v{vEWN}, {L['MISC']}
v_mov_b32 v{vY}, 1
s_mov_b64 exec, 1
ds_add_rtn_u32 v{vEWN}, v{vEWN}, v{vY}
s_mov_b64 exec, -1
""")
                emit(fma_ops(0, True))
            else:
                if s >= 14:
                    a("s_nop 1" if tail else "s_nop 0" if s == 14 else "")
                a(f"s_bitcmp1_b32 s{sFM}, {rho(s)}\ns_cbranch_scc1 L2_fl{tag}{s}")
                emit(fma_ops(s))
                a(f"L2_fr{tag}{s}:")
            emit(PK)
    def stubs(tail):
        tag = "t" if tail else ""
        for s in range(2 if tail else 1, 16):
            a(f"L2_fl{tag}{s}:")
            flush_body(s - 1)
            emit(fma_ops(s, True))
            a(f"s_branch L2_fr{tag}{s}")
    a("L2_block:")
    body(False)
    emit(u_mfma())
    flush_body(15)
    if o.get("prio"):
        a(f"s_lshl_b32 s{sT0}, s{sNXT}, 2")
        for lvl in (2, 1, 0):
            a(f"s_sub_u32 s{sT0}, s{sT0}, s{sNBLK}\ns_cbranch_scc1 L2_prio\ns_setprio {lvl}")
        a("L2_prio:")
    a(f"""
L2_enter:
v_mov_b32 v{vEWC}, v{vEWN}
s_mov_b32 s{sFM}, s{sFMN}
""")
    E, A, R, U = silu_ops(0)
    emit(E)
    a("s_nop 0")
    emit(A + R)
    a("s_nop 0")
    emit(U)
    a("s_branch L2_block")
    stubs(False)
    stubs(True)
    a("L2_tail:")
    body(True)
    flush_body(15)

    if o.get("drop"):
        import re
        pat = re.compile(o["drop"].replace(" ", "|"))
        a.L[main_start:] = [l for l in a.L[main_start:] if not pat.search(l)]
    vB = base + (base & 1)
    vEA = vB + 32
    a(f"""
L2_done:
s_waitcnt vmcnt(0) lgkmcnt(0)
s_cmp_eq_u32 s{sQ}, s{sSPLIT}
s_cbranch_scc1 L2_lastq
s_add_u32 s{sQ}, s{sQ}, 1
s_barrier
s_branch L2_round
L2_lastq:
s_cmp_eq_u32 s{sMORE}, 0
s_cbranch_scc1 L2_epi
s_add_u32 s{sK}, s{sK}, 1
s_mov_b32 s{sQ}, 0
s_mov_b32 s{sSPLIT}, 0
s_barrier
s_branch L2_round
L2_epi:
v_and_b32 v4, 63, v0
v_lshlrev_b32 v2, 4, v4
s_movk_i32 s{sT0}, {C_MIX}
""")
    for q in range(8):
        if q == 4:
            a(f"s_movk_i32 s{sT0}, {C_MIX + 4096}")
        a(f"buffer_load_dwordx4 v[{vB+4*q}:{vB+4*q+3}], v2, s[{S_CON}:{S_CON+3}], s{sT0} offen offset:{(q%4)*1024}")
    a(f"""
s_barrier
""")
    stamp(a, o, 4)
    if o.get("stamps"):
        a("s_memtime s[98:99]")
    a(f"""
L2_epi_job:
s_cmp_ge_u32 s{sWAVE}, 10
s_cbranch_scc1 L2_end
v_and_b32 v2, 15, v4
v_mul_u32_u24 v2, {ACC_ROW}, v2
v_lshrrev_b32 v3, 4, v4
v_lshl_add_u32 v2, v3, 6, v2
s_mul_i32 s{sT0}, s{sWAVE}, {4*ACC_NODE}
s_add_u32 s{sT0}, s{sT0}, {L['ACC']}
v_add_u32 v2, s{sT0}, v2
""")
    for ks in range(2):
        for hh in range(4):
            a(f"ds_read_b128 v[{vEA+16*ks+4*hh}:{vEA+16*ks+4*hh+3}], v2 offset:{ks*256+hh*16}")
    a(f"""
s_lshl_b32 s{sT0}, s{sWAVE}, 2
s_add_u32 s{sT0}, s{sT0}, s{sN0}
v_add_u32 v3, s{sT0}, v3
v_cmp_gt_u32 vcc, s{sNN}, v3
v_lshlrev_b32 v3, 9, v3
v_and_b32 v2, 15, v4
v_lshl_add_u32 v3, v2, 4, v3
s_mov_b32 s{sT0}, {LN2:#x}
s_waitcnt lgkmcnt(0)
""")
    vPA = vEA + 32
    for j in range(16):
        a(f"v_cvt_f32_f64 v{vEA+j}, v[{vEA+2*j}:{vEA+2*j+1}]")
    for j in range(16):
        a(f"v_mul_f32 v{vEA+j}, s{sT0}, v{vEA+j}")
    for j in range(8):
        a(f"v_cvt_pk_bf16_f32 v{vPA+j}, v{vEA+2*j}, v{vEA+2*j+1}")
    a("s_waitcnt vmcnt(0)\ns_nop 1")
    vD = vPA + 8
    for ks in range(2):
        for t in range(4):
            c = "0" if ks == 0 else f"v[{vD+4*t}:{vD+4*t+3}]"
            a(f"v_mfma_f32_16x16x32_bf16 v[{vD+4*t}:{vD+4*t+3}], v[{vPA+4*ks}:{vPA+4*ks+3}], v[{vB+8*t+4*ks}:{vB+8*t+4*ks+3}], {c}")
    a("s_nop 7")
    for j in range(8):
        a(f"v_cvt_pk_bf16_f32 v{vEA+j}, v{vD+2*j}, v{vD+2*j+1}")
    a(f"""
s_and_b64 exec, exec, vcc
s_cbranch_execz L2_end
buffer_store_dwordx4 v[{vEA}:{vEA+3}], v3, s[{S_OUT}:{S_OUT+3}], 0 offen {o.get('outst', '')}
buffer_store_dwordx4 v[{vEA+4}:{vEA+7}], v3, s[{S_OUT}:{S_OUT+3}], 0 offen offset:256 {o.get('outst', '')}
s_mov_b64 exec, -1
""")
    if NW < 10:
        a(f"s_add_u32 s{sWAVE}, s{sWAVE}, {NW}\ns_cmp_lt_u32 s{sWAVE}, 10\ns_cbranch_scc1 L2_epi_job")
    if o.get("stamps"):
        a("s_waitcnt vmcnt(0)")
    stamp(a, o, 5)
    stamp_out(a, o, 1, 8, "b")
    if o.get("stamps"):
        n_sgpr = 100
        assert sMASK + 4 * NG <= 84
    a("L2_end:\ns_endpgm")
    n_vgpr = max(n_vgpr, vD + 16)
    return a.text(), n_vgpr, n_sgpr, T, L["size"]

HEADER = open("cdna_kernels/" + NAME + ".s.ref").read().split("; Override launch")[0]

def build(o):
    k1, v1, s1 = gen_k1(o)
    k2, v2, s2, T2, lds2 = gen_k2(o)
    out = HEADER
    out += f"; @launch kernel=part_kernel grid=({NB if o.get('pf1') else NCH+1},1,1) block=({K1_T},1,1) lds={K1_LDS}\n"
    out += f"; @launch kernel=msg_kernel grid=({NB},1,1) block=({T2},1,1) lds={lds2}\n"
    out += '.amdgcn_target "amdgcn-amd-amdhsa--gfx950"\n.text\n'
    for name, body in (("part_kernel", k1), ("msg_kernel", k2)):
        out += f".globl {name}\n.p2align 8\n.type {name},@function\n{body}"
    out += '.section .rodata,"a"\n.p2align 6\n'
    out += descriptor("part_kernel", v1, s1)
    out += ".p2align 6\n"
    out += descriptor("msg_kernel", v2, s2)
    return out, dict(v2=v2, s2=s2, lds2=lds2)

if __name__ == "__main__":
    o = {}
    path = "cdna_kernels/" + NAME + ".s"
    for arg in sys.argv[1:]:
        k, v = arg.split("=", 1)
        if k == "out":
            path = v
        else:
            o[k] = int(v) if v.lstrip("-").isdigit() else v.replace("+", " ")
    txt, info = build(o)
    open(path, "w").write(txt)
    print(path, info)
```

```python
import sys
from gen import (NAME, N_NODES, N_EDGES, NB, LOG2E, LN2, magic, Asm, srd, wave_scan,
                 descriptor, HEADER, WS_STAMP)

CH, NCH = 2500, 256
CS = 30080
WS_ENT = 0x1000000
WS_TAB = 0x800000
ACC_ROW = 528
ACC_NODE = 4 * ACC_ROW
PAD_X = 0x7FFF0000
PAD_E = 0x01FFFFE0
NW, T, NG = 16, 1024, 4
PW = 10
SPIN = 1 << 18

def gen(o):
    a = Asm()
    NPH = o.get("nph", 4)
    HILO = o.get("hilo", 0)
    CAP = o.get("cap", 3072)
    NP = CAP // 2 + 16
    assert NP % 32 == 16
    STAMPS = o.get("stamps")
    TAGREC = 0
    REC = 16 if TAGREC else 12
    MIXROW = 144
    D = o.get("d", 8)
    G0 = o.get("g0", min(4, 8 - D))
    TID = o.get("tid", 0)
    NC = o.get("nc", NW)
    XO, EW, YY, ACC = 0, NP * 8, NP * 16, NP * 32
    H1 = ACC + 40 * ACC_NODE
    H2 = H1 + 1024 + 64
    MISC = H2 + 1024
    CW = MISC + 64
    CCG = CW + (4096 if HILO else 2048)
    CMIX = CCG + 2048
    LDS = CMIX + 64 * MIXROW
    EPOCH = H1 + 1024 + 16
    STG = 0
    MB, SB = magic(NB, N_NODES, N_NODES)
    MP, SP = magic(NPH, N_NODES, N_NODES) if NPH > 1 else (0, 0)

    S_X, S_EF, S_ENT, S_TAB, S_A, S_OUT = 12, 16, 20, 24, 28, 32
    sB, sN0, sNN, sWAVE, sK, sQ, sSPLIT, sNBLK = 36, 37, 38, 39, 40, 41, 42, 43
    sFMN, sNXT, sFM, sT0, sT1, sEMASK, sMORE = 44, 46, 47, 48, 49, 50, 51
    sMASK = 52
    sTAGL, sTAGH, sCNT = 4, 5, 6
    sPM, sPEND, sISS, sNEW, sLIM, sMP = 8, 68, 69, 70, 71, 72
    n_sgpr = 100 if STAMPS else 76

    vXL, vW, vCG = 1, 2, 2 + (16 if HILO else 8)
    r = vCG + 8
    vAL = r; vCX = r + 1; vCE = r + 2; vCY = r + 3; vEH = r + 4; vA0 = r + 5
    r += 6
    base = r
    vU = r; r += 32
    vX = r; r += 4 * D
    vXO = r; r += 4
    vTP = r; r += 8
    vACC = r; r += 8
    vK = r; r += 4
    vEF = r; r += 4
    vT = r; r += 4
    vY = r; r += 2
    vTM = r; r += 2
    vEWC = r; vEWN = r + 1; vQ = r + 2; r += 3
    n_main = r
    r = base
    vTB = r; r += 2 * NG
    vEN = r; r += 8 * NG
    vRK = r; r += 2 * NG
    vKY = r; r += 2 * NG
    vF = r; r += 16
    vONE = r; vS2 = r + 1; vS3 = r + 2; vWC = r + 3; r += 3 + NG
    vPF = max(n_main, r, base + 88)
    n_vgpr = 128 if o.get('efbatch') else vPF + 1

    def emit(lst):
        for ins in lst:
            a(ins)
    marks = o.get("marks", "start Y B4b join rank F2 F3 sort main end").split()
    def stamp(name):
        if STAMPS:
            for i, m in enumerate(marks):
                if m == name:
                    a(f"s_memrealtime s[{76+2*i}:{77+2*i}]")
    def prefetch(kinds, vtid, nthr, vtmp):
        n = 0
        for kind in kinds.split():
            lo, hi = (int(v) for v in kind[1:].split("-"))
            total = (N_EDGES * 32 if kind[0] == "e" else N_NODES * 512) // 128
            l0, l1 = total * lo // 32, total * hi // 32
            per = -(-(l1 - l0) // (32 if kind[0] == "x" else 256))
            sr = S_EF if kind[0] == "e" else S_X
            a(f"s_lshr_b32 s{sT0}, s2, 3" if kind[0] == "x" else f"s_mov_b32 s{sT0}, s2")
            a(f"s_mul_i32 s{sT0}, s{sT0}, {per}\ns_add_u32 s{sT0}, s{sT0}, {l0}")
            for k in range(-(-per // nthr)):
                a(f"""v_add_u32 v{vtmp}, {k*nthr}, v{vtid}
v_cmp_gt_u32 vcc, {per}, v{vtmp}
v_add_lshl_u32 v{vtmp}, v{vtmp}, s{sT0}, 7
s_nop 0
v_cndmask_b32 v{vtmp}, -1, v{vtmp}, vcc
buffer_load_dword v{vPF}, v{vtmp}, s[{sr}:{sr+3}], 0 offen""")
                n += 1
        return n
    def prefetch_waves(kinds, vtmp, tag):
        w0 = 1
        for ki, kind in enumerate(kinds.split()):
            lo, hi = (int(v) for v in kind[1:].split("-"))
            total = (N_EDGES * 32 if kind[0] == "e" else N_NODES * 512) // 128
            l0, l1 = total * lo // 32, total * hi // 32
            per = -(-(l1 - l0) // (32 if kind[0] == "x" else 256))
            nwv = -(-per // 64)
            assert w0 + nwv <= NW
            sr = S_EF if kind[0] == "e" else S_X
            a(f"s_sub_u32 s{sT0}, s{sWAVE}, {w0}\ns_cmp_ge_u32 s{sT0}, {nwv}\ns_cbranch_scc1 L_pf{tag}{ki}")
            a(f"s_lshr_b32 s{sT0}, s2, 3" if kind[0] == "x" else f"s_mov_b32 s{sT0}, s2")
            a(f"""s_mul_i32 s{sT0}, s{sT0}, {per}
s_add_u32 s{sT0}, s{sT0}, {l0}
v_subrev_u32 v{vtmp}, {w0*64}, v0
v_min_u32 v{vtmp}, {per-1}, v{vtmp}
v_add_lshl_u32 v{vtmp}, v{vtmp}, s{sT0}, 7
buffer_load_dword v{vPF}, v{vtmp}, s[{sr}:{sr+3}], 0 offen
L_pf{tag}{ki}:""")
            w0 += nwv
    def lds_fill(start, nbytes, val, vtid, nthr, v):
        a(f"v_lshlrev_b32 v{v+4}, 4, v{vtid}")
        for j in range(4):
            a(f"v_mov_b32 v{v+j}, {val:#x}")
        n = nbytes // 16
        assert nbytes % 16 == 0
        k = 0
        while k * nthr < n:
            rem = n - k * nthr
            if start + k * nthr * 16 >= 65536:
                a(f"v_add_u32 v{v+4}, {start + k*nthr*16}, v{v+4}")
                start = -k * nthr * 16
            if rem < nthr:
                a(f"v_cmp_gt_u32 vcc, {rem}, v{vtid}\ns_and_saveexec_b64 s[{sT0}:{sT1}], vcc")
            a(f"ds_write_b128 v{v+4}, v[{v}:{v+3}] offset:{start + k*nthr*16}")
            if rem < nthr:
                a(f"s_mov_b64 exec, s[{sT0}:{sT1}]")
            k += 1
    def slot_fills(vtid, nthr, v):
        lds_fill(H2, 1024 + 64, 0, vtid, nthr, v)
        lds_fill(YY, NP * 16, 0, vtid, nthr, v)
        lds_fill(XO, NP * 8, 512 if TID else PAD_X, vtid, nthr, v)
        lds_fill(EW, NP * 8, PAD_E, vtid, nthr, v)
    def common_srds():
        srd(a, S_X, 56, 0 if o.get("nox") else N_NODES * 512)
        srd(a, S_EF, 64, 0 if o.get("noef") else N_EDGES * 32)
        srd(a, S_OUT, 72, N_NODES * 512)
        srd(a, S_ENT, 10, NCH * CS, WS_ENT)
        srd(a, S_TAB, 10, NCH * NB * 8, WS_TAB)

    K = NAME + "_kernel"
    a(f"""
{K}:
s_cmp_ge_u32 s2, {NB}
s_cbranch_scc1 L_end
""")
    stamp("start")
    a(f"""
s_load_dwordx16 s[56:71], s[0:1], 0
s_load_dwordx4 s[72:75], s[0:1], 64
s_load_dwordx2 s[10:11], s[0:1], 80
v_lshrrev_b32 v2, 6, v0
v_lshlrev_b32 v1, 4, v0
v_readfirstlane_b32 s{sWAVE}, v2
s_cmp_ge_u32 s{sWAVE}, {PW}
s_cbranch_scc1 L_helper
v_cmp_gt_u32 vcc, {CH//4}, v0
s_mov_b64 exec, vcc
v_lshlrev_b32 v2, 5, v0
v_lshlrev_b32 v3, 2, v0
s_mul_i32 s3, s2, {CH*4}
s_mul_i32 s7, s2, {CH*8}
s_waitcnt lgkmcnt(0)
""")
    srd(a, S_A, 60, N_EDGES * 4)
    a(f"buffer_load_dwordx4 v[4:7], v1, s[{S_A}:{S_A+3}], s3 offen")
    srd(a, 40, 58, N_EDGES * 4)
    a(f"buffer_load_dwordx4 v[8:11], v1, s[40:43], s3 offen")
    srd(a, 44, 62, N_EDGES * 8)
    a(f"buffer_load_dwordx4 v[12:15], v2, s[44:47], s7 offen")
    a(f"buffer_load_dwordx4 v[16:19], v2, s[44:47], s7 offen offset:16")
    a("s_barrier")
    common_srds()
    a(f"""
s_mov_b32 s8, {MB}
s_movk_i32 s9, 625
v_mov_b32 v21, 1
v_mov_b32 v22, {H1}
s_waitcnt vmcnt(3)
""")
    stamp("dst")
    for k in range(4):
        a(f"""
v_mul_u32_u24 v{24+k}, s8, v{4+k}
v_lshrrev_b32 v{24+k}, {SB}, v{24+k}
v_lshl_add_u32 v{28+k}, v{24+k}, 2, v22
ds_add_rtn_u32 v{32+k}, v{28+k}, v21
""")
    for k in range(4):
        a(f"""
v_mad_u32_u24 v{24+k}, v{24+k}, s9, 15
v_lshrrev_b32 v{24+k}, 4, v{24+k}
v_sub_u32 v{24+k}, v{4+k}, v{24+k}
v_add_u32 v{36+k}, {k}, v3
v_lshlrev_b32 v{36+k}, 20, v{36+k}
v_lshl_or_b32 v{36+k}, v{24+k}, 14, v{36+k}
""")
    a(f"""
s_waitcnt lgkmcnt(0)
s_barrier
s_cmp_lg_u32 s{sWAVE}, 0
s_cbranch_scc1 L_a_noscan
v_add_u32 v49, v1, v22
ds_read_b128 v[40:43], v49
s_waitcnt lgkmcnt(0)
v_add_u32 v45, v40, v41
v_add_u32 v46, v45, v42
v_add_u32 v47, v46, v43
v_mov_b32 v48, v47
""")
    wave_scan(a, 47)
    a(f"""
v_sub_u32 v44, v47, v48
v_add_u32 v47, v44, v46
v_add_u32 v46, v44, v45
v_add_u32 v45, v44, v40
ds_write_b128 v49, v[44:47]
s_waitcnt lgkmcnt(0)
L_a_noscan:
s_barrier
""")
    for k in range(4):
        a(f"ds_read_b32 v{24+k}, v{28+k}")
    a(f"""
v_and_b32 v49, 0x7f, v0
v_lshl_add_u32 v49, v49, 3, v22
ds_read_b64 v[40:41], v49
ds_read_b32 v42, v49 offset:8
s_waitcnt vmcnt(2)
""")
    for k in range(4):
        a(f"""v_or_b32 v{36+k}, v{36+k}, v{8+k}
s_waitcnt lgkmcnt({5-k})
v_add_u32 v{24+k}, v{24+k}, v{32+k}
v_mul_u32_u24 v{24+k}, {REC}, v{24+k}""")
    for k in range(4):
        a(f"ds_write_b32 v{24+k}, v{36+k} offset:{STG + 8}")
    a(f"""
s_waitcnt lgkmcnt(4)
v_sub_u32 v42, v42, v41
v_sub_u32 v43, v41, v40
v_lshl_or_b32 v42, v42, 12, v41
v_lshl_or_b32 v40, v43, 12, v40
s_mul_i32 s3, s2, {CS}
s_lshl_b32 s7, s2, 11
s_waitcnt vmcnt(0)
""")
    stamp("Y")
    for k in range(4):
        a(f"ds_write2_b32 v{24+k}, v{12+2*k}, v{13+2*k} offset0:{STG//4} offset1:{STG//4+1}")
    a(f"""
s_mov_b64 exec, -1
v_mov_b32 v49, {EPOCH}
v_cmp_gt_u32 vcc, {CS//16 - 2*PW*64}, v0
s_waitcnt lgkmcnt(0)
""")
    stamp("preB4")
    a("s_barrier")
    stamp("B4")
    if STAMPS:
        a("s_waitcnt lgkmcnt(0)")
    for k in range(3):
        a(f"ds_read_b128 v[{4+4*k}:{7+4*k}], v1 offset:{STG + k*PW*1024}")
    a("ds_read_b64 v[44:45], v49")
    for k in range(3):
        a(f"s_waitcnt lgkmcnt({3-k})")
        if k == 2:
            a("s_mov_b64 exec, vcc")
        a(f"""buffer_store_dwordx4 v[{4+4*k}:{7+4*k}], v1, s[{S_ENT}:{S_ENT+3}], s3 offen sc1
s_add_u32 s3, s3, {PW*1024}
""")
    a(f"""
s_mov_b64 exec, -1
s_waitcnt lgkmcnt(0)
v_lshl_or_b32 v42, v45, 24, v42
v_lshl_or_b32 v40, v45, 24, v40
v_mov_b32 v41, v44
v_mov_b32 v43, v44
""")
    stamp("B4b")
    a(f"""
s_waitcnt vmcnt(0)
s_barrier
s_cmp_ge_u32 s{sWAVE}, 2
s_cbranch_scc1 L_join
buffer_store_dwordx4 v[40:43], v1, s[{S_TAB}:{S_TAB+3}], s7 offen sc1
s_branch L_join
""")

    HT = (NW - PW) * 64
    a(f"""
L_helper:
v_subrev_u32 v2, {PW*64}, v0
v_and_b32 v3, 63, v0
s_waitcnt lgkmcnt(0)
""")
    srd(a, S_A, 74, 256)
    a(f"""
s_cmp_lg_u32 s{sWAVE}, {PW+1}
s_cbranch_scc1 L_h_nopub
s_cmp_lg_u32 s2, 0
s_cbranch_scc1 L_h_nopub
s_memrealtime s[8:9]
v_mov_b32 v6, 0
s_waitcnt lgkmcnt(0)
s_and_b32 s9, s9, 0xff
s_or_b32 s9, s9, 0x100
v_mov_b32 v4, s8
v_mov_b32 v5, s9
s_mov_b64 exec, 1
buffer_store_dwordx2 v[4:5], v6, s[{S_A}:{S_A+3}], 0 offen sc1
s_mov_b64 exec, -1
L_h_nopub:
""")
    lds_fill(H1, 1024, 0, 2, HT, 4)
    a(f"""
v_mov_b32 v9, {H1+1024}
v_mov_b32 v10, {CH}
ds_write_b32 v9, v10
s_waitcnt lgkmcnt(0)
s_barrier
""")
    common_srds()
    ACC_EARLY = min(o.get("accearly", 14) * HT * 16, 40 * ACC_NODE)
    if ACC_EARLY:
        lds_fill(ACC, ACC_EARLY, 0, 2, HT, 4)
    a(f"""
s_barrier
v_mov_b32 v12, 0
s_cmp_lg_u32 s{sWAVE}, {NW-1}
s_cbranch_scc1 L_h_nopoll1
buffer_load_dwordx2 v[14:15], v12, s[{S_A}:{S_A+3}], 0 offen sc1
L_h_nopoll1:
s_barrier
""")
    a(f"""
s_cmp_eq_u32 s{sWAVE}, {PW}
s_cbranch_scc1 L_h_ldw
s_cmp_eq_u32 s{sWAVE}, {PW+1}
s_cbranch_scc1 L_h_ldcg
""")
    srd(a, 40, 70, 64 * 64 * 2)
    a(f"""
v_subrev_u32 v10, {(PW+2)*64*16}, v1
buffer_load_dwordx4 v[16:19], v10, s[40:43], 0 offen
v_add_u32 v11, 4096, v10
buffer_load_dwordx4 v[20:23], v11, s[40:43], 0 offen
s_branch L_h_ld_done
L_h_ldw:
""")
    srd(a, 40, 66, 16 * 64 * 2)
    a("""
v_lshrrev_b32 v10, 5, v3
v_lshlrev_b32 v10, 10, v10
v_and_b32 v11, 31, v3
v_lshl_add_u32 v10, v11, 2, v10
""")
    for i in range(8):
        a(f"buffer_load_dword v{16+i}, v10, s[40:43], 0 offen offset:{i*128}")
    a("s_branch L_h_ld_done\nL_h_ldcg:")
    srd(a, 40, 68, 64 * 2)
    a("v_and_b32 v10, 3, v3\nv_lshlrev_b32 v10, 1, v10")
    for j in range(16):
        a(f"buffer_load_ushort v{16+j}, v10, s[40:43], 0 offen offset:{j*8}")
    a("L_h_ld_done:")
    n1 = prefetch(o.get("pfa", ""), 2, HT, 9)
    a(f"""
s_cmp_lg_u32 s{sWAVE}, {NW-1}
s_cbranch_scc1 L_h_noepoch
s_mov_b32 s{sCNT}, 0
s_waitcnt vmcnt({n1 + 2})
L_h_poll:
v_readfirstlane_b32 s{sT0}, v15
s_cmp_lg_u32 s{sT0}, 0
s_cbranch_scc1 L_h_polled
s_add_u32 s{sCNT}, s{sCNT}, 1
s_cmp_ge_u32 s{sCNT}, {SPIN}
s_cbranch_scc1 L_end
buffer_load_dwordx2 v[14:15], v12, s[{S_A}:{S_A+3}], 0 offen sc1
s_waitcnt vmcnt(0)
s_branch L_h_poll
L_h_polled:
v_mov_b32 v12, {EPOCH}
v_and_b32 v15, 0xff, v15
ds_write_b64 v12, v[14:15]
L_h_noepoch:
s_waitcnt lgkmcnt(0)
s_barrier
s_waitcnt vmcnt({n1})
v_lshlrev_b32 v9, 4, v3
s_cmp_eq_u32 s{sWAVE}, {PW}
s_cbranch_scc1 L_h_dow
s_cmp_eq_u32 s{sWAVE}, {PW+1}
s_cbranch_scc1 L_h_docg
""")
    a(f"""
v_lshrrev_b32 v4, 7, v10
v_mul_u32_u24 v5, {MIXROW}, v4
v_and_b32 v6, 7, v3
v_lshl_add_u32 v5, v6, 3, v5
v_add_u32 v5, {CMIX}, v5
s_mov_b32 s8, 0x05040100
s_mov_b32 s9, 0x07060302
""")
    for half in range(2):
        q = 16 + 4 * half
        a(f"""
v_perm_b32 v24, v{q+1}, v{q}, s8
v_perm_b32 v25, v{q+3}, v{q+2}, s8
v_perm_b32 v26, v{q+1}, v{q}, s9
v_perm_b32 v27, v{q+3}, v{q+2}, s9
ds_write_b64 v5, v[24:25] offset:{half*32*MIXROW}
ds_write_b64 v5, v[26:27] offset:{half*32*MIXROW + 64}
""")
    a(f"""
s_branch L_h_const_done
L_h_dow:
s_mov_b32 s8, {LOG2E:#x}
v_add_u32 v9, {CW}, v9
""")
    for i in range(8):
        a(f"""
v_lshlrev_b32 v{24+i}, 16, v{16+i}
v_and_b32 v{32+i}, 0xffff0000, v{16+i}
v_mul_f32 v{24+i}, s8, v{24+i}
v_mul_f32 v{32+i}, s8, v{32+i}
""")
    for j in range(8):
        a(f"v_cvt_pk_bf16_f32 v{40+j}, v{24+2*j}, v{25+2*j}")
    a("ds_write_b128 v9, v[40:43]\nds_write_b128 v9, v[44:47] offset:1024")
    if HILO:
        for j in range(8):
            a(f"""
v_lshlrev_b32 v6, 16, v{40+j}
v_and_b32 v7, 0xffff0000, v{40+j}
v_sub_f32 v{24+2*j}, v{24+2*j}, v6
v_sub_f32 v{25+2*j}, v{25+2*j}, v7
v_cvt_pk_bf16_f32 v{16+j}, v{24+2*j}, v{25+2*j}
""")
        a("ds_write_b128 v9, v[16:19] offset:2048\nds_write_b128 v9, v[20:23] offset:3072")
    a(f"s_branch L_h_const_done\nL_h_docg:\nv_add_u32 v9, {CCG}, v9")
    for j in range(8):
        a(f"v_lshl_or_b32 v{32+j}, v{17+2*j}, 16, v{16+2*j}")
    a(f"""
ds_write_b128 v9, v[32:35]
ds_write_b128 v9, v[36:39] offset:1024
L_h_const_done:
""")
    a("s_waitcnt lgkmcnt(0)\ns_barrier")

    a("L_join:")
    stamp("join")
    a(f"""
s_and_b32 s{sB}, s2, 7
s_lshl_b32 s{sB}, s{sB}, 5
s_lshr_b32 s3, s2, 3
s_add_u32 s{sB}, s{sB}, s3
v_and_b32 v{vF}, 63, v0
v_lshlrev_b32 v{vF+1}, 4, v{vF}
v_add_u32 v{vF+1}, {CW}, v{vF+1}
v_mov_b32 v{vF+2}, {EPOCH}
ds_read_b64 v[{vF+4}:{vF+5}], v{vF+2}
""")
    for q in range(4 if HILO else 2):
        a(f"ds_read_b128 v[{vW+4*q}:{vW+4*q+3}], v{vF+1} offset:{q*1024}")
    for q in range(2):
        a(f"ds_read_b128 v[{vCG+4*q}:{vCG+4*q+3}], v{vF+1} offset:{CCG - CW + q*1024}")
    lane, tmp = vF, vF + 3
    if TID:
        a(f"""s_sub_u32 s{S_A}, s{S_X}, 512
s_subb_u32 s{S_A+1}, s{S_X+1}, 0
s_or_b32 s{S_A+1}, s{S_A+1}, {16 << 16:#x}
s_mov_b32 s{S_A+2}, {N_NODES * 512 + 512}
s_mov_b32 s{S_A+3}, 0x800000""")
    a(f"""
s_mul_i32 s{sN0}, s{sB}, 625
s_add_u32 s{sNN}, s{sN0}, {625+15}
s_add_u32 s{sN0}, s{sN0}, 15
s_lshr_b32 s{sN0}, s{sN0}, 4
s_lshr_b32 s{sNN}, s{sNN}, 4
s_mov_b32 s{sK}, 0
s_mov_b32 s{sQ}, 0
s_mov_b32 s{sSPLIT}, 0
s_mov_b32 s{sEMASK}, {o.get('emask', 0x01ffffff):#x}
v_and_b32 v{tmp}, 31, v{lane}
v_lshlrev_b32 v{vXL}, 4, v{tmp}
v_lshlrev_b32 v{vAL}, 3, v{lane if o.get('fold') else tmp}
v_add_u32 v{vAL}, {ACC}, v{vAL}
v_lshrrev_b32 v{vEH}, 5, v{lane}
v_mul_u32_u24 v{vCX}, {NP*4}, v{vEH}
v_and_b32 v{tmp}, 15, v{lane}
v_lshl_add_u32 v{vCX}, v{tmp}, 2, v{vCX}
v_mul_u32_u24 v{vCY}, {NP}, v{vEH}
v_lshlrev_b32 v{vEH}, 4, v{vEH}
v_bfe_u32 v{vCE}, v{lane}, 2, 1
v_mul_u32_u24 v{vCE}, {NP}, v{vCE}
v_bfe_u32 v{tmp}, v{lane}, 3, 2
v_lshl_add_u32 v{vCE}, v{tmp}, 2, v{vCE}
v_and_b32 v{tmp}, 3, v{lane}
v_add_lshl_u32 v{vCE}, v{vCE}, v{tmp}, 2
v_and_b32 v{tmp}, 1, v{lane}
v_lshl_add_u32 v{vCY}, v{tmp}, 3, v{vCY}
v_bfe_u32 v{tmp}, v{lane}, 2, 3
v_add_lshl_u32 v{vCY}, v{vCY}, v{tmp}, 3
s_waitcnt lgkmcnt(0)
v_readfirstlane_b32 s{sTAGH}, v{vF+4}
v_readfirstlane_b32 s{sTAGL}, v{vF+5}
""")
    if ACC_EARLY < 40 * ACC_NODE:
        lds_fill(ACC + ACC_EARLY, 40 * ACC_NODE - ACC_EARLY, 0, 0, T, vF)
    a("L_round:")
    slot_fills(0, T, vF)
    a(f"""
v_lshrrev_b32 v{vS3}, 4, v0
v_and_b32 v{vF}, 3, v0
v_lshl_add_u32 v{vF}, v{vF}, 6, v{vS3}
s_lshl_b32 s3, s{sB}, 3
v_lshl_add_u32 v{vTB+2}, v{vF}, 11, s3
s_mov_b32 s{sPM}, 0x000f000f
s_mov_b32 s{sPM+1}, 0x000f000f
""")
    if o.get("sl0"):
        a(f"s_sleep {o['sl0']}")
    prefetch_waves(o.get("pfp", ""), vF + 8, "p")
    poll = f"""
s_mov_b64 exec, s[{sPM}:{sPM+1}]
buffer_load_dwordx2 v[{vTB}:{vTB+1}], v{vTB+2}, s[{S_TAB}:{S_TAB+3}], 0 offen sc1
s_mov_b64 exec, -1
"""
    a(f"""
v_mov_b32 v{vONE}, 1
v_and_b32 v{vS2}, 15, v0
s_lshl_b32 s{sLIM}, s{sK}, 5
v_add_u32 v{vS2}, s{sLIM}, v{vS2}
s_add_u32 s{sLIM}, s{sLIM}, 32
v_add_u32 v{vF+5}, 16, v{vS2}
v_mul_u32_u24 v{vWC}, {CH}, v{vS3}
""")
    for g in range(NG):
        if g:
            a(f"v_add_u32 v{vWC+g}, {g*NW*4*CH}, v{vWC}")
            a(f"v_add_u32 v{vTB+4+g}, {g*NW*4*CS}, v{vTB+4}")
        else:
            a(f"v_mul_u32_u24 v{vTB+4}, {CS}, v{vS3}\nv_mad_u32_u24 v{vTB+4}, v{vS2}, {REC}, v{vTB+4}")
    a(f"""
v_mov_b32 v{vF+6}, {H2}
s_mov_b32 s{sMORE}, 0
s_mov_b32 s{sCNT}, 0
s_mov_b32 s{sPEND}, 15
s_mov_b32 s{sISS}, 0
s_mov_b32 s{sMP}, {MP}
s_waitcnt lgkmcnt(0)
s_barrier
""")
    a(poll)
    stamp("poll0")
    a(f"""
L_poll:
s_mov_b32 s{sNEW}, 0
s_cmp_eq_u32 s{sPEND}, 0
s_waitcnt vmcnt(0)
s_cbranch_scc1 L_ranks
s_mov_b64 exec, s[{sPM}:{sPM+1}]
v_lshrrev_b32 v{vF}, 24, v{vTB}
v_cmp_ne_u32 s[{sPM}:{sPM+1}], s{sTAGH}, v{vTB+1}
v_cmp_ne_u32 vcc, s{sTAGL}, v{vF}
s_mov_b64 exec, -1
s_or_b64 s[{sPM}:{sPM+1}], s[{sPM}:{sPM+1}], vcc
s_or_b32 s{sT0}, s{sPM}, s{sPM+1}
s_lshr_b32 s{sT1}, s{sT0}, 16
s_or_b32 s{sT0}, s{sT0}, s{sT1}
s_andn2_b32 s{sNEW}, s{sPEND}, s{sT0}
s_and_b32 s{sPEND}, s{sPEND}, s{sT0}
""")
    for g in range(NG):
        m0, m1 = sMASK + 4 * g, sMASK + 4 * g + 2
        a(f"""
s_bitcmp0_b32 s{sNEW}, {g}
s_cbranch_scc1 L_is{g}
v_mov_b32_dpp v{vF}, v{vTB} row_newbcast:{g} row_mask:0xf bank_mask:0xf
s_and_b32 s{sT0}, s{sSPLIT}, {g}
s_cmp_eq_u32 s{sT0}, s{sQ}
s_cselect_b64 s[{sT0}:{sT1}], -1, 0
v_bfe_u32 v{vF+1}, v{vF}, 12, 12
v_and_b32 v{vF}, 0xfff, v{vF}
v_cmp_lt_u32 s[{m0}:{m0+1}], v{vS2}, v{vF+1}
v_cmp_lt_u32 s[{m1}:{m1+1}], v{vF+5}, v{vF+1}
v_cmp_lt_u32 vcc, s{sLIM}, v{vF+1}
v_mad_u32_u24 v{vF}, v{vF}, {REC}, v{vTB+4+g}
s_and_b64 s[{m1}:{m1+1}], s[{m1}:{m1+1}], s[{sT0}:{sT1}]
s_cmp_lg_u64 vcc, 0
s_cselect_b32 s{sMORE}, 1, s{sMORE}
s_and_b64 s[{m0}:{m0+1}], s[{m0}:{m0+1}], s[{sT0}:{sT1}]
s_cbranch_scc0 L_is{g}
s_mov_b64 exec, s[{m0}:{m0+1}]
buffer_load_dwordx3 v[{vEN+8*g}:{vEN+8*g+2}], v{vF}, s[{S_ENT}:{S_ENT+3}], 0 offen sc1
s_cmp_eq_u64 s[{m1}:{m1+1}], 0
s_cbranch_scc1 L_it{g}
s_mov_b64 exec, s[{m1}:{m1+1}]
buffer_load_dwordx3 v[{vEN+8*g+4}:{vEN+8*g+6}], v{vF}, s[{S_ENT}:{S_ENT+3}], 0 offen offset:{16*REC} sc1
L_it{g}:
s_mov_b64 exec, -1
L_is{g}:
""")
    a(f"""
s_cmp_eq_u32 s{sPEND}, 0
s_cbranch_scc1 L_ranks
s_add_u32 s{sCNT}, s{sCNT}, 1
s_cmp_ge_u32 s{sCNT}, {SPIN}
s_cbranch_scc1 L_end
""")
    if o.get("sl1"):
        a(f"s_sleep {o['sl1']}")
    a(poll)
    a("L_ranks:")
    def for_parts(body, tag, groups=range(NG)):
        for g in groups:
            for p in range(2):
                i = 2 * g + p
                a(f"s_mov_b64 exec, s[{sMASK+2*i}:{sMASK+2*i+1}]")
                if p:
                    a(f"s_cbranch_execz L_{tag}{g}")
                body(g, i, vEN + 4 * i)
                if p:
                    a(f"L_{tag}{g}:")
        a("s_mov_b64 exec, -1")
    def rank_body(g, i, e):
        a(f"v_bfe_u32 v{vF+1}, v{e+2}, 14, 6\nv_and_b32 v{vF}, 0x3fff, v{e+2}")
        if NPH > 1:
            a(f"""
v_mul_u32_u24 v{vF+2}, s{sMP}, v{vF}
v_lshrrev_b32 v{vF+2}, {SP}, v{vF+2}
v_mad_u32_u24 v{vF+2}, v{vF+2}, 40, v{vF+1}
v_lshl_add_u32 v{vKY+i}, v{vF+2}, 2, v{vF+6}
""")
        else:
            a(f"v_lshl_add_u32 v{vKY+i}, v{vF+1}, 2, v{vF+6}")
        a(f"""
ds_add_rtn_u32 v{vRK+i}, v{vKY+i}, v{vONE}
v_lshrrev_b32 v{e+3}, 20, v{e+2}
v_add_lshl_u32 v{e+3}, v{e+3}, v{vWC+g}, 5
v_lshl_or_b32 v{e+3}, v{vF+1}, 25, v{e+3}
""")
        if o.get("xmask"):
            a(f"v_and_b32 v{vF}, {o['xmask']:#x}, v{vF}")
        a(f"v_add_lshl_u32 v{e+2}, v{vF}, 1, 9" if TID else f"v_lshlrev_b32 v{e+2}, 9, v{vF}")
    for g in range(NG):
        a(f"s_bitcmp0_b32 s{sISS}, {g}\ns_cbranch_scc1 L_rs{g}")
        for_parts(rank_body, "rk", [g])
        a(f"L_rs{g}:")
    a(f"""
s_mov_b32 s{sISS}, s{sNEW}
s_or_b32 s{sT0}, s{sPEND}, s{sISS}
s_cbranch_scc1 L_poll
s_cmp_eq_u32 s{sMORE}, 0
s_cbranch_scc1 L_nomore
v_mov_b32 v{vF}, {MISC+8}
ds_write_b32 v{vF}, v{vONE}
L_nomore:
s_brev_b32 s{sT1}, 1
s_waitcnt lgkmcnt(0)
""")
    prefetch_waves(o.get("pfr", ""), vF + 8, "r")
    stamp("rank")
    a("s_barrier")
    stamp("F2")
    prefetch_waves(o.get("pfd", ""), vF + 8, "d")
    a(f"""
s_cmp_lg_u32 s{sWAVE}, 0
s_cbranch_scc1 L_noscan
v_lshl_add_u32 v{vF+9}, v0, 4, v{vF+6}
ds_read_b128 v[{vF}:{vF+3}], v{vF+9}
s_waitcnt lgkmcnt(0)
""")
    for j in range(4):
        a(f"v_add_lshl_u32 v{vF+j}, v{vF+j}, 1, 1\nv_and_b32 v{vF+j}, -4, v{vF+j}")
    a(f"""
v_add_u32 v{vF+5}, v{vF}, v{vF+1}
v_add_u32 v{vF+6}, v{vF+5}, v{vF+2}
v_add_u32 v{vF+7}, v{vF+6}, v{vF+3}
v_mov_b32 v{vF+8}, v{vF+7}
""")
    wave_scan(a, vF + 7)
    a(f"""
v_sub_u32 v{vF+4}, v{vF+7}, v{vF+8}
v_add_u32 v{vF+7}, v{vF+4}, v{vF+6}
v_add_u32 v{vF+6}, v{vF+4}, v{vF+5}
v_add_u32 v{vF+5}, v{vF+4}, v{vF}
ds_write_b128 v{vF+9}, v[{vF+4}:{vF+7}]
L_noscan:
s_movk_i32 s{sT0}, {NP*4 - 2}
""")
    def pre_body(g, i, e):
        a(f"""
v_add_u32 v{vF+10}, -1, v{vRK+i}
v_and_or_b32 v{e+3}, v{vF+10}, s{sT1}, v{e+3}
v_and_b32 v{vF+10}, 1, v{vRK+i}
v_lshlrev_b32 v{vRK+i}, 1, v{vRK+i}
v_mad_u32_u24 v{vRK+i}, v{vF+10}, s{sT0}, v{vRK+i}
""")
        if TID:
            a(f"v_lshlrev_b32 v{vF+10}, 9, v{vF+10}\nv_sub_u32 v{e+2}, v{e+2}, v{vF+10}")
    for_parts(pre_body, "pr")
    a(f"""
v_mov_b32 v{vF}, {H2+1020}
s_waitcnt lgkmcnt(0)
""")
    stamp("scan")
    a("s_barrier")
    stamp("F3")
    a(f"""
ds_read_b32 v{vF+1}, v{vF}
ds_read_b32 v{vF+2}, v{vF} offset:12
""")
    for_parts(lambda g, i, e: a(f"ds_read_b32 v{vKY+i}, v{vKY+i}"), "st")
    a(f"""
s_waitcnt lgkmcnt(0)
v_readfirstlane_b32 s{sNBLK}, v{vF+1}
v_readfirstlane_b32 s{sMORE}, v{vF+2}
s_cmp_le_u32 s{sNBLK}, {CAP*2}
s_cbranch_scc1 L_fits
s_mov_b32 s{sSPLIT}, 3
s_barrier
s_branch L_round
L_fits:
""")
    stamp("fits")
    def scat_body(g, i, e):
        a(f"""
v_add_u32 v{vF}, v{vKY+i}, v{vRK+i}
v_lshlrev_b32 v{vF+3}, 1, v{vF}
ds_write_b32 v{vF}, v{e+2} offset:{XO}
ds_write_b32 v{vF}, v{e+3} offset:{EW}
ds_write_b64 v{vF+3}, v[{e}:{e+1}] offset:{YY}
""")
    for_parts(scat_body, "sc")
    a(f"""
v_mov_b32 v{vF+2}, {PAD_E | 0x80000000:#x}
s_add_u32 s{sNBLK}, s{sNBLK}, 63
s_lshr_b32 s{sNBLK}, s{sNBLK}, 6
ds_write_b32 v{vF+1}, v{vF+2} offset:{EW}
s_waitcnt lgkmcnt(0)
""")
    stamp("scat")
    a("s_barrier")
    stamp("sort")
    if STAMPS:
        a("s_memtime s[96:97]\ns_waitcnt lgkmcnt(0)")
    main_start = len(a.L)

    def rho(step):
        return 8 * (step // 4) + step % 4
    vXC, vXN = vXO, vXO + 1
    def block_reads(sreg):
        a(f"""
s_lshl_b32 s{sT0}, s{sreg}, 6
s_lshl_b32 s{sT1}, s{sreg}, 7
v_add_u32 v{vEWN}, s{sT0}, v{vCE}
v_add_u32 v{vXN}, s{sT0}, v{vCX}
v_add_u32 v{vY}, s{sT1}, v{vCY}
ds_read_b32 v{vEWN}, v{vEWN} offset:{EW}
ds_read_b32 v{vXN}, v{vXN} offset:{XO}
ds_read_b64 v[{vY}:{vY+1}], v{vY} offset:{YY}
""")
    def x_load(step):
        src = vXN if step >= 16 else vXC
        xo = vXO + 2 + (step & 1)
        d = vX + 4 * (step % D)
        return [f"v_add_u32_dpp v{xo}, v{src}, v{vXL} row_newbcast:{step % 16} row_mask:0xf bank_mask:0xf",
                f"buffer_load_dwordx4 v[{d}:{d+3}], v{xo}, s[{S_X}:{S_X+3}], 0 offen"]
    nbatch = [0]
    def ef_issue(sreg=sNXT):
        kb = o.get("efbatch")
        if kb:
            nbatch[0] += 1
            a(f"s_lshr_b32 s{sT1}, s2, 3\ns_xor_b32 s{sT0}, s{sreg}, s{sT1}\ns_and_b32 s{sT0}, s{sT0}, {kb-1}\ns_cbranch_scc1 L_nb{nbatch[0]}")
            a(f"s_and_b32 s{sT0}, s{sreg}, {-kb}\ns_lshl_b32 s{sT0}, s{sT0}, 6\nv_add_u32 v{vTM}, s{sT0}, v{vCE}")
            for h in range(0, kb, 8):
                n = min(8, kb - h)
                for i in range(n):
                    a(f"ds_read_b32 v{114+i}, v{vTM} offset:{EW + 64*(h+i)}")
                a("s_waitcnt lgkmcnt(0)")
                for i in range(n):
                    a(f"v_and_or_b32 v{114+i}, v{114+i}, s{sEMASK}, v{vEH}")
                for i in range(n):
                    a(f"buffer_load_dwordx4 v[{vEF}:{vEF+3}], v{114+i}, s[{S_EF}:{S_EF+3}], 0 offen")
            a(f"L_nb{nbatch[0]}:\nv_cmp_gt_i32 s[{sFMN}:{sFMN+1}], 0, v{vEWN}")
            return
        a(f"""
v_and_or_b32 v{vEF}, v{vEWN}, s{sEMASK}, v{vEH}
v_cmp_gt_i32 s[{sFMN}:{sFMN+1}], 0, v{vEWN}
buffer_load_dwordx4 v[{vEF}:{vEF+3}], v{vEF}, s[{S_EF}:{S_EF+3}], 0 offen {o.get('efmod', '')}
""")
    KT = [vU, vU + 4, vU + 16, vU + 20]
    def k_mfma():
        return [f"v_mfma_f32_4x4x4_16b_bf16 v[{KT[i]}:{KT[i]+3}], v[{vY}:{vY+1}], v[{vCG+2*i}:{vCG+2*i+1}], 0" for i in range(4)]
    def k_cvt(j):
        return [f"v_cvt_pk_bf16_f32 v{vK+2*j}, v{KT[0]+j}, v{KT[1]+j}",
                f"v_cvt_pk_bf16_f32 v{vK+2*j+1}, v{KT[2]+j}, v{KT[3]+j}"]
    def u_mfma():
        out = [f"v_mfma_f32_32x32x16_bf16 v[{vU+16*p}:{vU+16*p+15}], v[{vEF}:{vEF+3}], v[{vW+4*p}:{vW+4*p+3}], 0" for p in range(2)]
        if HILO:
            out += [f"v_mfma_f32_32x32x16_bf16 v[{vU+16*p}:{vU+16*p+15}], v[{vEF}:{vEF+3}], v[{vW+8+4*p}:{vW+8+4*p+3}], v[{vU+16*p}:{vU+16*p+15}]" for p in range(2)]
        return out
    def silu_ops(d):
        u = vU
        E = [f"v_exp_f32 v{vT+2*p+j}, -v{u+16*p+2*d+j}" for p in range(2) for j in range(2)]
        A = [f"v_pk_add_f32 v[{vT+2*p}:{vT+2*p+1}], v[{vT+2*p}:{vT+2*p+1}], 1.0 op_sel_hi:[1,0]" for p in range(2)]
        R = [f"v_rcp_f32 v{vT+2*p+j}, v{vT+2*p+j}" for p in range(2) for j in range(2)]
        M = [f"v_pk_mul_f32 v[{u+16*p+2*d}:{u+16*p+2*d+1}], v[{u+16*p+2*d}:{u+16*p+2*d+1}], v[{vT+2*p}:{vT+2*p+1}]" for p in range(2)]
        return E, A, R, M
    def fma_ops(step, first=False):
        d, j = divmod(step, 2)
        out = []
        for p in range(2):
            rr = vU + 16 * p + 2 * d
            for hh in range(2):
                t = vTP + 4 * p + 2 * hh
                c = vACC + 4 * p + 2 * hh
                if first:
                    out.append(f"v_pk_mul_f32 v[{c}:{c+1}], v[{t}:{t+1}], v[{rr}:{rr+1}] op_sel:[0,{j}] op_sel_hi:[1,{j}]")
                else:
                    out.append(f"v_pk_fma_f32 v[{c}:{c+1}], v[{t}:{t+1}], v[{rr}:{rr+1}], v[{c}:{c+1}] op_sel:[0,{j},0] op_sel_hi:[1,{j},1]")
        return out
    def tp_ops(step):
        out = []
        for p in range(2):
            t = vTP + 4 * p
            x = vX + 4 * (step % D) + 2 * p
            k = vK + 2 * (step // 8)
            out.append(f"v_mfma_f32_4x4x4_16b_bf16 v[{t}:{t+3}], v[{k}:{k+1}], v[{x}:{x+1}], 0 cbsz:3 abid:{step%8}")
        return out
    def flush_body(step):
        if o.get("fold"):
            a(f"v_readlane_b32 s{sT0}, v{vEWC}, {rho(step)}\ns_nop 0")
            for oo in range(4):
                a(f"v_permlane32_swap_b32 v{vACC+oo}, v{vACC+4+oo}")
                if oo == 0:
                    a(f"s_bfe_u32 s{sT0}, s{sT0}, 0x60019\ns_mul_i32 s{sT0}, s{sT0}, {ACC_NODE}")
            a(f"""
v_add_u32 v{vQ}, s{sT0}, v{vAL}
v_add_f32 v{vACC}, v{vACC}, v{vACC+4}
v_add_f32 v{vACC+1}, v{vACC+1}, v{vACC+5}
v_cvt_f64_f32 v[{vACC+4}:{vACC+5}], v{vACC}
v_cvt_f64_f32 v[{vACC}:{vACC+1}], v{vACC+1}
ds_add_f64 v{vQ}, v[{vACC+4}:{vACC+5}]
ds_add_f64 v{vQ}, v[{vACC}:{vACC+1}] offset:{ACC_ROW}
v_add_f32 v{vACC+2}, v{vACC+2}, v{vACC+6}
v_add_f32 v{vACC+3}, v{vACC+3}, v{vACC+7}
v_cvt_f64_f32 v[{vACC+6}:{vACC+7}], v{vACC+2}
v_cvt_f64_f32 v[{vACC+2}:{vACC+3}], v{vACC+3}
ds_add_f64 v{vQ}, v[{vACC+6}:{vACC+7}] offset:{2*ACC_ROW}
ds_add_f64 v{vQ}, v[{vACC+2}:{vACC+3}] offset:{3*ACC_ROW}
""")
            return
        a(f"""
v_readlane_b32 s{sT0}, v{vEWC}, {rho(step)}
v_cvt_f64_f32 v[{vTM}:{vTM+1}], v{vACC}
s_bfe_u32 s{sT0}, s{sT0}, 0x60019
s_mul_i32 s{sT0}, s{sT0}, {ACC_NODE}
v_add_u32 v{vQ}, s{sT0}, v{vAL}
""")
        for i in range(0, 8, 2):
            off = (i % 4) * ACC_ROW + (i // 4) * 256
            if i:
                a(f"v_cvt_f64_f32 v[{vTM}:{vTM+1}], v{vACC+i}")
            a(f"""
v_cvt_f64_f32 v[{vACC+i}:{vACC+i+1}], v{vACC+i+1}
ds_add_f64 v{vQ}, v[{vTM}:{vTM+1}] offset:{off}
ds_add_f64 v{vQ}, v[{vACC+i}:{vACC+i+1}] offset:{off + ACC_ROW}
""")

    a(f"""
s_cmp_ge_u32 s{sWAVE}, s{sNBLK}
s_cbranch_scc1 L_done
s_cmp_ge_u32 s{sWAVE}, {NC}
s_cbranch_scc1 {"L_spf" if o.get("spf") else "L_done"}
s_setprio 3
""")
    block_reads(sWAVE)
    a("s_waitcnt lgkmcnt(0)")
    ef_issue(sWAVE)
    for s in range(D):
        emit(x_load(16 + s))
    emit(k_mfma())
    a("s_nop 4")
    emit(k_cvt(0) + k_cvt(1))
    a(f"s_waitcnt vmcnt({D}) lgkmcnt(0)")
    emit(u_mfma())
    a("s_nop 7\ns_branch L_enter")

    G1, E0 = G0 + 2, G0 + 4
    PLV = o.get("plv", 4)
    TPR = {4: {}, 3: {G1: 0}, 2: {G1: 1, 11: 0}, 1: {G1: 2, 9: 1, 12: 0}, 0: {}}[PLV]
    XA = 12 - D
    assert E0 + D <= 15 and E0 <= 8 and E0 <= 16 - D and not TID
    def body(tail):
        tag = "t" if tail else ""
        for s in range(G1 if tail else 0, 16):
            d, j = divmod(s, 2)
            M = tp_ops(s)
            TR, PK = [], []
            if d < 7:
                E, A, R, U = silu_ops(d + 1)
                TR, PK = (R, U) if j else (E, A)
            loads = not (tail and s >= 16 - D)
            if tail and s in TPR:
                a(f"s_setprio {TPR[s]}")
            if not (tail and s == G1):
                if tail:
                    a(f"s_waitcnt vmcnt({min(D - 1, 15 - s)})")
                else:
                    a(f"s_waitcnt vmcnt({D if E0 < s < E0 + D and not o.get('efbatch') else D - 1})")
                a(M[0])
                emit(TR[:1])
                a(M[1])
                if s in (9, 10) and not tail:
                    KM = k_mfma()[2 * (s - 9):2 * (s - 9) + 2]
                    a(TR[1]); a(KM[0]); a(TR[2]); a(KM[1]); a(TR[3])
                else:
                    emit(TR[1:])
                if s == 15 and not tail:
                    emit(k_cvt(1))
                if s == 12 and not tail:
                    emit(k_cvt(0))
                if s == G1 or (s == E0 and not tail):
                    a("s_waitcnt lgkmcnt(0)")
                if s == G1:
                    a(f"""v_readfirstlane_b32 s{sNXT}, v{vEWN}
s_add_u32 s{sNXT}, s{sNXT}, {NC}
s_cmp_ge_u32 s{sNXT}, s{sNBLK}
s_cbranch_scc1 L_tail""")
                    block_reads(sNXT)
            if s == E0 and not tail:
                ef_issue()
            if loads:
                emit(x_load(s + D))
            if s == G0:
                a(f"""
v_mov_b32 v{vEWN}, {MISC}
v_mov_b32 v{vY}, 1
s_mov_b64 exec, 1
ds_add_rtn_u32 v{vEWN}, v{vEWN}, v{vY}
s_mov_b64 exec, -1
""")
            if s == 0:
                emit(fma_ops(0, True))
            else:
                if s >= 14:
                    a("s_nop 1" if tail or TID else "s_nop 0" if s == 14 else "")
                a(f"s_bitcmp1_b32 s{sFM}, {rho(s)}\ns_cbranch_scc1 L_fl{tag}{s}")
                emit(fma_ops(s))
                a(f"L_fr{tag}{s}:")
            emit(PK)
    def stubs(tail):
        tag = "t" if tail else ""
        for s in range(G1 if tail else 1, 16):
            a(f"L_fl{tag}{s}:")
            flush_body(s - 1)
            emit(fma_ops(s, True))
            a(f"s_branch L_fr{tag}{s}")
    a("L_block:")
    body(False)
    emit(u_mfma())
    flush_body(15)
    if PLV > 1:
        a(f"s_mul_i32 s{sT0}, s{sNXT}, {PLV}")
        for lvl in range(2, 3 - PLV, -1):
            a(f"s_sub_u32 s{sT0}, s{sT0}, s{sNBLK}\ns_cbranch_scc1 L_enter\ns_setprio {lvl}")
    a(f"""
L_enter:
v_mov_b32 v{vEWC}, v{vEWN}
v_mov_b32 v{vXC}, v{vXN}
s_mov_b32 s{sFM}, s{sFMN}
""")
    E, A, R, U = silu_ops(0)
    emit(E)
    a("s_nop 0")
    emit(A + R)
    a("s_nop 0")
    emit(U)
    a("s_branch L_block")
    if o.get("spf"):
        stride, nb = o["spf"], o.get("spn", 32)
        per = 80000 // (NW - NC)
        a(f"""L_spf:
s_mul_i32 s{sT0}, s2, 80000
s_sub_u32 s{sT1}, s{sWAVE}, {NC}
s_mul_i32 s{sT1}, s{sT1}, {per}
s_add_u32 s{sT0}, s{sT0}, s{sT1}
s_and_b32 s{sT0}, s{sT0}, -128
s_add_u32 s{sT1}, s{sT0}, {per}
s_min_u32 s{sT1}, s{sT1}, {N_EDGES*32 - nb*stride}
L_spf_loop:""")
        for j in range(nb):
            a(f"s_load_dword s{sFMN}, s[{S_EF}:{S_EF+1}], s{sT0} offset:{stride*j}")
        a(f"""s_add_u32 s{sT0}, s{sT0}, {nb*stride}
s_waitcnt lgkmcnt(0)
s_cmp_lt_u32 s{sT0}, s{sT1}
s_cbranch_scc1 L_spf_loop
s_branch L_done""")
    stubs(False)
    stubs(True)
    a("L_tail:")
    body(True)
    flush_body(15)
    if o.get("drop"):
        import re
        pat = re.compile(o["drop"].replace(" ", "|"))
        a.L[main_start:] = [l for l in a.L[main_start:] if not pat.search(l)]

    vB = base
    vEA = vB + 32
    vPA = vEA + 32
    vD = vPA + 8
    assert vD + 16 <= vPF
    a(f"""
L_done:
s_setprio 0
s_waitcnt vmcnt(0) lgkmcnt(0)
""")
    if o.get("wavedone"):
        a("s_memrealtime s[8:9]\ns_waitcnt lgkmcnt(0)")
        srd(a, 56, 10, 0x20000, WS_STAMP + 0x10000)
        a(f"""s_lshl_b32 s3, s2, 4
s_add_u32 s3, s3, s{sWAVE}
s_lshl_b32 s3, s3, 3
v_mov_b32 v{vTM}, s8
v_mov_b32 v{vTM+1}, s{sNBLK}
v_mov_b32 v{vQ}, s3
s_mov_b64 exec, 1
buffer_store_dwordx2 v[{vTM}:{vTM+1}], v{vQ}, s[56:59], 0 offen
s_mov_b64 exec, -1""")
    a(f"""
s_cmp_eq_u32 s{sQ}, s{sSPLIT}
s_cbranch_scc1 L_lastq
s_add_u32 s{sQ}, s{sQ}, 1
s_barrier
s_branch L_round
L_lastq:
s_cmp_eq_u32 s{sMORE}, 0
s_cbranch_scc1 L_epi
s_add_u32 s{sK}, s{sK}, 1
s_mov_b32 s{sQ}, 0
s_mov_b32 s{sSPLIT}, 0
s_barrier
s_branch L_round
L_epi:
v_and_b32 v4, 63, v0
v_lshrrev_b32 v2, 4, v4
v_bfe_u32 v3, v4, 2, 2
v_lshl_add_u32 v2, v2, 3, v3
v_mul_u32_u24 v2, {2*MIXROW}, v2
v_and_b32 v3, 3, v4
v_lshl_add_u32 v2, v3, 3, v2
v_add_u32 v2, {CMIX}, v2
""")
    for t in range(4):
        for ks in range(2):
            for q in range(2):
                d = vB + 8 * t + 4 * ks + 2 * q
                a(f"ds_read_b64_tr_b16 v[{d}:{d+1}], v2 offset:{(8*q + ks)*MIXROW + (t&1)*64 + (t>>1)*32}")
    a(f"""
v_and_b32 v5, 15, v4
v_mul_u32_u24 v2, {ACC_ROW}, v5
v_lshrrev_b32 v3, 4, v4
v_lshl_add_u32 v2, v3, 6, v2
s_mul_i32 s{sT0}, s{sWAVE}, {4*ACC_NODE}
s_add_u32 s{sT0}, s{sT0}, {ACC}
v_add_u32 v2, s{sT0}, v2
s_lshl_b32 s{sT0}, s{sWAVE}, 2
s_add_u32 s{sT0}, s{sT0}, s{sN0}
v_add_u32 v3, s{sT0}, v3
v_cmp_gt_u32 vcc, s{sNN}, v3
v_lshlrev_b32 v3, 9, v3
v_lshl_add_u32 v3, v5, 4, v3
s_mov_b32 s{sT0}, {LN2:#x}
s_barrier
""")
    stamp("main")
    if STAMPS:
        a("s_memtime s[98:99]")
    a(f"""
s_cmp_ge_u32 s{sWAVE}, 10
s_cbranch_scc1 L_end
""")
    for ks in range(2):
        for hh in range(4):
            a(f"ds_read_b128 v[{vEA+16*ks+4*hh}:{vEA+16*ks+4*hh+3}], v2 offset:{ks*256+hh*16}")
    a("s_waitcnt lgkmcnt(0)")
    for j in range(16):
        a(f"v_cvt_f32_f64 v{vEA+j}, v[{vEA+2*j}:{vEA+2*j+1}]")
    for j in range(16):
        a(f"v_mul_f32 v{vEA+j}, s{sT0}, v{vEA+j}")
    for j in range(8):
        a(f"v_cvt_pk_bf16_f32 v{vPA+j}, v{vEA+2*j}, v{vEA+2*j+1}")
    a("s_nop 1")
    for ks in range(2):
        for t in range(4):
            c = "0" if ks == 0 else f"v[{vD+4*t}:{vD+4*t+3}]"
            a(f"v_mfma_f32_16x16x32_bf16 v[{vD+4*t}:{vD+4*t+3}], v[{vPA+4*ks}:{vPA+4*ks+3}], v[{vB+8*t+4*ks}:{vB+8*t+4*ks+3}], {c}")
    a("s_nop 7")
    for j in range(8):
        a(f"v_cvt_pk_bf16_f32 v{vEA+j}, v{vD+2*j}, v{vD+2*j+1}")
    a(f"""
s_and_b64 exec, exec, vcc
s_cbranch_execz L_end
buffer_store_dwordx4 v[{vEA}:{vEA+3}], v3, s[{S_OUT}:{S_OUT+3}], 0 offen sc1
buffer_store_dwordx4 v[{vEA+4}:{vEA+7}], v3, s[{S_OUT}:{S_OUT+3}], 0 offen offset:256 sc1
""")
    if STAMPS:
        a("s_waitcnt vmcnt(0)")
        stamp("end")
        a("s_waitcnt lgkmcnt(0)")
        srd(a, 56, 10, 0x20000, WS_STAMP)
        a("s_mov_b64 exec, -1\nv_cmp_eq_u32 vcc, " + str(64 * o.get('stw', 0)) + ", v0\ns_and_b64 exec, exec, vcc\ns_cbranch_execz L_end")
        a("s_lshl_b32 s3, s2, 7\nv_mov_b32 v4, s3")
        for i in range(12):
            a(f"v_mov_b32 v2, s{76+2*i}\nv_mov_b32 v3, s{77+2*i}\nbuffer_store_dwordx2 v[2:3], v4, s[56:59], 0 offen offset:{8*i}")
    a("L_end:\ns_endpgm")

    out = HEADER
    out += f"; @launch grid=({NB},1,1) block=({T},1,1) lds={LDS}\n"
    out += '.amdgcn_target "amdgcn-amd-amdhsa--gfx950"\n.text\n'
    out += f".globl {K}\n.p2align 8\n.type {K},@function\n{a.text()}"
    out += '.section .rodata,"a"\n.p2align 6\n' + descriptor(K, n_vgpr, n_sgpr)
    return out, dict(vgpr=n_vgpr, sgpr=n_sgpr, lds=LDS)

if __name__ == "__main__":
    o = {}
    path = "cdna_kernels/" + NAME + ".s"
    for arg in sys.argv[1:]:
        k, v = arg.split("=", 1)
        if k == "out":
            path = v
        else:
            o[k] = int(v) if v.lstrip("-").isdigit() else v.replace("+", " ")
    txt, info = gen(o)
    open(path, "w").write(txt)
    print(path, info)
```

```python
import gen, gen2, leak, sys
o = {"stamps": 1}
for arg in sys.argv[1:]:
    k, v = arg.split("=", 1)
    o[k] = int(v) if v.lstrip("-").isdigit() else v.replace("+", " ")
base, _ = gen2.gen(o)
K = gen.NAME + "_kernel"
base = base.replace("; @launch grid", f"; @launch kernel={K} grid")
for nm, idx in dict(zero=None, Y=1, join=3, F2=5, sort=7, main=8, end=9).items():
    body = leak.leak_kernel(0, idx or 0, 256 if idx else 1, "max" if idx else "min", 0, 0, 256 if idx else 1)
    body = body.replace("v_lshlrev_b32 v1, 6, v1", "v_lshlrev_b32 v1, 7, v1").replace("v_lshlrev_b32 v2, 6, v2", "v_lshlrev_b32 v2, 7, v2")
    open(f"l_{nm}.s", "w").write(leak.add(base, body))
```

```python
import sys
from gen import (NAME, N_NODES, N_EDGES, NB, LOG2E, LN2, magic, Asm, srd, wave_scan,
                 descriptor, HEADER, WS_STAMP)

CH, NCH = 2500, 256
CS = 30080
WS_ENT = 0x1000000
WS_TAB = 0x800000
ACC_ROW = 528
ACC_NODE = 4 * ACC_ROW
PAD_X = 0x7FFF0000
PAD_E = 0x01FFFFE0
NW, T, NG = 16, 1024, 4
PW = 10
SPIN = 1 << 18

def gen(o):
    a = Asm()
    NPH = o.get("nph", 4)
    HILO = o.get("hilo", 0)
    CAP = o.get("cap", 3072)
    NP = CAP // 2 + 16
    assert NP % 32 == 16
    STAMPS = o.get("stamps")
    TAGREC = 0
    REC = 16 if TAGREC else 12
    MIXROW = 144
    D = o.get("d", 8)
    G0 = o.get("g0", min(4, 8 - D))
    TID = o.get("tid", 0)
    NC = o.get("nc", NW)
    XO, EW, YY, ACC = 0, NP * 8, NP * 16, NP * 32
    H1 = ACC + 40 * ACC_NODE
    H2 = H1 + 1024 + 64
    MISC = H2 + 1024
    RB = o.get("ring", 0)
    FLG = MISC + 64
    CMIX = FLG + 64
    CW = CMIX + 64 * MIXROW
    CCG = CW + (4096 if HILO else 2048)
    RING = CW
    LDS = RING + 16384 if RB else CCG + 2048
    EPOCH = H1 + 1024 + 16
    STG = 0
    MB, SB = magic(NB, N_NODES, N_NODES)
    MP, SP = magic(NPH, N_NODES, N_NODES) if NPH > 1 else (0, 0)

    S_X, S_EF, S_ENT, S_TAB, S_A, S_OUT = 12, 16, 20, 24, 28, 32
    sB, sN0, sNN, sWAVE, sK, sQ, sSPLIT, sNBLK = 36, 37, 38, 39, 40, 41, 42, 43
    sFMN, sNXT, sFM, sT0, sT1, sEMASK, sMORE = 44, 46, 47, 48, 49, 50, 51
    sMASK = 52
    sTAGL, sTAGH, sCNT = 4, 5, 6
    sPM, sPEND, sISS, sNEW, sLIM, sMP = 8, 68, 69, 70, 71, 72
    n_sgpr = 100 if STAMPS else 76

    vXL, vW, vCG = 1, 2, 2 + (16 if HILO else 8)
    r = vCG + 8
    vAL = r; vCX = r + 1; vCE = r + 2; vCY = r + 3; vEH = r + 4; vA0 = r + 5
    r += 6
    base = r
    vU = r; r += 32
    vX = r; r += 4 * D
    vXO = r; r += 4
    vTP = r; r += 8
    vACC = r; r += 8
    vK = r; r += 4
    vEF = r; r += 4
    vT = r; r += 4
    vY = r; r += 2
    vTM = r; r += 2
    vEWC = r; vEWN = r + 1; vQ = r + 2; vFA = r + 3; vFV = r + 4; vRA = r + 5; r += 6
    n_main = r
    r = base
    vTB = r; r += 2 * NG
    vEN = r; r += 8 * NG
    vRK = r; r += 2 * NG
    vKY = r; r += 2 * NG
    vF = r; r += 16
    vONE = r; vS2 = r + 1; vS3 = r + 2; vWC = r + 3; r += 3 + NG
    vPF = max(n_main, r, base + 88)
    n_vgpr = 128 if o.get('efbatch') else vPF + 1

    def emit(lst):
        for ins in lst:
            a(ins)
    marks = o.get("marks", "start Y B4b join rank F2 F3 sort main end").split()
    def stamp(name):
        if STAMPS:
            for i, m in enumerate(marks):
                if m == name:
                    a(f"s_memrealtime s[{76+2*i}:{77+2*i}]")
    def prefetch(kinds, vtid, nthr, vtmp):
        n = 0
        for kind in kinds.split():
            lo, hi = (int(v) for v in kind[1:].split("-"))
            total = (N_EDGES * 32 if kind[0] == "e" else N_NODES * 512) // 128
            l0, l1 = total * lo // 32, total * hi // 32
            per = -(-(l1 - l0) // (32 if kind[0] == "x" else 256))
            sr = S_EF if kind[0] == "e" else S_X
            a(f"s_lshr_b32 s{sT0}, s2, 3" if kind[0] == "x" else f"s_mov_b32 s{sT0}, s2")
            a(f"s_mul_i32 s{sT0}, s{sT0}, {per}\ns_add_u32 s{sT0}, s{sT0}, {l0}")
            for k in range(-(-per // nthr)):
                a(f"""v_add_u32 v{vtmp}, {k*nthr}, v{vtid}
v_cmp_gt_u32 vcc, {per}, v{vtmp}
v_add_lshl_u32 v{vtmp}, v{vtmp}, s{sT0}, 7
s_nop 0
v_cndmask_b32 v{vtmp}, -1, v{vtmp}, vcc
buffer_load_dword v{vPF}, v{vtmp}, s[{sr}:{sr+3}], 0 offen""")
                n += 1
        return n
    def prefetch_waves(kinds, vtmp, tag):
        w0 = 1
        for ki, kind in enumerate(kinds.split()):
            lo, hi = (int(v) for v in kind[1:].split("-"))
            total = (N_EDGES * 32 if kind[0] == "e" else N_NODES * 512) // 128
            l0, l1 = total * lo // 32, total * hi // 32
            per = -(-(l1 - l0) // (32 if kind[0] == "x" else 256))
            nwv = -(-per // 64)
            assert w0 + nwv <= NW
            sr = S_EF if kind[0] == "e" else S_X
            a(f"s_sub_u32 s{sT0}, s{sWAVE}, {w0}\ns_cmp_ge_u32 s{sT0}, {nwv}\ns_cbranch_scc1 L_pf{tag}{ki}")
            a(f"s_lshr_b32 s{sT0}, s2, 3" if kind[0] == "x" else f"s_mov_b32 s{sT0}, s2")
            a(f"""s_mul_i32 s{sT0}, s{sT0}, {per}
s_add_u32 s{sT0}, s{sT0}, {l0}
v_subrev_u32 v{vtmp}, {w0*64}, v0
v_min_u32 v{vtmp}, {per-1}, v{vtmp}
v_add_lshl_u32 v{vtmp}, v{vtmp}, s{sT0}, 7
buffer_load_dword v{vPF}, v{vtmp}, s[{sr}:{sr+3}], 0 offen
L_pf{tag}{ki}:""")
            w0 += nwv
    def lds_fill(start, nbytes, val, vtid, nthr, v):
        a(f"v_lshlrev_b32 v{v+4}, 4, v{vtid}")
        for j in range(4):
            a(f"v_mov_b32 v{v+j}, {val:#x}")
        n = nbytes // 16
        assert nbytes % 16 == 0
        k = 0
        while k * nthr < n:
            rem = n - k * nthr
            if start + k * nthr * 16 >= 65536:
                a(f"v_add_u32 v{v+4}, {start + k*nthr*16}, v{v+4}")
                start = -k * nthr * 16
            if rem < nthr:
                a(f"v_cmp_gt_u32 vcc, {rem}, v{vtid}\ns_and_saveexec_b64 s[{sT0}:{sT1}], vcc")
            a(f"ds_write_b128 v{v+4}, v[{v}:{v+3}] offset:{start + k*nthr*16}")
            if rem < nthr:
                a(f"s_mov_b64 exec, s[{sT0}:{sT1}]")
            k += 1
    def slot_fills(vtid, nthr, v):
        lds_fill(H2, 1024 + 128, 0, vtid, nthr, v)
        lds_fill(YY, NP * 16, 0, vtid, nthr, v)
        lds_fill(XO, NP * 8, 512 if TID else PAD_X, vtid, nthr, v)
        lds_fill(EW, NP * 8, PAD_E, vtid, nthr, v)
    def common_srds():
        srd(a, S_X, 56, 0 if o.get("nox") else N_NODES * 512)
        srd(a, S_EF, 64, 0 if o.get("noef") else N_EDGES * 32)
        srd(a, S_OUT, 72, N_NODES * 512)
        srd(a, S_ENT, 10, NCH * CS, WS_ENT)
        srd(a, S_TAB, 10, NCH * NB * 8, WS_TAB)

    K = NAME + "_kernel"
    a(f"""
{K}:
s_cmp_ge_u32 s2, {NB}
s_cbranch_scc1 L_end
""")
    stamp("start")
    a(f"""
s_load_dwordx16 s[56:71], s[0:1], 0
s_load_dwordx4 s[72:75], s[0:1], 64
s_load_dwordx2 s[10:11], s[0:1], 80
v_lshrrev_b32 v2, 6, v0
v_lshlrev_b32 v1, 4, v0
v_readfirstlane_b32 s{sWAVE}, v2
s_cmp_ge_u32 s{sWAVE}, {PW}
s_cbranch_scc1 L_helper
v_cmp_gt_u32 vcc, {CH//4}, v0
s_mov_b64 exec, vcc
v_lshlrev_b32 v2, 5, v0
v_lshlrev_b32 v3, 2, v0
s_mul_i32 s3, s2, {CH*4}
s_mul_i32 s7, s2, {CH*8}
s_waitcnt lgkmcnt(0)
""")
    srd(a, S_A, 60, N_EDGES * 4)
    a(f"buffer_load_dwordx4 v[4:7], v1, s[{S_A}:{S_A+3}], s3 offen")
    srd(a, 40, 58, N_EDGES * 4)
    a(f"buffer_load_dwordx4 v[8:11], v1, s[40:43], s3 offen")
    srd(a, 44, 62, N_EDGES * 8)
    a(f"buffer_load_dwordx4 v[12:15], v2, s[44:47], s7 offen")
    a(f"buffer_load_dwordx4 v[16:19], v2, s[44:47], s7 offen offset:16")
    a("s_barrier")
    common_srds()
    a(f"""
s_mov_b32 s8, {MB}
s_movk_i32 s9, 625
v_mov_b32 v21, 1
v_mov_b32 v22, {H1}
s_waitcnt vmcnt(3)
""")
    stamp("dst")
    for k in range(4):
        a(f"""
v_mul_u32_u24 v{24+k}, s8, v{4+k}
v_lshrrev_b32 v{24+k}, {SB}, v{24+k}
v_lshl_add_u32 v{28+k}, v{24+k}, 2, v22
ds_add_rtn_u32 v{32+k}, v{28+k}, v21
""")
    for k in range(4):
        a(f"""
v_mad_u32_u24 v{24+k}, v{24+k}, s9, 15
v_lshrrev_b32 v{24+k}, 4, v{24+k}
v_sub_u32 v{24+k}, v{4+k}, v{24+k}
v_add_u32 v{36+k}, {k}, v3
v_lshlrev_b32 v{36+k}, 20, v{36+k}
v_lshl_or_b32 v{36+k}, v{24+k}, 14, v{36+k}
""")
    a(f"""
s_waitcnt lgkmcnt(0)
s_barrier
s_cmp_lg_u32 s{sWAVE}, 0
s_cbranch_scc1 L_a_noscan
v_add_u32 v49, v1, v22
ds_read_b128 v[40:43], v49
s_waitcnt lgkmcnt(0)
v_add_u32 v45, v40, v41
v_add_u32 v46, v45, v42
v_add_u32 v47, v46, v43
v_mov_b32 v48, v47
""")
    wave_scan(a, 47)
    a(f"""
v_sub_u32 v44, v47, v48
v_add_u32 v47, v44, v46
v_add_u32 v46, v44, v45
v_add_u32 v45, v44, v40
ds_write_b128 v49, v[44:47]
s_waitcnt lgkmcnt(0)
L_a_noscan:
s_barrier
""")
    for k in range(4):
        a(f"ds_read_b32 v{24+k}, v{28+k}")
    a(f"""
v_and_b32 v49, 0x7f, v0
v_lshl_add_u32 v49, v49, 3, v22
ds_read_b64 v[40:41], v49
ds_read_b32 v42, v49 offset:8
s_waitcnt vmcnt(2)
""")
    for k in range(4):
        a(f"""v_or_b32 v{36+k}, v{36+k}, v{8+k}
s_waitcnt lgkmcnt({5-k})
v_add_u32 v{24+k}, v{24+k}, v{32+k}
v_mul_u32_u24 v{24+k}, {REC}, v{24+k}""")
    for k in range(4):
        a(f"ds_write_b32 v{24+k}, v{36+k} offset:{STG + 8}")
    a(f"""
s_waitcnt lgkmcnt(4)
v_sub_u32 v42, v42, v41
v_sub_u32 v43, v41, v40
v_lshl_or_b32 v42, v42, 12, v41
v_lshl_or_b32 v40, v43, 12, v40
s_mul_i32 s3, s2, {CS}
s_lshl_b32 s7, s2, 11
s_waitcnt vmcnt(0)
""")
    stamp("Y")
    for k in range(4):
        a(f"ds_write2_b32 v{24+k}, v{12+2*k}, v{13+2*k} offset0:{STG//4} offset1:{STG//4+1}")
    a(f"""
s_mov_b64 exec, -1
v_mov_b32 v49, {EPOCH}
v_cmp_gt_u32 vcc, {CS//16 - 2*PW*64}, v0
s_waitcnt lgkmcnt(0)
""")
    stamp("preB4")
    a("s_barrier")
    stamp("B4")
    if STAMPS:
        a("s_waitcnt lgkmcnt(0)")
    for k in range(3):
        a(f"ds_read_b128 v[{4+4*k}:{7+4*k}], v1 offset:{STG + k*PW*1024}")
    a("ds_read_b64 v[44:45], v49")
    for k in range(3):
        a(f"s_waitcnt lgkmcnt({3-k})")
        if k == 2:
            a("s_mov_b64 exec, vcc")
        a(f"""buffer_store_dwordx4 v[{4+4*k}:{7+4*k}], v1, s[{S_ENT}:{S_ENT+3}], s3 offen sc1
s_add_u32 s3, s3, {PW*1024}
""")
    a(f"""
s_mov_b64 exec, -1
s_waitcnt lgkmcnt(0)
v_lshl_or_b32 v42, v45, 24, v42
v_lshl_or_b32 v40, v45, 24, v40
v_mov_b32 v41, v44
v_mov_b32 v43, v44
""")
    stamp("B4b")
    a(f"""
s_waitcnt vmcnt(0)
s_barrier
s_cmp_ge_u32 s{sWAVE}, 2
s_cbranch_scc1 L_join
buffer_store_dwordx4 v[40:43], v1, s[{S_TAB}:{S_TAB+3}], s7 offen sc1
s_branch L_join
""")

    HT = (NW - PW) * 64
    a(f"""
L_helper:
v_subrev_u32 v2, {PW*64}, v0
v_and_b32 v3, 63, v0
s_waitcnt lgkmcnt(0)
""")
    srd(a, S_A, 74, 256)
    a(f"""
s_cmp_lg_u32 s{sWAVE}, {PW+1}
s_cbranch_scc1 L_h_nopub
s_cmp_lg_u32 s2, 0
s_cbranch_scc1 L_h_nopub
s_memrealtime s[8:9]
v_mov_b32 v6, 0
s_waitcnt lgkmcnt(0)
s_and_b32 s9, s9, 0xff
s_or_b32 s9, s9, 0x100
v_mov_b32 v4, s8
v_mov_b32 v5, s9
s_mov_b64 exec, 1
buffer_store_dwordx2 v[4:5], v6, s[{S_A}:{S_A+3}], 0 offen sc1
s_mov_b64 exec, -1
L_h_nopub:
""")
    lds_fill(H1, 1024, 0, 2, HT, 4)
    a(f"""
v_mov_b32 v9, {H1+1024}
v_mov_b32 v10, {CH}
ds_write_b32 v9, v10
s_waitcnt lgkmcnt(0)
s_barrier
""")
    common_srds()
    if o.get("prew"):
        a(f"""s_cmp_ge_u32 s{sWAVE}, {PW+2}
s_cbranch_scc1 L_h_noprew
v_lshlrev_b32 v9, 4, v2
s_lshl_b32 s7, s2, 11
buffer_store_dwordx4 v[4:7], v9, s[{S_TAB}:{S_TAB+3}], s7 offen sc1
s_nop 1
L_h_noprew:""")
    ACC_EARLY = min(o.get("accearly", 14) * HT * 16, 40 * ACC_NODE)
    if ACC_EARLY:
        lds_fill(ACC, ACC_EARLY, 0, 2, HT, 4)
    a(f"""
s_barrier
v_mov_b32 v12, 0
s_cmp_lg_u32 s{sWAVE}, {NW-1}
s_cbranch_scc1 L_h_nopoll1
buffer_load_dwordx2 v[14:15], v12, s[{S_A}:{S_A+3}], 0 offen sc1
L_h_nopoll1:
s_barrier
""")
    a(f"""
s_cmp_eq_u32 s{sWAVE}, {PW}
s_cbranch_scc1 L_h_ldw
s_cmp_eq_u32 s{sWAVE}, {PW+1}
s_cbranch_scc1 L_h_ldcg
""")
    srd(a, 40, 70, 64 * 64 * 2)
    a(f"""
v_subrev_u32 v10, {(PW+2)*64*16}, v1
buffer_load_dwordx4 v[16:19], v10, s[40:43], 0 offen
v_add_u32 v11, 4096, v10
buffer_load_dwordx4 v[20:23], v11, s[40:43], 0 offen
s_branch L_h_ld_done
L_h_ldw:
""")
    srd(a, 40, 66, 16 * 64 * 2)
    a("""
v_lshrrev_b32 v10, 5, v3
v_lshlrev_b32 v10, 10, v10
v_and_b32 v11, 31, v3
v_lshl_add_u32 v10, v11, 2, v10
""")
    for i in range(8):
        a(f"buffer_load_dword v{16+i}, v10, s[40:43], 0 offen offset:{i*128}")
    a("s_branch L_h_ld_done\nL_h_ldcg:")
    srd(a, 40, 68, 64 * 2)
    a("v_and_b32 v10, 3, v3\nv_lshlrev_b32 v10, 1, v10")
    for j in range(16):
        a(f"buffer_load_ushort v{16+j}, v10, s[40:43], 0 offen offset:{j*8}")
    a("L_h_ld_done:")
    n1 = prefetch(o.get("pfa", ""), 2, HT, 9)
    a(f"""
s_cmp_lg_u32 s{sWAVE}, {NW-1}
s_cbranch_scc1 L_h_noepoch
s_mov_b32 s{sCNT}, 0
s_waitcnt vmcnt({n1 + 2})
L_h_poll:
v_readfirstlane_b32 s{sT0}, v15
s_cmp_lg_u32 s{sT0}, 0
s_cbranch_scc1 L_h_polled
s_add_u32 s{sCNT}, s{sCNT}, 1
s_cmp_ge_u32 s{sCNT}, {SPIN}
s_cbranch_scc1 L_end
buffer_load_dwordx2 v[14:15], v12, s[{S_A}:{S_A+3}], 0 offen sc1
s_waitcnt vmcnt(0)
s_branch L_h_poll
L_h_polled:
v_mov_b32 v12, {EPOCH}
v_and_b32 v15, 0xff, v15
ds_write_b64 v12, v[14:15]
L_h_noepoch:
s_waitcnt lgkmcnt(0)
s_barrier
s_waitcnt vmcnt({n1})
v_lshlrev_b32 v9, 4, v3
s_cmp_eq_u32 s{sWAVE}, {PW}
s_cbranch_scc1 L_h_dow
s_cmp_eq_u32 s{sWAVE}, {PW+1}
s_cbranch_scc1 L_h_docg
""")
    a(f"""
v_lshrrev_b32 v4, 7, v10
v_mul_u32_u24 v5, {MIXROW}, v4
v_and_b32 v6, 7, v3
v_lshl_add_u32 v5, v6, 3, v5
v_add_u32 v5, {CMIX}, v5
s_mov_b32 s8, 0x05040100
s_mov_b32 s9, 0x07060302
""")
    for half in range(2):
        q = 16 + 4 * half
        a(f"""
v_perm_b32 v24, v{q+1}, v{q}, s8
v_perm_b32 v25, v{q+3}, v{q+2}, s8
v_perm_b32 v26, v{q+1}, v{q}, s9
v_perm_b32 v27, v{q+3}, v{q+2}, s9
ds_write_b64 v5, v[24:25] offset:{half*32*MIXROW}
ds_write_b64 v5, v[26:27] offset:{half*32*MIXROW + 64}
""")
    a(f"""
s_branch L_h_const_done
L_h_dow:
s_mov_b32 s8, {LOG2E:#x}
v_add_u32 v9, {CW}, v9
""")
    for i in range(8):
        a(f"""
v_lshlrev_b32 v{24+i}, 16, v{16+i}
v_and_b32 v{32+i}, 0xffff0000, v{16+i}
v_mul_f32 v{24+i}, s8, v{24+i}
v_mul_f32 v{32+i}, s8, v{32+i}
""")
    for j in range(8):
        a(f"v_cvt_pk_bf16_f32 v{40+j}, v{24+2*j}, v{25+2*j}")
    a("ds_write_b128 v9, v[40:43]\nds_write_b128 v9, v[44:47] offset:1024")
    if HILO:
        for j in range(8):
            a(f"""
v_lshlrev_b32 v6, 16, v{40+j}
v_and_b32 v7, 0xffff0000, v{40+j}
v_sub_f32 v{24+2*j}, v{24+2*j}, v6
v_sub_f32 v{25+2*j}, v{25+2*j}, v7
v_cvt_pk_bf16_f32 v{16+j}, v{24+2*j}, v{25+2*j}
""")
        a("ds_write_b128 v9, v[16:19] offset:2048\nds_write_b128 v9, v[20:23] offset:3072")
    a(f"s_branch L_h_const_done\nL_h_docg:\nv_add_u32 v9, {CCG}, v9")
    for j in range(8):
        a(f"v_lshl_or_b32 v{32+j}, v{17+2*j}, 16, v{16+2*j}")
    a(f"""
ds_write_b128 v9, v[32:35]
ds_write_b128 v9, v[36:39] offset:1024
L_h_const_done:
""")
    a("s_waitcnt lgkmcnt(0)\ns_barrier")

    a("L_join:")
    stamp("join")
    a(f"""
s_and_b32 s{sB}, s2, 7
s_lshl_b32 s{sB}, s{sB}, 5
s_lshr_b32 s3, s2, 3
s_add_u32 s{sB}, s{sB}, s3
v_and_b32 v{vF}, 63, v0
v_lshlrev_b32 v{vF+1}, 4, v{vF}
v_add_u32 v{vF+1}, {CW}, v{vF+1}
v_mov_b32 v{vF+2}, {EPOCH}
ds_read_b64 v[{vF+4}:{vF+5}], v{vF+2}
""")
    for q in range(4 if HILO else 2):
        a(f"ds_read_b128 v[{vW+4*q}:{vW+4*q+3}], v{vF+1} offset:{q*1024}")
    for q in range(2):
        a(f"ds_read_b128 v[{vCG+4*q}:{vCG+4*q+3}], v{vF+1} offset:{CCG - CW + q*1024}")
    lane, tmp = vF, vF + 3
    if TID:
        a(f"""s_sub_u32 s{S_A}, s{S_X}, 512
s_subb_u32 s{S_A+1}, s{S_X+1}, 0
s_or_b32 s{S_A+1}, s{S_A+1}, {16 << 16:#x}
s_mov_b32 s{S_A+2}, {N_NODES * 512 + 512}
s_mov_b32 s{S_A+3}, 0x800000""")
    a(f"""
s_mul_i32 s{sN0}, s{sB}, 625
s_add_u32 s{sNN}, s{sN0}, {625+15}
s_add_u32 s{sN0}, s{sN0}, 15
s_lshr_b32 s{sN0}, s{sN0}, 4
s_lshr_b32 s{sNN}, s{sNN}, 4
s_mov_b32 s{sK}, 0
s_mov_b32 s{sQ}, 0
s_mov_b32 s{sSPLIT}, 0
s_mov_b32 s{sEMASK}, {o.get('emask', 0x01ffffff):#x}
v_and_b32 v{tmp}, 31, v{lane}
v_lshlrev_b32 v{vXL}, 4, v{tmp}
v_lshlrev_b32 v{vAL}, 3, v{lane if o.get('fold') else tmp}
v_add_u32 v{vAL}, {ACC}, v{vAL}
v_lshrrev_b32 v{vEH}, 5, v{lane}
v_mul_u32_u24 v{vCX}, {NP*4}, v{vEH}
v_and_b32 v{tmp}, 15, v{lane}
v_lshl_add_u32 v{vCX}, v{tmp}, 2, v{vCX}
v_mul_u32_u24 v{vCY}, {NP}, v{vEH}
v_lshlrev_b32 v{vEH}, 4, v{vEH}
{f"v_lshl_add_u32 v{vA0}, v{vXL}, 1, v{vEH}" if o.get("pair") else f"v_lshlrev_b32 v{vA0}, 4, v{lane}"}
v_add_u32 v{vA0}, {RING}, v{vA0}
v_bfe_u32 v{vCE}, v{lane}, 2, 1
v_mul_u32_u24 v{vCE}, {NP}, v{vCE}
v_bfe_u32 v{tmp}, v{lane}, 3, 2
v_lshl_add_u32 v{vCE}, v{tmp}, 2, v{vCE}
v_and_b32 v{tmp}, 3, v{lane}
v_add_lshl_u32 v{vCE}, v{vCE}, v{tmp}, 2
v_and_b32 v{tmp}, 1, v{lane}
v_lshl_add_u32 v{vCY}, v{tmp}, 3, v{vCY}
v_bfe_u32 v{tmp}, v{lane}, 2, 3
v_add_lshl_u32 v{vCY}, v{vCY}, v{tmp}, 3
s_waitcnt lgkmcnt(0)
v_readfirstlane_b32 s{sTAGH}, v{vF+4}
v_readfirstlane_b32 s{sTAGL}, v{vF+5}
""")
    if ACC_EARLY < 40 * ACC_NODE:
        lds_fill(ACC + ACC_EARLY, 40 * ACC_NODE - ACC_EARLY, 0, 0, T, vF)
    a("L_round:")
    if not o.get("early"):
        slot_fills(0, T, vF)
    a(f"""
v_lshrrev_b32 v{vS3}, 4, v0
v_and_b32 v{vF}, 3, v0
v_lshl_add_u32 v{vF}, v{vF}, 6, v{vS3}
s_lshl_b32 s3, s{sB}, 3
v_lshl_add_u32 v{vTB+2}, v{vF}, 11, s3
s_mov_b32 s{sPM}, 0x000f000f
s_mov_b32 s{sPM+1}, 0x000f000f
""")
    if o.get("sl0"):
        a(f"s_sleep {o['sl0']}")
    prefetch_waves(o.get("pfp", ""), vF + 8, "p")
    poll = f"""
s_mov_b64 exec, s[{sPM}:{sPM+1}]
buffer_load_dwordx2 v[{vTB}:{vTB+1}], v{vTB+2}, s[{S_TAB}:{S_TAB+3}], 0 offen sc1
s_mov_b64 exec, -1
"""
    a(f"""
v_mov_b32 v{vONE}, 1
v_and_b32 v{vS2}, 15, v0
s_lshl_b32 s{sLIM}, s{sK}, 5
v_add_u32 v{vS2}, s{sLIM}, v{vS2}
s_add_u32 s{sLIM}, s{sLIM}, 32
v_add_u32 v{vF+5}, 16, v{vS2}
v_mul_u32_u24 v{vWC}, {CH}, v{vS3}
""")
    for g in range(NG):
        if g:
            a(f"v_add_u32 v{vWC+g}, {g*NW*4*CH}, v{vWC}")
            a(f"v_add_u32 v{vTB+4+g}, {g*NW*4*CS}, v{vTB+4}")
        else:
            a(f"v_mul_u32_u24 v{vTB+4}, {CS}, v{vS3}\nv_mad_u32_u24 v{vTB+4}, v{vS2}, {REC}, v{vTB+4}")
    a(f"""
v_mov_b32 v{vF+6}, {H2}
s_mov_b32 s{sMORE}, 0
s_mov_b32 s{sCNT}, 0
s_mov_b32 s{sPEND}, 15
s_mov_b32 s{sISS}, 0
s_mov_b32 s{sMP}, {MP}
""")
    if o.get("early"):
        a(poll)
        slot_fills(0, T, vF + 8)
    a("s_waitcnt lgkmcnt(0)\ns_barrier")
    if not o.get("early"):
        a(poll)
    stamp("poll0")
    a(f"""
L_poll:
s_mov_b32 s{sNEW}, 0
s_cmp_eq_u32 s{sPEND}, 0
s_waitcnt vmcnt(0)
s_cbranch_scc1 L_ranks
s_mov_b64 exec, s[{sPM}:{sPM+1}]
v_lshrrev_b32 v{vF}, 24, v{vTB}
v_cmp_ne_u32 s[{sPM}:{sPM+1}], s{sTAGH}, v{vTB+1}
v_cmp_ne_u32 vcc, s{sTAGL}, v{vF}
s_mov_b64 exec, -1
s_or_b64 s[{sPM}:{sPM+1}], s[{sPM}:{sPM+1}], vcc
s_or_b32 s{sT0}, s{sPM}, s{sPM+1}
s_lshr_b32 s{sT1}, s{sT0}, 16
s_or_b32 s{sT0}, s{sT0}, s{sT1}
s_andn2_b32 s{sNEW}, s{sPEND}, s{sT0}
s_and_b32 s{sPEND}, s{sPEND}, s{sT0}
""")
    for g in range(NG):
        m0, m1 = sMASK + 4 * g, sMASK + 4 * g + 2
        a(f"""
s_bitcmp0_b32 s{sNEW}, {g}
s_cbranch_scc1 L_is{g}
v_mov_b32_dpp v{vF}, v{vTB} row_newbcast:{g} row_mask:0xf bank_mask:0xf
s_and_b32 s{sT0}, s{sSPLIT}, {g}
s_cmp_eq_u32 s{sT0}, s{sQ}
s_cselect_b64 s[{sT0}:{sT1}], -1, 0
v_bfe_u32 v{vF+1}, v{vF}, 12, 12
v_and_b32 v{vF}, 0xfff, v{vF}
v_cmp_lt_u32 s[{m0}:{m0+1}], v{vS2}, v{vF+1}
v_cmp_lt_u32 s[{m1}:{m1+1}], v{vF+5}, v{vF+1}
v_cmp_lt_u32 vcc, s{sLIM}, v{vF+1}
v_mad_u32_u24 v{vF}, v{vF}, {REC}, v{vTB+4+g}
s_and_b64 s[{m1}:{m1+1}], s[{m1}:{m1+1}], s[{sT0}:{sT1}]
s_cmp_lg_u64 vcc, 0
s_cselect_b32 s{sMORE}, 1, s{sMORE}
s_and_b64 s[{m0}:{m0+1}], s[{m0}:{m0+1}], s[{sT0}:{sT1}]
s_cbranch_scc0 L_is{g}
s_mov_b64 exec, s[{m0}:{m0+1}]
buffer_load_dwordx3 v[{vEN+8*g}:{vEN+8*g+2}], v{vF}, s[{S_ENT}:{S_ENT+3}], 0 offen sc1
s_cmp_eq_u64 s[{m1}:{m1+1}], 0
s_cbranch_scc1 L_it{g}
s_mov_b64 exec, s[{m1}:{m1+1}]
buffer_load_dwordx3 v[{vEN+8*g+4}:{vEN+8*g+6}], v{vF}, s[{S_ENT}:{S_ENT+3}], 0 offen offset:{16*REC} sc1
L_it{g}:
s_mov_b64 exec, -1
L_is{g}:
""")
    a(f"""
s_cmp_eq_u32 s{sPEND}, 0
s_cbranch_scc1 L_ranks
s_add_u32 s{sCNT}, s{sCNT}, 1
s_cmp_ge_u32 s{sCNT}, {SPIN}
s_cbranch_scc1 L_end
""")
    if o.get("sl1"):
        a(f"s_sleep {o['sl1']}")
    a(poll)
    a("L_ranks:")
    def for_parts(body, tag, groups=range(NG)):
        for g in groups:
            for p in range(2):
                i = 2 * g + p
                a(f"s_mov_b64 exec, s[{sMASK+2*i}:{sMASK+2*i+1}]")
                if p:
                    a(f"s_cbranch_execz L_{tag}{g}")
                body(g, i, vEN + 4 * i)
                if p:
                    a(f"L_{tag}{g}:")
        a("s_mov_b64 exec, -1")
    def rank_body(g, i, e):
        a(f"v_bfe_u32 v{vF+1}, v{e+2}, 14, 6\nv_and_b32 v{vF}, 0x3fff, v{e+2}")
        if NPH > 1:
            a(f"""
v_mul_u32_u24 v{vF+2}, s{sMP}, v{vF}
v_lshrrev_b32 v{vF+2}, {SP}, v{vF+2}
v_mad_u32_u24 v{vF+2}, v{vF+2}, 40, v{vF+1}
v_lshl_add_u32 v{vKY+i}, v{vF+2}, 2, v{vF+6}
""")
        else:
            a(f"v_lshl_add_u32 v{vKY+i}, v{vF+1}, 2, v{vF+6}")
        a(f"""
ds_add_rtn_u32 v{vRK+i}, v{vKY+i}, v{vONE}
v_lshrrev_b32 v{e+3}, 20, v{e+2}
v_add_lshl_u32 v{e+3}, v{e+3}, v{vWC+g}, 5
v_lshl_or_b32 v{e+3}, v{vF+1}, 25, v{e+3}
""")
        if o.get("xmask"):
            a(f"v_and_b32 v{vF}, {o['xmask']:#x}, v{vF}")
        a(f"v_add_lshl_u32 v{e+2}, v{vF}, 1, 9" if TID else f"v_lshlrev_b32 v{e+2}, 9, v{vF}")
    for g in range(NG):
        a(f"s_bitcmp0_b32 s{sISS}, {g}\ns_cbranch_scc1 L_rs{g}")
        for_parts(rank_body, "rk", [g])
        a(f"L_rs{g}:")
    a(f"""
s_mov_b32 s{sISS}, s{sNEW}
s_or_b32 s{sT0}, s{sPEND}, s{sISS}
s_cbranch_scc1 L_poll
s_cmp_eq_u32 s{sMORE}, 0
s_cbranch_scc1 L_nomore
v_mov_b32 v{vF}, {MISC+8}
ds_write_b32 v{vF}, v{vONE}
L_nomore:
s_brev_b32 s{sT1}, 1
s_waitcnt lgkmcnt(0)
""")
    if o.get("eftr"):
        def touch_body(g, i, e):
            a(f"""v_cmp_gt_u32 vcc, {H2 + 4 * o["eftr"]}, v{vKY+i}
v_and_b32 v{vF+10}, s{sEMASK}, v{e+3}
s_and_b64 exec, exec, vcc
s_cbranch_execz L_eftr{i}
buffer_load_dword v{vPF}, v{vF+10}, s[{S_EF}:{S_EF+3}], 0 offen
L_eftr{i}:""")
        for_parts(touch_body, "tr")
    prefetch_waves(o.get("pfr", ""), vF + 8, "r")
    stamp("rank")
    a("s_barrier")
    stamp("F2")
    prefetch_waves(o.get("pfd", ""), vF + 8, "d")
    a(f"""
s_cmp_lg_u32 s{sWAVE}, 0
s_cbranch_scc1 L_noscan
v_lshl_add_u32 v{vF+9}, v0, 4, v{vF+6}
ds_read_b128 v[{vF}:{vF+3}], v{vF+9}
s_waitcnt lgkmcnt(0)
""")
    for j in range(4):
        a(f"v_add_lshl_u32 v{vF+j}, v{vF+j}, 1, 1\nv_and_b32 v{vF+j}, -4, v{vF+j}")
    a(f"""
v_add_u32 v{vF+5}, v{vF}, v{vF+1}
v_add_u32 v{vF+6}, v{vF+5}, v{vF+2}
v_add_u32 v{vF+7}, v{vF+6}, v{vF+3}
v_mov_b32 v{vF+8}, v{vF+7}
""")
    wave_scan(a, vF + 7)
    a(f"""
v_sub_u32 v{vF+4}, v{vF+7}, v{vF+8}
v_add_u32 v{vF+7}, v{vF+4}, v{vF+6}
v_add_u32 v{vF+6}, v{vF+4}, v{vF+5}
v_add_u32 v{vF+5}, v{vF+4}, v{vF}
ds_write_b128 v{vF+9}, v[{vF+4}:{vF+7}]
L_noscan:
s_movk_i32 s{sT0}, {NP*4 - 2}
""")
    def pre_body(g, i, e):
        a(f"""
v_add_u32 v{vF+10}, -1, v{vRK+i}
v_and_or_b32 v{e+3}, v{vF+10}, s{sT1}, v{e+3}
v_and_b32 v{vF+10}, 1, v{vRK+i}
v_lshlrev_b32 v{vRK+i}, 1, v{vRK+i}
v_mad_u32_u24 v{vRK+i}, v{vF+10}, s{sT0}, v{vRK+i}
""")
        if o.get("eft"):
            a(f"""v_cmp_gt_u32 vcc, {H2 + 4 * o["eft"]}, v{vKY+i}
v_and_b32 v{vF+10}, s{sEMASK}, v{e+3}
s_and_b64 exec, exec, vcc
s_cbranch_execz L_eft{i}
buffer_load_dword v{vPF}, v{vF+10}, s[{S_EF}:{S_EF+3}], 0 offen
L_eft{i}:""")
        if TID:
            a(f"v_lshlrev_b32 v{vF+10}, 9, v{vF+10}\nv_sub_u32 v{e+2}, v{e+2}, v{vF+10}")
    for_parts(pre_body, "pr")
    a(f"""
v_mov_b32 v{vF}, {H2+1020}
s_waitcnt lgkmcnt(0)
""")
    stamp("scan")
    a("s_barrier")
    stamp("F3")
    prefetch_waves(o.get("pfe", ""), vF + 8, "e")
    a(f"""
ds_read_b32 v{vF+1}, v{vF}
ds_read_b32 v{vF+2}, v{vF} offset:12
""")
    for_parts(lambda g, i, e: a(f"ds_read_b32 v{vKY+i}, v{vKY+i}"), "st")
    a(f"""
s_waitcnt lgkmcnt(0)
v_readfirstlane_b32 s{sNBLK}, v{vF+1}
v_readfirstlane_b32 s{sMORE}, v{vF+2}
s_cmp_le_u32 s{sNBLK}, {CAP*2}
s_cbranch_scc1 L_fits
s_mov_b32 s{sSPLIT}, 3
s_barrier
s_branch L_round
L_fits:
""")
    stamp("fits")
    def scat_body(g, i, e):
        a(f"""
v_add_u32 v{vF}, v{vKY+i}, v{vRK+i}
v_lshlrev_b32 v{vF+3}, 1, v{vF}
ds_write_b32 v{vF}, v{e+2} offset:{XO}
ds_write_b32 v{vF}, v{e+3} offset:{EW}
ds_write_b64 v{vF+3}, v[{e}:{e+1}] offset:{YY}
""")
    for_parts(scat_body, "sc")
    a(f"""
v_mov_b32 v{vF+2}, {PAD_E | 0x80000000:#x}
s_add_u32 s{sNBLK}, s{sNBLK}, 63
s_lshr_b32 s{sNBLK}, s{sNBLK}, 6
ds_write_b32 v{vF+1}, v{vF+2} offset:{EW}
s_waitcnt lgkmcnt(0)
""")
    stamp("scat")
    a("s_barrier")
    stamp("sort")
    if STAMPS:
        a("s_memtime s[96:97]\ns_waitcnt lgkmcnt(0)")
    main_start = len(a.L)

    def rho(step):
        return 8 * (step // 4) + step % 4
    vXC, vXN = vXO, vXO + 1
    def block_reads(sreg):
        a(f"""
s_lshl_b32 s{sT0}, s{sreg}, 6
s_lshl_b32 s{sT1}, s{sreg}, 7
v_add_u32 v{vEWN}, s{sT0}, v{vCE}
v_add_u32 v{vXN}, s{sT0}, v{vCX}
v_add_u32 v{vY}, s{sT1}, v{vCY}
ds_read_b32 v{vEWN}, v{vEWN} offset:{EW}
ds_read_b32 v{vXN}, v{vXN} offset:{XO}
ds_read_b64 v[{vY}:{vY+1}], v{vY} offset:{YY}
""")
    def x_load(step):
        src = vXN if step >= 16 else vXC
        xo = vXO + 2 + (step & 1)
        d = vX + 4 * (step % D)
        return [f"v_add_u32_dpp v{xo}, v{src}, v{vXL} row_newbcast:{step % 16} row_mask:0xf bank_mask:0xf",
                f"buffer_load_dwordx4 v[{d}:{d+3}], v{xo}, s[{S_X}:{S_X+3}], 0 offen"]
    nbatch = [0]
    def ef_issue(sreg=sNXT):
        kb = o.get("efbatch")
        if kb:
            nbatch[0] += 1
            a(f"s_lshr_b32 s{sT1}, s2, 3\ns_xor_b32 s{sT0}, s{sreg}, s{sT1}\ns_and_b32 s{sT0}, s{sT0}, {kb-1}\ns_cbranch_scc1 L_nb{nbatch[0]}")
            a(f"s_and_b32 s{sT0}, s{sreg}, {-kb}\ns_lshl_b32 s{sT0}, s{sT0}, 6\nv_add_u32 v{vTM}, s{sT0}, v{vCE}")
            for h in range(0, kb, 8):
                n = min(8, kb - h)
                for i in range(n):
                    a(f"ds_read_b32 v{114+i}, v{vTM} offset:{EW + 64*(h+i)}")
                a("s_waitcnt lgkmcnt(0)")
                for i in range(n):
                    a(f"v_and_or_b32 v{114+i}, v{114+i}, s{sEMASK}, v{vEH}")
                for i in range(n):
                    a(f"buffer_load_dwordx4 v[{vEF}:{vEF+3}], v{114+i}, s[{S_EF}:{S_EF+3}], 0 offen")
            a(f"L_nb{nbatch[0]}:\nv_cmp_gt_i32 s[{sFMN}:{sFMN+1}], 0, v{vEWN}")
            return
        a(f"""
v_and_or_b32 v{vEF}, v{vEWN}, s{sEMASK}, v{vEH}
v_cmp_gt_i32 s[{sFMN}:{sFMN+1}], 0, v{vEWN}
buffer_load_dwordx4 v[{vEF}:{vEF+3}], v{vEF}, s[{S_EF}:{S_EF+3}], 0 offen {o.get('efmod', '')}
""")
    def ring_read():
        a(f"""ds_read_b32 v{vFV}, v{vFA}
ds_read_b128 v[{vEF}:{vEF+3}], v{vRA}""")
    def ring_addr():
        a(f"""s_and_b32 s{sT0}, s{sNXT}, 15
s_lshl_b32 s{sT1}, s{sT0}, 10
s_lshl_b32 s{sT0}, s{sT0}, 2
s_add_u32 s{sT0}, s{sT0}, {FLG}
v_add_u32 v{vRA}, s{sT1}, v{vA0}
v_mov_b32 v{vFA}, s{sT0}""")
    def ring_check():
        a(f"""v_readfirstlane_b32 s{sT0}, v{vFV}
v_mov_b32 v{vFV}, 0
s_cmp_lg_u32 s{sT0}, s{sNXT}
s_cbranch_scc1 L_ring_wait
L_ring_ok:
ds_write_b32 v{vFA}, v{vFV}""")
    KT = [vU, vU + 4, vU + 16, vU + 20]
    def k_mfma():
        return [f"v_mfma_f32_4x4x4_16b_bf16 v[{KT[i]}:{KT[i]+3}], v[{vY}:{vY+1}], v[{vCG+2*i}:{vCG+2*i+1}], 0" for i in range(4)]
    def k_cvt(j):
        return [f"v_cvt_pk_bf16_f32 v{vK+2*j}, v{KT[0]+j}, v{KT[1]+j}",
                f"v_cvt_pk_bf16_f32 v{vK+2*j+1}, v{KT[2]+j}, v{KT[3]+j}"]
    def u_mfma():
        out = [f"v_mfma_f32_32x32x16_bf16 v[{vU+16*p}:{vU+16*p+15}], v[{vEF}:{vEF+3}], v[{vW+4*p}:{vW+4*p+3}], 0" for p in range(2)]
        if HILO:
            out += [f"v_mfma_f32_32x32x16_bf16 v[{vU+16*p}:{vU+16*p+15}], v[{vEF}:{vEF+3}], v[{vW+8+4*p}:{vW+8+4*p+3}], v[{vU+16*p}:{vU+16*p+15}]" for p in range(2)]
        return out
    def silu_ops(d):
        u = vU
        E = [f"v_exp_f32 v{vT+2*p+j}, -v{u+16*p+2*d+j}" for p in range(2) for j in range(2)]
        A = [f"v_pk_add_f32 v[{vT+2*p}:{vT+2*p+1}], v[{vT+2*p}:{vT+2*p+1}], 1.0 op_sel_hi:[1,0]" for p in range(2)]
        R = [f"v_rcp_f32 v{vT+2*p+j}, v{vT+2*p+j}" for p in range(2) for j in range(2)]
        M = [f"v_pk_mul_f32 v[{u+16*p+2*d}:{u+16*p+2*d+1}], v[{u+16*p+2*d}:{u+16*p+2*d+1}], v[{vT+2*p}:{vT+2*p+1}]" for p in range(2)]
        return E, A, R, M
    def fma_ops(step, first=False):
        d, j = divmod(step, 2)
        out = []
        for p in range(2):
            rr = vU + 16 * p + 2 * d
            for hh in range(2):
                t = vTP + 4 * p + 2 * hh
                c = vACC + 4 * p + 2 * hh
                if first:
                    out.append(f"v_pk_mul_f32 v[{c}:{c+1}], v[{t}:{t+1}], v[{rr}:{rr+1}] op_sel:[0,{j}] op_sel_hi:[1,{j}]")
                else:
                    out.append(f"v_pk_fma_f32 v[{c}:{c+1}], v[{t}:{t+1}], v[{rr}:{rr+1}], v[{c}:{c+1}] op_sel:[0,{j},0] op_sel_hi:[1,{j},1]")
        return out
    def tp_ops(step):
        out = []
        for p in range(2):
            t = vTP + 4 * p
            x = vX + 4 * (step % D) + 2 * p
            k = vK + 2 * (step // 8)
            out.append(f"v_mfma_f32_4x4x4_16b_bf16 v[{t}:{t+3}], v[{k}:{k+1}], v[{x}:{x+1}], 0 cbsz:3 abid:{step%8}")
        return out
    def flush_body(step):
        if o.get("fold"):
            a(f"v_readlane_b32 s{sT0}, v{vEWC}, {rho(step)}\ns_nop 0")
            for oo in range(4):
                a(f"v_permlane32_swap_b32 v{vACC+oo}, v{vACC+4+oo}")
                if oo == 0:
                    a(f"s_bfe_u32 s{sT0}, s{sT0}, 0x60019\ns_mul_i32 s{sT0}, s{sT0}, {ACC_NODE}")
            a(f"""
v_add_u32 v{vQ}, s{sT0}, v{vAL}
v_add_f32 v{vACC}, v{vACC}, v{vACC+4}
v_add_f32 v{vACC+1}, v{vACC+1}, v{vACC+5}
v_cvt_f64_f32 v[{vACC+4}:{vACC+5}], v{vACC}
v_cvt_f64_f32 v[{vACC}:{vACC+1}], v{vACC+1}
ds_add_f64 v{vQ}, v[{vACC+4}:{vACC+5}]
ds_add_f64 v{vQ}, v[{vACC}:{vACC+1}] offset:{ACC_ROW}
v_add_f32 v{vACC+2}, v{vACC+2}, v{vACC+6}
v_add_f32 v{vACC+3}, v{vACC+3}, v{vACC+7}
v_cvt_f64_f32 v[{vACC+6}:{vACC+7}], v{vACC+2}
v_cvt_f64_f32 v[{vACC+2}:{vACC+3}], v{vACC+3}
ds_add_f64 v{vQ}, v[{vACC+6}:{vACC+7}] offset:{2*ACC_ROW}
ds_add_f64 v{vQ}, v[{vACC+2}:{vACC+3}] offset:{3*ACC_ROW}
""")
            return
        a(f"""
v_readlane_b32 s{sT0}, v{vEWC}, {rho(step)}
v_cvt_f64_f32 v[{vTM}:{vTM+1}], v{vACC}
s_bfe_u32 s{sT0}, s{sT0}, 0x60019
s_mul_i32 s{sT0}, s{sT0}, {ACC_NODE}
v_add_u32 v{vQ}, s{sT0}, v{vAL}
""")
        for i in range(0, 8, 2):
            off = (i % 4) * ACC_ROW + (i // 4) * 256
            if i:
                a(f"v_cvt_f64_f32 v[{vTM}:{vTM+1}], v{vACC+i}")
            a(f"""
v_cvt_f64_f32 v[{vACC+i}:{vACC+i+1}], v{vACC+i+1}
ds_add_f64 v{vQ}, v[{vTM}:{vTM+1}] offset:{off}
ds_add_f64 v{vQ}, v[{vACC+i}:{vACC+i+1}] offset:{off + ACC_ROW}
""")

    a(f"""
s_cmp_ge_u32 s{sWAVE}, s{sNBLK}
s_cbranch_scc1 L_done
s_cmp_ge_u32 s{sWAVE}, {NC}
s_cbranch_scc1 {"L_spf" if o.get("spf") else "L_loader" if RB else "L_done"}
s_setprio 3
""")
    block_reads(sWAVE)
    a("s_waitcnt lgkmcnt(0)")
    ef_issue(sWAVE)
    for s in range(D):
        emit(x_load(16 + s))
    emit(k_mfma())
    a("s_nop 4")
    emit(k_cvt(0) + k_cvt(1))
    a(f"s_waitcnt vmcnt({D}) lgkmcnt(0)")
    emit(u_mfma())
    a("s_nop 7\ns_branch L_enter")

    G1, E0 = G0 + 2, G0 + 4
    R0 = o.get("r0", G1) if RB else -1
    R1 = R0 + 2 if RB else -1
    PLV = o.get("plv", 4)
    TPR = {4: {}, 3: {G1: 0}, 2: {G1: 1, max(11, G1 + 3): 0}, 1: {G1: 2, 9: 1, 12: 0}, 0: {}}[PLV]
    XA = 12 - D
    K0 = max(9, E0 + 1)
    assert E0 + D <= 15 and K0 <= 12 and E0 <= 16 - D and not TID
    def body(tail):
        tag = "t" if tail else ""
        for s in range(G1 if tail else 0, 16):
            d, j = divmod(s, 2)
            M = tp_ops(s)
            TR, PK = [], []
            if d < 7:
                E, A, R, U = silu_ops(d + 1)
                TR, PK = (R, U) if j else (E, A)
            loads = not (tail and s >= 16 - D)
            if tail and s in TPR:
                a(f"s_setprio {TPR[s]}")
            if not (tail and s == G1):
                if tail:
                    a(f"s_waitcnt vmcnt({min(D - 1, 15 - s)})")
                else:
                    a(f"s_waitcnt vmcnt({D if E0 < s < E0 + D and not o.get('efbatch') and not RB else D - 1})")
                a(M[0])
                emit(TR[:1])
                a(M[1])
                if s in (K0, K0 + 1) and not tail:
                    KM = k_mfma()[2 * (s - K0):2 * (s - K0) + 2]
                    a(TR[1]); a(KM[0]); a(TR[2]); a(KM[1]); a(TR[3])
                else:
                    emit(TR[1:])
                if s == 15 and not tail:
                    emit(k_cvt(1))
                if s == min(K0 + 3, 15) and not tail:
                    emit(k_cvt(0))
                if s == G1 or (s in (E0, R1) and not tail):
                    a("s_waitcnt lgkmcnt(0)")
                if s == G1:
                    a(f"""v_readfirstlane_b32 s{sNXT}, v{vEWN}
s_add_u32 s{sNXT}, s{sNXT}, {NC}
s_cmp_ge_u32 s{sNXT}, s{sNBLK}
s_cbranch_scc1 L_tail""")
                    block_reads(sNXT)
            if s == E0 and not tail:
                if RB:
                    a(f"v_cmp_gt_i32 s[{sFMN}:{sFMN+1}], 0, v{vEWN}")
                else:
                    ef_issue()
            if s == R0 and not tail:
                ring_addr()
                ring_read()
            if s == R1 and not tail:
                ring_check()
            if loads:
                emit(x_load(s + D))
            if s == G0:
                a(f"""
v_mov_b32 v{vEWN}, {MISC}
v_mov_b32 v{vY}, 1
s_mov_b64 exec, 1
ds_add_rtn_u32 v{vEWN}, v{vEWN}, v{vY}
s_mov_b64 exec, -1
""")
            if s == 0:
                emit(fma_ops(0, True))
            else:
                if s >= 14:
                    a("s_nop 1" if tail or TID else "s_nop 0" if s == 14 else "")
                a(f"s_bitcmp1_b32 s{sFM}, {rho(s)}\ns_cbranch_scc1 L_fl{tag}{s}")
                emit(fma_ops(s))
                a(f"L_fr{tag}{s}:")
            emit(PK)
    def stubs(tail):
        tag = "t" if tail else ""
        for s in range(G1 if tail else 1, 16):
            a(f"L_fl{tag}{s}:")
            flush_body(s - 1)
            emit(fma_ops(s, True))
            a(f"s_branch L_fr{tag}{s}")
    a("L_block:")
    body(False)
    emit(u_mfma())
    flush_body(15)
    if PLV > 1:
        a(f"s_mul_i32 s{sT0}, s{sNXT}, {PLV}")
        for lvl in range(2, 3 - PLV, -1):
            a(f"s_sub_u32 s{sT0}, s{sT0}, s{sNBLK}\ns_cbranch_scc1 L_enter\ns_setprio {lvl}")
    a(f"""
L_enter:
v_mov_b32 v{vEWC}, v{vEWN}
v_mov_b32 v{vXC}, v{vXN}
s_mov_b32 s{sFM}, s{sFMN}
""")
    E, A, R, U = silu_ops(0)
    emit(E)
    a("s_nop 0")
    emit(A + R)
    a("s_nop 0")
    emit(U)
    a("s_branch L_block")
    if o.get("spf"):
        stride, nb = o["spf"], o.get("spn", 32)
        per = 80000 // (NW - NC)
        a(f"""L_spf:
s_mul_i32 s{sT0}, s2, 80000
s_sub_u32 s{sT1}, s{sWAVE}, {NC}
s_mul_i32 s{sT1}, s{sT1}, {per}
s_add_u32 s{sT0}, s{sT0}, s{sT1}
s_and_b32 s{sT0}, s{sT0}, -128
s_add_u32 s{sT1}, s{sT0}, {per}
s_min_u32 s{sT1}, s{sT1}, {N_EDGES*32 - nb*stride}
L_spf_loop:""")
        for j in range(nb):
            a(f"s_load_dword s{sFMN}, s[{S_EF}:{S_EF+1}], s{sT0} offset:{stride*j}")
        a(f"""s_add_u32 s{sT0}, s{sT0}, {nb*stride}
s_waitcnt lgkmcnt(0)
s_cmp_lt_u32 s{sT0}, s{sT1}
s_cbranch_scc1 L_spf_loop
s_branch L_done""")
    if RB:
        vLA = vU
        sNB, sREM = sNXT, sFM
        a(f"""L_ring_wait:
s_add_u32 s{sCNT}, s{sCNT}, 1
s_cmp_ge_u32 s{sCNT}, {SPIN*8}
s_cbranch_scc1 L_end
s_sleep 1""")
        ring_read()
        a(f"""s_waitcnt lgkmcnt(0)
v_readfirstlane_b32 s{sT0}, v{vFV}
v_mov_b32 v{vFV}, 0
s_cmp_lg_u32 s{sT0}, s{sNXT}
s_cbranch_scc1 L_ring_wait
s_branch L_ring_ok
L_loader:
s_cmp_lg_u32 s{sWAVE}, {NC}
s_cbranch_scc1 L_done
s_setprio 3
s_lshr_b32 s{sT0}, s2, 3
s_mul_i32 s{sT0}, s{sT0}, {RB}
s_lshr_b32 s{sT0}, s{sT0}, 5
s_sub_u32 s{sNB}, {NC}, s{sT0}
s_sub_u32 s{sREM}, s{sNBLK}, {NC}
v_and_b32 v{vQ}, 63, v0""")
        lCE, lEH = vCE, vEH
        if o.get("pair"):
            lCE, lEH = vX, vX + 1
            a(f"""v_bfe_u32 v{lCE}, v{vQ}, 3, 1
v_mul_u32_u24 v{lCE}, {NP}, v{lCE}
v_bfe_u32 v{lEH}, v{vQ}, 4, 2
v_lshl_add_u32 v{lCE}, v{lEH}, 2, v{lCE}
v_bfe_u32 v{lEH}, v{vQ}, 1, 2
v_add_lshl_u32 v{lCE}, v{lCE}, v{lEH}, 2
v_and_b32 v{lEH}, 1, v{vQ}
v_lshlrev_b32 v{lEH}, 4, v{lEH}""")
        a(f"""L_ld_batch:
s_lshl_b32 s{sT0}, s{sNB}, 6
v_add_u32 v{vTM}, s{sT0}, v{lCE}""")
        for i in range(RB):
            a(f"ds_read_b32 v{vLA+i}, v{vTM} offset:{EW + 64*i}")
        a(f"""v_add_u32 v{vFV}, s{sNB}, v{vQ}
v_and_b32 v{vFA}, 15, v{vFV}
v_lshlrev_b32 v{vFA}, 2, v{vFA}
v_add_u32 v{vFA}, {FLG}, v{vFA}
v_subrev_u32 v{vRA}, {NC}, v{vFV}
v_cmp_gt_u32 vcc, s{sREM}, v{vRA}
s_and_b32 s{sFMN}, vcc_lo, {(1 << RB) - 1}
s_mov_b32 s{sFMN+1}, 0
s_waitcnt lgkmcnt(0)""")
        for i in range(RB):
            a(f"v_and_or_b32 v{vLA+i}, v{vLA+i}, s{sEMASK}, v{lEH}")
        a(f"""v_mov_b32 v{vTM}, {MISC}
L_ld_wait:
ds_read_b32 v{vRA}, v{vFA}
ds_read_b32 v{vTM+1}, v{vTM}
s_waitcnt lgkmcnt(0)
v_cmp_ne_u32 vcc, 0, v{vRA}
v_readfirstlane_b32 s{sT1}, v{vTM+1}
s_add_u32 s{sT1}, s{sT1}, {NC + o.get("lead", 99)}
s_cmp_lt_i32 s{sT1}, s{sNB}
s_cselect_b32 s{sT1}, -1, 0
s_or_b32 s{sT1}, s{sT1}, vcc_lo
s_and_b32 s{sT0}, s{sT1}, s{sFMN}
s_cbranch_scc0 L_ld_go
s_add_u32 s{sCNT}, s{sCNT}, 1
s_cmp_ge_u32 s{sCNT}, {SPIN*8}
s_cbranch_scc1 L_end
s_sleep 2
s_branch L_ld_wait
L_ld_go:""")
        for i in range(RB):
            a(f"""s_bitcmp0_b32 s{sFMN}, {i}
s_cbranch_scc1 L_ld_skip{i}
s_add_u32 s{sT0}, s{sNB}, {i}
s_and_b32 s{sT0}, s{sT0}, 15
s_lshl_b32 s{sT0}, s{sT0}, 10
s_add_u32 m0, s{sT0}, {RING}
s_nop 0
buffer_load_dwordx4 v{vLA+i}, s[{S_EF}:{S_EF+3}], 0 offen lds
L_ld_skip{i}:""")
        a(f"""s_waitcnt vmcnt(0)
s_mov_b64 exec, s[{sFMN}:{sFMN+1}]
ds_write_b32 v{vFA}, v{vFV}
s_mov_b64 exec, -1
s_add_u32 s{sNB}, s{sNB}, {RB}
s_cmp_lt_u32 s{sNB}, s{sNBLK}
s_cbranch_scc1 L_ld_batch
s_branch L_done""")
    stubs(False)
    stubs(True)
    a("L_tail:")
    body(True)
    flush_body(15)
    if o.get("drop"):
        import re
        pat = re.compile(o["drop"].replace(" ", "|"))
        a.L[main_start:] = [l for l in a.L[main_start:] if not pat.search(l)]

    vB = base
    vEA = vB + 32
    vPA = vEA + 32
    vD = vPA + 8
    assert vD + 16 <= vPF
    a(f"""
L_done:
s_setprio 0
s_waitcnt vmcnt(0) lgkmcnt(0)
""")
    if o.get("wavedone"):
        a("s_memrealtime s[8:9]\ns_waitcnt lgkmcnt(0)")
        srd(a, 56, 10, 0x20000, WS_STAMP + 0x10000)
        a(f"""s_lshl_b32 s3, s2, 4
s_add_u32 s3, s3, s{sWAVE}
s_lshl_b32 s3, s3, 3
v_mov_b32 v{vTM}, s8
v_mov_b32 v{vTM+1}, s{sNBLK}
v_mov_b32 v{vQ}, s3
s_mov_b64 exec, 1
buffer_store_dwordx2 v[{vTM}:{vTM+1}], v{vQ}, s[56:59], 0 offen
s_mov_b64 exec, -1""")
    a(f"""
s_cmp_eq_u32 s{sQ}, s{sSPLIT}
s_cbranch_scc1 L_lastq
s_add_u32 s{sQ}, s{sQ}, 1
s_barrier
s_branch L_round
L_lastq:
s_cmp_eq_u32 s{sMORE}, 0
s_cbranch_scc1 L_epi
s_add_u32 s{sK}, s{sK}, 1
s_mov_b32 s{sQ}, 0
s_mov_b32 s{sSPLIT}, 0
s_barrier
s_branch L_round
L_epi:
v_and_b32 v4, 63, v0
v_lshrrev_b32 v2, 4, v4
v_bfe_u32 v3, v4, 2, 2
v_lshl_add_u32 v2, v2, 3, v3
v_mul_u32_u24 v2, {2*MIXROW}, v2
v_and_b32 v3, 3, v4
v_lshl_add_u32 v2, v3, 3, v2
v_add_u32 v2, {CMIX}, v2
""")
    for t in range(4):
        for ks in range(2):
            for q in range(2):
                d = vB + 8 * t + 4 * ks + 2 * q
                a(f"ds_read_b64_tr_b16 v[{d}:{d+1}], v2 offset:{(8*q + ks)*MIXROW + (t&1)*64 + (t>>1)*32}")
    a(f"""
v_and_b32 v5, 15, v4
v_mul_u32_u24 v2, {ACC_ROW}, v5
v_lshrrev_b32 v3, 4, v4
v_lshl_add_u32 v2, v3, 6, v2
s_mul_i32 s{sT0}, s{sWAVE}, {4*ACC_NODE}
s_add_u32 s{sT0}, s{sT0}, {ACC}
v_add_u32 v2, s{sT0}, v2
s_lshl_b32 s{sT0}, s{sWAVE}, 2
s_add_u32 s{sT0}, s{sT0}, s{sN0}
v_add_u32 v3, s{sT0}, v3
v_cmp_gt_u32 vcc, s{sNN}, v3
v_lshlrev_b32 v3, 9, v3
v_lshl_add_u32 v3, v5, 4, v3
s_mov_b32 s{sT0}, {LN2:#x}
s_barrier
""")
    stamp("main")
    if STAMPS:
        a("s_memtime s[98:99]")
    a(f"""
s_cmp_ge_u32 s{sWAVE}, 10
s_cbranch_scc1 L_end
""")
    for ks in range(2):
        for hh in range(4):
            a(f"ds_read_b128 v[{vEA+16*ks+4*hh}:{vEA+16*ks+4*hh+3}], v2 offset:{ks*256+hh*16}")
    a("s_waitcnt lgkmcnt(0)")
    for j in range(16):
        a(f"v_cvt_f32_f64 v{vEA+j}, v[{vEA+2*j}:{vEA+2*j+1}]")
    for j in range(16):
        a(f"v_mul_f32 v{vEA+j}, s{sT0}, v{vEA+j}")
    for j in range(8):
        a(f"v_cvt_pk_bf16_f32 v{vPA+j}, v{vEA+2*j}, v{vEA+2*j+1}")
    a("s_nop 1")
    for ks in range(2):
        for t in range(4):
            c = "0" if ks == 0 else f"v[{vD+4*t}:{vD+4*t+3}]"
            a(f"v_mfma_f32_16x16x32_bf16 v[{vD+4*t}:{vD+4*t+3}], v[{vPA+4*ks}:{vPA+4*ks+3}], v[{vB+8*t+4*ks}:{vB+8*t+4*ks+3}], {c}")
    a("s_nop 7")
    for j in range(8):
        a(f"v_cvt_pk_bf16_f32 v{vEA+j}, v{vD+2*j}, v{vD+2*j+1}")
    a(f"""
s_and_b64 exec, exec, vcc
s_cbranch_execz L_end
buffer_store_dwordx4 v[{vEA}:{vEA+3}], v3, s[{S_OUT}:{S_OUT+3}], 0 offen sc1
buffer_store_dwordx4 v[{vEA+4}:{vEA+7}], v3, s[{S_OUT}:{S_OUT+3}], 0 offen offset:256 sc1
""")
    if STAMPS:
        a("s_waitcnt vmcnt(0)")
        stamp("end")
        a("s_waitcnt lgkmcnt(0)")
        srd(a, 56, 10, 0x20000, WS_STAMP)
        a("s_mov_b64 exec, -1\nv_cmp_eq_u32 vcc, " + str(64 * o.get('stw', 0)) + ", v0\ns_and_b64 exec, exec, vcc\ns_cbranch_execz L_end")
        a("s_lshl_b32 s3, s2, 7\nv_mov_b32 v4, s3")
        for i in range(12):
            a(f"v_mov_b32 v2, s{76+2*i}\nv_mov_b32 v3, s{77+2*i}\nbuffer_store_dwordx2 v[2:3], v4, s[56:59], 0 offen offset:{8*i}")
    a("L_end:\ns_endpgm")

    out = HEADER
    out += f"; @launch grid=({NB},1,1) block=({T},1,1) lds={LDS}\n"
    out += '.amdgcn_target "amdgcn-amd-amdhsa--gfx950"\n.text\n'
    out += f".globl {K}\n.p2align 8\n.type {K},@function\n{a.text()}"
    out += '.section .rodata,"a"\n.p2align 6\n' + descriptor(K, n_vgpr, n_sgpr)
    return out, dict(vgpr=n_vgpr, sgpr=n_sgpr, lds=LDS)

if __name__ == "__main__":
    o = {}
    path = "cdna_kernels/" + NAME + ".s"
    for arg in sys.argv[1:]:
        k, v = arg.split("=", 1)
        if k == "out":
            path = v
        else:
            o[k] = int(v) if v.lstrip("-").isdigit() else v.replace("+", " ")
    txt, info = gen(o)
    open(path, "w").write(txt)
    print(path, info)
```

```python
import sys, re

NAME = "standalone__tensor_product_equiv_tfn__graph"
N_NODES, N_EDGES = 10000, 640000
NB = 256
CH = 2500
REC = 12
CS = 30080
WS_TAB, WS_STAMP, WS_ENT = 0x800000, 0xA00000, 0x1000000
ACC_ROW = 528
ACC_NODE = 4 * ACC_ROW
MIXROW = 144
PAD_X = 0x7FFF0000
PAD_E = 0x01FFFFE0
NW, T, NG, PW = 16, 1024, 4, 10
HT = (NW - PW) * 64
SPIN = 1 << 18
LOG2E, LN2 = 0x3FB8AA3B, 0x3F317218
DEFAULTS = dict(nph=4, cap=3072, nc=12, ring=5, lead=-2, eft=18, pfj=25, accearly=5, plv=2, prew=1, cpf=1)

def magic(mul, div, lim):
    for S in range(8, 32):
        M = -(-(mul << S) // div)
        if M < 1 << 24 and (lim - 1) * M < 1 << 32 and all((x * M) >> S == x * mul // div for x in range(lim)):
            return M, S
    raise ValueError

class Asm:
    def __init__(self):
        self.L = []
    def __call__(self, s):
        for line in s.split("\n"):
            line = line.strip()
            if line:
                self.L.append(line if line.endswith(":") or line.startswith(";;") else "    " + line)
    def text(self):
        return "\n".join(self.L) + "\n"

def gen(opts):
    o = dict(DEFAULTS); o.update(opts)
    a = Asm()
    NPH, CAP, NC, RB = o["nph"], o["cap"], o["nc"], o["ring"]
    STAMPS = o.get("stamps")
    D = 4
    NP = CAP // 2 + 16
    assert NP % 32 == 16
    XO, EW, YY, ACC = 0, NP * 8, NP * 16, NP * 32
    H1 = ACC + 40 * ACC_NODE
    EPOCH = H1 + 1024 + 16
    H2 = H1 + 1024 + 64
    MISC = H2 + 1024
    FLG = MISC + 64
    CMIX = FLG + 64
    CW = CMIX + 64 * MIXROW
    CCG = CW + 2048
    RING = CW
    LDS = RING + 16384
    MB, SB = magic(NB, N_NODES, N_NODES)
    MP, SP = magic(NPH, N_NODES, N_NODES)
    ACC_EARLY = min(o["accearly"] * HT * 16, 40 * ACC_NODE)

    S_X, S_EF, S_ENT, S_TAB, S_A, S_OUT = 12, 16, 20, 24, 28, 32
    sTAGL, sTAGH, sCNT, sPM = 4, 5, 6, 8
    sB, sN0, sNN, sWAVE, sK, sQ, sSPLIT, sNBLK = 36, 37, 38, 39, 40, 41, 42, 43
    sFMN, sNXT, sFM, sT0, sT1, sEMASK, sMORE = 44, 46, 47, 48, 49, 50, 51
    sMASK = 52
    sPEND, sISS, sNEW, sLIM, sMP, sFIRST, sSEL = 68, 69, 70, 71, 72, 73, 74
    n_sgpr = 100 if STAMPS else 76

    vXL, vW, vCG = 1, 2, 10
    vAL, vCX, vCE, vCY, vEH, vRL = 18, 19, 20, 21, 22, 23
    base = r = 24
    vU = r; r += 32
    vX = r; r += 4 * D
    vXC, vXN, vXA = r, r + 1, r + 2; r += 4
    vTP = r; r += 8
    vACC = r; r += 8
    vK = r; r += 4
    vEF = r; r += 4
    vT = r; r += 4
    vY = r; r += 2
    vTM = r; r += 2
    vEWC, vEWN, vQ, vFA, vFV, vRA = range(r, r + 6); r += 6
    n_main = r
    r = base
    vTB = r; r += 8
    vEN = r; r += 8 * NG
    vRK = r; r += 2 * NG
    vKY = r; r += 2 * NG
    vF = r; r += 16
    vONE, vJ, vJ16, vH2, vWC = r, r + 1, r + 2, r + 3, r + 4; r += 4 + NG
    vPF = max(n_main, r, base + 88)
    n_vgpr = vPF + 1

    def emit(lst):
        for ins in lst:
            a(ins)
    marks = o.get("marks", "start B4 join poll0 rank F2 F3 sort main end").split()
    def stamp(name, wait=False):
        if STAMPS:
            for i, m in enumerate(marks):
                if m == name:
                    a(f"s_memrealtime s[{76+2*i}:{77+2*i}]")
            if wait:
                a("s_waitcnt lgkmcnt(0)")
    def srd(d, ptr, nbytes, off=0):
        if off:
            a(f"s_add_u32 s{d}, s{ptr}, {off:#x}\ns_addc_u32 s{d+1}, s{ptr+1}, 0")
        else:
            a(f"s_mov_b32 s{d}, s{ptr}\ns_mov_b32 s{d+1}, s{ptr+1}")
        a(f"s_mov_b32 s{d+2}, {nbytes}\ns_mov_b32 s{d+3}, 0x20000")
    def scan4(c, t):
        a(f"""v_add_u32 v{t+1}, v{c}, v{c+1}
v_add_u32 v{t+2}, v{t+1}, v{c+2}
v_add_u32 v{t+3}, v{t+2}, v{c+3}
v_mov_b32 v{t+4}, v{t+3}""")
        for k, ctl in enumerate(("row_shr:1", "row_shr:2", "row_shr:4", "row_shr:8",
                                 "row_bcast:15 row_mask:0xa", "row_bcast:31 row_mask:0xc")):
            a(f"s_nop {0 if k == 0 else 1}\nv_add_u32_dpp v{t+3}, v{t+3}, v{t+3} {ctl}")
        a(f"""v_sub_u32 v{t}, v{t+3}, v{t+4}
v_add_u32 v{t+3}, v{t}, v{t+2}
v_add_u32 v{t+2}, v{t}, v{t+1}
v_add_u32 v{t+1}, v{t}, v{c}""")
    def lds_fill(start, nbytes, val, vtid, nthr, v):
        a(f"v_lshlrev_b32 v{v+4}, 4, v{vtid}")
        if val is not None:
            for j in range(4):
                a(f"v_mov_b32 v{v+j}, {val:#x}")
        n = nbytes // 16
        assert nbytes % 16 == 0
        k = 0
        while k * nthr < n:
            rem = n - k * nthr
            if start + k * nthr * 16 >= 65536:
                a(f"v_add_u32 v{v+4}, {start + k*nthr*16}, v{v+4}")
                start = -k * nthr * 16
            if rem < nthr:
                a(f"v_cmp_gt_u32 vcc, {rem}, v{vtid}\ns_and_saveexec_b64 s[{sT0}:{sT1}], vcc")
            a(f"ds_write_b128 v{v+4}, v[{v}:{v+3}] offset:{start + k*nthr*16}")
            if rem < nthr:
                a(f"s_mov_b64 exec, s[{sT0}:{sT1}]")
            k += 1
    def common_srds():
        srd(S_X, 56, 0 if o.get("nox") else N_NODES * 512)
        srd(S_EF, 64, 0 if o.get("noef") else N_EDGES * 32)
        srd(S_OUT, 72, N_NODES * 512)
        srd(S_ENT, 10, NB * CS, WS_ENT)
        srd(S_TAB, 10, NB * NB * 8, WS_TAB)
    def bound(limit):
        a(f"s_add_u32 s{sCNT}, s{sCNT}, 1\ns_cmp_ge_u32 s{sCNT}, {limit}\ns_cbranch_scc1 L_end")

    K = NAME + "_kernel"
    a(f"""
{K}:
s_cmp_ge_u32 s2, {NB}
s_cbranch_scc1 L_end
""")
    stamp("start")
    a(f"""
s_load_dwordx16 s[56:71], s[0:1], 0
s_load_dwordx4 s[72:75], s[0:1], 64
s_load_dwordx2 s[10:11], s[0:1], 80
v_lshrrev_b32 v2, 6, v0
v_lshlrev_b32 v46, 4, v0
v_readfirstlane_b32 s{sWAVE}, v2
s_cmp_ge_u32 s{sWAVE}, {PW}
s_cbranch_scc1 L_helper
;; ---- phase A, waves 0..9: order the chunk's edges by destination bucket, publish records and offsets
v_cmp_gt_u32 vcc, {CH//4}, v0
s_mov_b64 exec, vcc
v_lshlrev_b32 v2, 5, v0
v_lshlrev_b32 v3, 2, v0
s_mul_i32 s3, s2, {CH*4}
s_mul_i32 s7, s2, {CH*8}
s_waitcnt lgkmcnt(0)
""")
    srd(S_A, 60, N_EDGES * 4)
    a(f"buffer_load_dwordx4 v[4:7], v46, s[{S_A}:{S_A+3}], s3 offen")
    srd(40, 58, N_EDGES * 4)
    srd(44, 62, N_EDGES * 8)
    a(f"""
s_barrier
buffer_load_dwordx4 v[8:11], v46, s[40:43], s3 offen
buffer_load_dwordx4 v[12:15], v2, s[44:47], s7 offen
buffer_load_dwordx4 v[16:19], v2, s[44:47], s7 offen offset:16
""")
    common_srds()
    a(f"""
s_mov_b32 s8, {MB}
s_movk_i32 s9, 625
v_mov_b32 v21, 1
v_mov_b32 v22, {H1}
s_waitcnt vmcnt(3)
""")
    for k in range(4):
        a(f"""v_mul_u32_u24 v{24+k}, s8, v{4+k}
v_lshrrev_b32 v{24+k}, {SB}, v{24+k}
v_lshl_add_u32 v{28+k}, v{24+k}, 2, v22
ds_add_rtn_u32 v{32+k}, v{28+k}, v21""")
    for k in range(4):
        a(f"""v_mad_u32_u24 v{24+k}, v{24+k}, s9, 15
v_lshrrev_b32 v{24+k}, 4, v{24+k}
v_sub_u32 v{24+k}, v{4+k}, v{24+k}
v_add_u32 v{36+k}, {k}, v3
v_lshlrev_b32 v{36+k}, 20, v{36+k}
v_lshl_or_b32 v{36+k}, v{24+k}, 14, v{36+k}""")
    a(f"""
s_waitcnt lgkmcnt(0)
s_barrier
s_cmp_lg_u32 s{sWAVE}, 0
s_cbranch_scc1 L_a_noscan
v_add_u32 v47, v46, v22
ds_read_b128 v[40:43], v47
s_waitcnt lgkmcnt(0)
""")
    scan4(40, 48)
    a(f"""
ds_write_b128 v47, v[48:51]
s_waitcnt lgkmcnt(0)
L_a_noscan:
s_barrier
""")
    for k in range(4):
        a(f"ds_read_b32 v{24+k}, v{28+k}")
    a(f"""
v_and_b32 v47, 0x7f, v0
v_lshl_add_u32 v47, v47, 3, v22
ds_read_b64 v[40:41], v47
ds_read_b32 v42, v47 offset:8
s_waitcnt vmcnt(2)
""")
    for k in range(4):
        a(f"""v_or_b32 v{36+k}, v{36+k}, v{8+k}
s_waitcnt lgkmcnt({5-k})
v_add_u32 v{24+k}, v{24+k}, v{32+k}
v_mul_u32_u24 v{24+k}, {REC}, v{24+k}""")
    for k in range(4):
        a(f"ds_write_b32 v{24+k}, v{36+k} offset:8")
    a(f"""
s_waitcnt lgkmcnt(4)
v_sub_u32 v42, v42, v41
v_sub_u32 v43, v41, v40
v_lshl_or_b32 v42, v42, 12, v41
v_lshl_or_b32 v40, v43, 12, v40
s_mul_i32 s3, s2, {CS}
s_waitcnt vmcnt(0)
""")
    for k in range(4):
        a(f"ds_write2_b32 v{24+k}, v{12+2*k}, v{13+2*k} offset0:0 offset1:1")
    a(f"""
s_mov_b64 exec, -1
v_cmp_gt_u32 vcc, {CS//16 - 2*PW*64}, v0
s_waitcnt lgkmcnt(0)
s_barrier
""")
    stamp("B4", True)
    for k in range(3):
        a(f"ds_read_b128 v[{48+4*k}:{51+4*k}], v46 offset:{k*PW*1024}")
    for k in range(3):
        a(f"s_waitcnt lgkmcnt({2-k})")
        if k == 2:
            a("s_mov_b64 exec, vcc")
        a(f"buffer_store_dwordx4 v[{48+4*k}:{51+4*k}], v46, s[{S_ENT}:{S_ENT+3}], s3 offen sc1")
        if k < 2:
            a(f"s_add_u32 s3, s3, {PW*1024}")
    a(f"""
s_mov_b64 exec, -1
s_branch L_join
L_helper:
v_subrev_u32 v2, {PW*64}, v0
v_and_b32 v3, 63, v0
""")
    if o.get("cpf"):
        a(f"""s_cmp_lg_u32 s{sWAVE}, {PW+3}
s_cbranch_scc1 L_h_nocode
s_getpc_b64 s[8:9]
L_h_pc:
s_lshr_b32 s3, s2, 3
v_and_b32 v9, 7, v0
v_lshl_add_u32 v9, v9, 5, s3
v_lshlrev_b32 v9, 7, v9
v_min_u32 v9, L_end-L_h_pc, v9
s_mov_b64 exec, 0xff
global_load_dword v{vPF}, v9, s[8:9]
s_mov_b64 exec, -1
L_h_nocode:""")
    lds_fill(H1, 1024, 0, 2, HT, 4)
    a(f"""
v_mov_b32 v9, {H1+1024}
v_mov_b32 v10, {CH}
ds_write_b32 v9, v10
s_waitcnt lgkmcnt(0)
""")
    srd(S_A, 74, 256)
    a(f"""
s_cmp_lg_u32 s{sWAVE}, {PW+2}
s_cbranch_scc1 L_h_nopub
s_cmp_lg_u32 s2, 0
s_cbranch_scc1 L_h_nopub
s_memrealtime s[8:9]
s_waitcnt lgkmcnt(0)
s_and_b32 s9, s9, 0xff
s_or_b32 s9, s9, 0x100
v_mov_b32 v10, s8
v_mov_b32 v11, s9
s_mov_b64 exec, 1
buffer_store_dwordx2 v[10:11], v4, s[{S_A}:{S_A+3}], 0 offen sc1
s_mov_b64 exec, -1
L_h_nopub:
s_barrier
""")
    common_srds()
    if o["prew"]:
        a(f"""s_cmp_ge_u32 s{sWAVE}, {PW+2}
s_cbranch_scc1 L_h_noprew
v_lshlrev_b32 v9, 4, v2
s_lshl_b32 s7, s2, 11
buffer_store_dwordx4 v[4:7], v9, s[{S_TAB}:{S_TAB+3}], s7 offen sc1
L_h_noprew:""")
    if ACC_EARLY:
        lds_fill(ACC, ACC_EARLY, None, 2, HT, 4)
    a(f"""
s_barrier
s_cmp_lg_u32 s{sWAVE}, {NW-1}
s_cbranch_scc1 L_h_nopoll
buffer_load_dwordx2 v[14:15], v4, s[{S_A}:{S_A+3}], 0 offen sc1
L_h_nopoll:
s_barrier
s_cmp_eq_u32 s{sWAVE}, {PW}
s_cbranch_scc1 L_h_w
s_cmp_eq_u32 s{sWAVE}, {PW+1}
s_cbranch_scc1 L_h_cg
""")
    srd(40, 70, 64 * 64 * 2)
    a(f"""
v_subrev_u32 v10, {(PW+2)*64*16}, v46
buffer_load_dwordx4 v[16:19], v10, s[40:43], 0 offen
v_add_u32 v11, 4096, v10
buffer_load_dwordx4 v[20:23], v11, s[40:43], 0 offen
s_barrier
s_cmp_lg_u32 s{sWAVE}, {NW-1}
s_cbranch_scc1 L_h_mix
s_mov_b32 s{sCNT}, 0
s_waitcnt vmcnt(2)
L_h_poll:
v_readfirstlane_b32 s{sT0}, v15
s_cmp_lg_u32 s{sT0}, 0
s_cbranch_scc1 L_h_polled
""")
    bound(SPIN)
    a(f"""
buffer_load_dwordx2 v[14:15], v4, s[{S_A}:{S_A+3}], 0 offen sc1
s_waitcnt vmcnt(0)
s_branch L_h_poll
L_h_polled:
v_mov_b32 v12, {EPOCH}
v_and_b32 v15, 0xff, v15
ds_write_b64 v12, v[14:15]
L_h_mix:
v_lshrrev_b32 v4, 7, v10
v_mul_u32_u24 v5, {MIXROW}, v4
v_and_b32 v6, 7, v3
v_lshl_add_u32 v5, v6, 3, v5
v_add_u32 v5, {CMIX}, v5
s_mov_b32 s8, 0x05040100
s_mov_b32 s9, 0x07060302
s_waitcnt vmcnt(0)
""")
    for half in range(2):
        q, t = 16 + 4 * half, 24 + 4 * half
        a(f"""v_perm_b32 v{t}, v{q+1}, v{q}, s8
v_perm_b32 v{t+1}, v{q+3}, v{q+2}, s8
v_perm_b32 v{t+2}, v{q+1}, v{q}, s9
v_perm_b32 v{t+3}, v{q+3}, v{q+2}, s9
ds_write_b64 v5, v[{t}:{t+1}] offset:{half*32*MIXROW}
ds_write_b64 v5, v[{t+2}:{t+3}] offset:{half*32*MIXROW + 64}""")
    a("s_branch L_join\nL_h_cg:")
    srd(40, 68, 64 * 2)
    a("v_and_b32 v10, 3, v3\nv_lshlrev_b32 v10, 1, v10")
    for j in range(16):
        a(f"buffer_load_ushort v{16+j}, v10, s[40:43], 0 offen offset:{j*8}")
    a(f"v_lshlrev_b32 v9, 4, v3\nv_add_u32 v9, {CCG}, v9\ns_barrier\ns_waitcnt vmcnt(0)")
    for j in range(8):
        a(f"v_lshl_or_b32 v{32+j}, v{17+2*j}, 16, v{16+2*j}")
    a("ds_write_b128 v9, v[32:35]\nds_write_b128 v9, v[36:39] offset:1024\ns_branch L_join\nL_h_w:")
    srd(40, 66, 16 * 64 * 2)
    a("""v_lshrrev_b32 v10, 5, v3
v_lshlrev_b32 v10, 10, v10
v_and_b32 v11, 31, v3
v_lshl_add_u32 v10, v11, 2, v10""")
    for i in range(8):
        a(f"buffer_load_dword v{16+i}, v10, s[40:43], 0 offen offset:{i*128}")
    a(f"""v_lshlrev_b32 v9, 4, v3
v_add_u32 v9, {CW}, v9
s_mov_b32 s8, {LOG2E:#x}
s_barrier
s_waitcnt vmcnt(0)""")
    for i in range(8):
        a(f"""v_lshlrev_b32 v{24+i}, 16, v{16+i}
v_and_b32 v{32+i}, 0xffff0000, v{16+i}
v_mul_f32 v{24+i}, s8, v{24+i}
v_mul_f32 v{32+i}, s8, v{32+i}""")
    for j in range(8):
        a(f"v_cvt_pk_bf16_f32 v{16+j}, v{24+2*j}, v{25+2*j}")
    a("ds_write_b128 v9, v[16:19]\nds_write_b128 v9, v[20:23] offset:1024")

    lane, tmp = vF, vF + 3
    a(f"""
L_join:
s_waitcnt lgkmcnt(0)
s_barrier
v_and_b32 v{lane}, 63, v0
v_lshlrev_b32 v{vF+1}, 4, v{lane}
v_add_u32 v{vF+1}, {CW}, v{vF+1}
v_mov_b32 v{vF+2}, {EPOCH}
ds_read_b64 v[44:45], v{vF+2}
""")
    for q in range(4):
        a(f"ds_read_b128 v[{vW+4*q}:{vW+4*q+3}], v{vF+1} offset:{q*1024}")
    a(f"""
s_and_b32 s{sB}, s2, 7
s_lshl_b32 s{sB}, s{sB}, 5
s_lshr_b32 s3, s2, 3
s_add_u32 s{sB}, s{sB}, s3
s_mul_i32 s{sN0}, s{sB}, 625
s_add_u32 s{sNN}, s{sN0}, {625+15}
s_add_u32 s{sN0}, s{sN0}, 15
s_lshr_b32 s{sN0}, s{sN0}, 4
s_lshr_b32 s{sNN}, s{sNN}, 4
s_mov_b32 s{sK}, 0
s_mov_b32 s{sQ}, 0
s_mov_b32 s{sSPLIT}, 0
s_mov_b32 s{sFIRST}, 1
s_mov_b32 s{sMP}, {MP}
s_mov_b32 s{sEMASK}, {o.get('emask', 0x01ffffff):#x}
v_and_b32 v{tmp}, 31, v{lane}
v_lshlrev_b32 v{vXL}, 4, v{tmp}
v_lshlrev_b32 v{vAL}, 3, v{lane}
v_add_u32 v{vAL}, {ACC}, v{vAL}
v_lshrrev_b32 v{vEH}, 5, v{lane}
v_mul_u32_u24 v{vCX}, {NP*4}, v{vEH}
v_and_b32 v{tmp}, 15, v{lane}
v_lshl_add_u32 v{vCX}, v{tmp}, 2, v{vCX}
v_mul_u32_u24 v{vCY}, {NP}, v{vEH}
v_lshlrev_b32 v{vEH}, 4, v{vEH}
v_lshl_add_u32 v{vRL}, v{vXL}, 1, v{vEH}
v_add_u32 v{vRL}, {RING}, v{vRL}
v_bfe_u32 v{vCE}, v{lane}, 2, 1
v_mul_u32_u24 v{vCE}, {NP}, v{vCE}
v_bfe_u32 v{tmp}, v{lane}, 3, 2
v_lshl_add_u32 v{vCE}, v{tmp}, 2, v{vCE}
v_and_b32 v{tmp}, 3, v{lane}
v_add_lshl_u32 v{vCE}, v{vCE}, v{tmp}, 2
v_and_b32 v{tmp}, 1, v{lane}
v_lshl_add_u32 v{vCY}, v{tmp}, 3, v{vCY}
v_bfe_u32 v{tmp}, v{lane}, 2, 3
v_add_lshl_u32 v{vCY}, v{vCY}, v{tmp}, 3
s_waitcnt lgkmcnt(0)
v_readfirstlane_b32 s{sTAGH}, v44
v_readfirstlane_b32 s{sTAGL}, v45
v_lshl_or_b32 v42, v45, 24, v42
v_lshl_or_b32 v40, v45, 24, v40
v_mov_b32 v41, v44
v_mov_b32 v43, v44
L_round:
""")
    lds_fill(H2, 1024 + 128, 0, 0, T, vF)
    lds_fill(YY, NP * 16, None, 0, T, vF)
    lds_fill(XO, NP * 8, PAD_X, 0, T, vF)
    lds_fill(EW, NP * 8, PAD_E, 0, T, vF)
    a(f"""
v_lshrrev_b32 v{vF+6}, 4, v0
v_and_b32 v{vF+7}, 3, v0
v_lshl_add_u32 v{vF+8}, v{vF+7}, 6, v{vF+6}
s_lshl_b32 s3, s{sB}, 3
v_lshl_add_u32 v{vTB+2}, v{vF+8}, 11, s3
v_and_b32 v{vF+7}, s{sSPLIT}, v{vF+7}
v_cmp_eq_u32 s[{sSEL}:{sSEL+1}], s{sQ}, v{vF+7}
s_mov_b32 s{sPM}, 0x000f000f
s_mov_b32 s{sPM+1}, 0x000f000f
v_mov_b32 v{vONE}, 1
v_mov_b32 v{vH2}, {H2}
v_and_b32 v{vJ}, 15, v0
s_lshl_b32 s{sLIM}, s{sK}, 5
v_add_u32 v{vJ}, s{sLIM}, v{vJ}
s_add_u32 s{sLIM}, s{sLIM}, 32
v_add_u32 v{vJ16}, 16, v{vJ}
v_mul_u32_u24 v{vWC}, {CH}, v{vF+6}
v_mul_u32_u24 v{vTB+4}, {CS}, v{vF+6}
v_mad_u32_u24 v{vTB+4}, v{vJ}, {REC}, v{vTB+4}
""")
    for g in range(1, NG):
        a(f"v_add_u32 v{vWC+g}, {g*64*CH}, v{vWC}\nv_add_u32 v{vTB+4+g}, {g*64*CS}, v{vTB+4}")
    per = -(-(N_NODES * 4 * o["pfj"] // 32) // NB)
    a(f"""
s_mov_b32 s{sCNT}, 0
s_mov_b32 s{sPEND}, 15
s_mov_b32 s{sISS}, 0
s_lshl_b32 s7, s2, 11
s_mul_i32 s3, s2, {per}
v_subrev_u32 v{vF+8}, 128, v0
v_min_u32 v{vF+8}, {max(per-1, 0)}, v{vF+8}
v_add_lshl_u32 v{vF+8}, v{vF+8}, s3, 7
s_waitcnt vmcnt(0) lgkmcnt(0)
s_barrier
""")
    stamp("join")
    a(f"""
s_cmp_eq_u32 s{sFIRST}, 0
s_cbranch_scc1 L_nofirst
s_mov_b32 s{sFIRST}, 0
s_cmp_ge_u32 s{sWAVE}, 2
s_cbranch_scc1 L_notab
buffer_store_dwordx4 v[40:43], v46, s[{S_TAB}:{S_TAB+3}], s7 offen sc1
s_branch L_nopf
L_notab:
s_cmp_ge_u32 s{sWAVE}, {2 + -(-per // 64)}
s_cbranch_scc1 L_nopf
buffer_load_dword v{vPF}, v{vF+8}, s[{S_X}:{S_X+3}], 0 offen
L_nopf:
""")
    if ACC_EARLY < 40 * ACC_NODE:
        lds_fill(ACC + ACC_EARLY, 40 * ACC_NODE - ACC_EARLY, 0, 0, T, vF)
        a("s_waitcnt lgkmcnt(0)\ns_barrier")
    poll = f"""
s_mov_b64 exec, s[{sPM}:{sPM+1}]
buffer_load_dwordx2 v[{vTB}:{vTB+1}], v{vTB+2}, s[{S_TAB}:{S_TAB+3}], 0 offen sc1
s_mov_b64 exec, -1
"""
    a("L_nofirst:")
    a(poll)
    stamp("poll0")
    a(f"""
L_poll:
s_mov_b32 s{sNEW}, 0
s_cmp_eq_u32 s{sPEND}, 0
s_waitcnt vmcnt(0)
s_cbranch_scc1 L_ranks
""")
    stamp("last")
    a(f"""
v_lshrrev_b32 v{vF}, 24, v{vTB}
v_cmp_ne_u32 s[{sT0}:{sT1}], s{sTAGH}, v{vTB+1}
v_cmp_ne_u32 vcc, s{sTAGL}, v{vF}
v_bfe_u32 v{vF+3}, v{vTB}, 12, 12
v_and_b32 v{vF+4}, 0xfff, v{vTB}
v_cndmask_b32 v{vF+3}, 0, v{vF+3}, s[{sSEL}:{sSEL+1}]
v_mul_u32_u24 v{vF+4}, {REC}, v{vF+4}
s_or_b64 vcc, vcc, s[{sT0}:{sT1}]
s_and_b64 s[{sPM}:{sPM+1}], s[{sPM}:{sPM+1}], vcc
s_or_b32 s{sT0}, s{sPM}, s{sPM+1}
s_lshr_b32 s{sT1}, s{sT0}, 16
s_or_b32 s{sT0}, s{sT0}, s{sT1}
s_andn2_b32 s{sNEW}, s{sPEND}, s{sT0}
s_and_b32 s{sPEND}, s{sPEND}, s{sT0}
""")
    for g in range(NG):
        m0, m1 = sMASK + 4 * g, sMASK + 4 * g + 2
        a(f"""s_bitcmp0_b32 s{sNEW}, {g}
s_cbranch_scc1 L_is{g}
v_mov_b32_dpp v{vF}, v{vF+3} row_newbcast:{g} row_mask:0xf bank_mask:0xf
v_add_u32_dpp v{vTB+4+g}, v{vF+4}, v{vTB+4+g} row_newbcast:{g} row_mask:0xf bank_mask:0xf
v_cmp_lt_u32 s[{m0}:{m0+1}], v{vJ}, v{vF}
v_cmp_lt_u32 s[{m1}:{m1+1}], v{vJ16}, v{vF}
s_mov_b64 exec, s[{m0}:{m0+1}]
s_cbranch_execz L_it{g}
buffer_load_dwordx3 v[{vEN+8*g}:{vEN+8*g+2}], v{vTB+4+g}, s[{S_ENT}:{S_ENT+3}], 0 offen sc1
s_mov_b64 exec, s[{m1}:{m1+1}]
s_cbranch_execz L_it{g}
buffer_load_dwordx3 v[{vEN+8*g+4}:{vEN+8*g+6}], v{vTB+4+g}, s[{S_ENT}:{S_ENT+3}], 0 offen offset:{16*REC} sc1
L_it{g}:
s_mov_b64 exec, -1
L_is{g}:""")
    stamp("ready")
    a(f"s_cmp_eq_u32 s{sPEND}, 0\ns_cbranch_scc1 L_ranks")
    bound(SPIN)
    a(poll)
    a("L_ranks:")
    def for_parts(body, tag, groups=range(NG)):
        for g in groups:
            for p in range(2):
                i = 2 * g + p
                a(f"s_mov_b64 exec, s[{sMASK+2*i}:{sMASK+2*i+1}]")
                if p:
                    a(f"s_cbranch_execz L_{tag}{g}")
                body(g, i, vEN + 4 * i)
                if p:
                    a(f"L_{tag}{g}:")
        a("s_mov_b64 exec, -1")
    def rank_body(g, i, e):
        a(f"""v_bfe_u32 v{vF+1}, v{e+2}, 14, 6
v_and_b32 v{vF}, 0x3fff, v{e+2}
v_mul_u32_u24 v{vF+2}, s{sMP}, v{vF}
v_lshrrev_b32 v{vF+2}, {SP}, v{vF+2}
v_mad_u32_u24 v{vF+2}, v{vF+2}, 40, v{vF+1}
v_lshl_add_u32 v{vKY+i}, v{vF+2}, 2, v{vH2}
ds_add_rtn_u32 v{vRK+i}, v{vKY+i}, v{vONE}
v_lshrrev_b32 v{e+3}, 20, v{e+2}
v_add_lshl_u32 v{vF+5}, v{e+3}, v{vWC+g}, 5
v_lshl_or_b32 v{e+3}, v{vF+1}, 25, v{vF+5}""")
        if o.get("xmask"):
            a(f"v_and_b32 v{vF}, {o['xmask']:#x}, v{vF}")
        if o.get("eftr"):
            a(f"v_cmp_gt_u32 vcc, {o['eftr']}, v{vF+2}")
        a(f"v_lshlrev_b32 v{e+2}, 9, v{vF}")
        if o.get("eftr"):
            a(f"""s_and_b64 exec, exec, vcc
s_cbranch_execz L_eftr{i}
buffer_load_dword v{vPF}, v{vF+5}, s[{S_EF}:{S_EF+3}], 0 offen
L_eftr{i}:""")
    for g in range(NG):
        a(f"s_bitcmp0_b32 s{sISS}, {g}\ns_cbranch_scc1 L_rs{g}")
        for_parts(rank_body, "rk", [g])
        a(f"L_rs{g}:")
    a(f"""
s_mov_b32 s{sISS}, s{sNEW}
s_or_b32 s{sT0}, s{sPEND}, s{sISS}
s_cbranch_scc1 L_poll
v_bfe_u32 v{vF+3}, v{vTB}, 12, 12
v_cmp_lt_u32 vcc, s{sLIM}, v{vF+3}
s_or_b32 s{sT0}, vcc_lo, vcc_hi
s_and_b32 s{sT0}, s{sT0}, 0x000f000f
s_cbranch_scc0 L_nomore
v_mov_b32 v{vF}, {MISC+8}
ds_write_b32 v{vF}, v{vONE}
L_nomore:
s_movk_i32 s{sT0}, {NP*4 - 2}
s_brev_b32 s{sT1}, 1
s_waitcnt lgkmcnt(0)
""")
    stamp("rank")
    a("s_barrier")
    stamp("F2")
    a(f"""
s_cmp_lg_u32 s{sWAVE}, 0
s_cbranch_scc1 L_noscan
{"s_setprio 3" if o.get("fs") else ""}
v_lshl_add_u32 v{vF+9}, v0, 4, v{vH2}
ds_read_b128 v[{vF}:{vF+3}], v{vF+9}
s_waitcnt lgkmcnt(0)
""")
    for j in range(4):
        a(f"v_add_lshl_u32 v{vF+j}, v{vF+j}, 1, 1\nv_and_b32 v{vF+j}, -4, v{vF+j}")
    scan4(vF, vF + 4)
    a(f"ds_write_b128 v{vF+9}, v[{vF+4}:{vF+7}]")
    if o.get("fs") == 2:
        a("s_waitcnt lgkmcnt(0)\ns_barrier")
    a("L_noscan:")
    def pre_body(g, i, e):
        a(f"""v_add_u32 v{vF+10}, -1, v{vRK+i}
v_and_or_b32 v{e+3}, v{vF+10}, s{sT1}, v{e+3}
v_and_b32 v{vF+10}, 1, v{vRK+i}
v_lshlrev_b32 v{vRK+i}, 1, v{vRK+i}
v_mad_u32_u24 v{vRK+i}, v{vF+10}, s{sT0}, v{vRK+i}""")
        lo = o.get("eftr", 0)
        if o["eft"] <= lo:
            return
        if lo:
            a(f"v_subrev_u32 v{vF+11}, {H2 + 4*lo}, v{vKY+i}\nv_cmp_gt_u32 vcc, {4 * (o['eft'] - lo)}, v{vF+11}")
        else:
            a(f"v_cmp_gt_u32 vcc, {H2 + 4 * o['eft']}, v{vKY+i}")
        a(f"""
v_and_b32 v{vF+10}, s{sEMASK}, v{e+3}
s_and_b64 exec, exec, vcc
s_cbranch_execz L_eft{i}
buffer_load_dword v{vPF}, v{vF+10}, s[{S_EF}:{S_EF+3}], 0 offen
L_eft{i}:""")
    for_parts(pre_body, "pr")
    if o.get("fs") == 2:
        a(f"s_cmp_eq_u32 s{sWAVE}, 0\ns_cbranch_scc1 L_scanned\ns_barrier\nL_scanned:")
    else:
        a("s_waitcnt lgkmcnt(0)\ns_barrier")
    stamp("F3")
    a(f"ds_read_b32 v{vF+1}, v{vH2} offset:1020\nds_read_b32 v{vF+2}, v{vH2} offset:1032")
    for_parts(lambda g, i, e: a(f"ds_read_b32 v{vKY+i}, v{vKY+i}"), "st")
    a(f"""
s_waitcnt lgkmcnt(0)
v_readfirstlane_b32 s{sNBLK}, v{vF+1}
v_readfirstlane_b32 s{sMORE}, v{vF+2}
s_cmp_le_u32 s{sNBLK}, {CAP*2}
s_cbranch_scc1 L_fits
s_mov_b32 s{sSPLIT}, 3
s_barrier
s_branch L_round
L_fits:
""")
    if o.get("dly"):
        a(f"s_sleep {o['dly']}")
    def scat_body(g, i, e):
        a(f"""v_add_u32 v{vF}, v{vKY+i}, v{vRK+i}
v_lshlrev_b32 v{vF+3}, 1, v{vF}
ds_write_b32 v{vF}, v{e+2} offset:{XO}
ds_write_b32 v{vF}, v{e+3} offset:{EW}
ds_write_b64 v{vF+3}, v[{e}:{e+1}] offset:{YY}""")
    for_parts(scat_body, "sc")
    a(f"""
v_mov_b32 v{vF+2}, {PAD_E | 0x80000000:#x}
s_add_u32 s{sNBLK}, s{sNBLK}, 63
s_lshr_b32 s{sNBLK}, s{sNBLK}, 6
ds_write_b32 v{vF+1}, v{vF+2} offset:{EW}
s_waitcnt lgkmcnt(0)
s_barrier
""")
    stamp("sort")
    if STAMPS:
        a("s_memtime s[96:97]\ns_waitcnt lgkmcnt(0)")
    main_start = len(a.L)

    def rho(step):
        return 8 * (step // 4) + step % 4
    def block_reads(sreg):
        a(f"""s_lshl_b32 s{sT0}, s{sreg}, 6
s_lshl_b32 s{sT1}, s{sreg}, 7
v_add_u32 v{vEWN}, s{sT0}, v{vCE}
v_add_u32 v{vXN}, s{sT0}, v{vCX}
v_add_u32 v{vY}, s{sT1}, v{vCY}
ds_read_b32 v{vEWN}, v{vEWN} offset:{EW}
ds_read_b32 v{vXN}, v{vXN} offset:{XO}
ds_read_b64 v[{vY}:{vY+1}], v{vY} offset:{YY}""")
    def x_load(step):
        src = vXN if step >= 16 else vXC
        xa = vXA + (step & 1)
        d = vX + 4 * (step % D)
        return [f"v_add_u32_dpp v{xa}, v{src}, v{vXL} row_newbcast:{step % 16} row_mask:0xf bank_mask:0xf",
                f"buffer_load_dwordx4 v[{d}:{d+3}], v{xa}, s[{S_X}:{S_X+3}], 0 offen"]
    flags = f"v_cmp_gt_i32 s[{sFMN}:{sFMN+1}], 0, v{vEWN}"
    ring_read = f"ds_read_b32 v{vFV}, v{vFA}\nds_read_b128 v[{vEF}:{vEF+3}], v{vRA}"
    ring_test = f"""v_readfirstlane_b32 s{sT0}, v{vFV}
v_mov_b32 v{vFV}, 0
s_cmp_lg_u32 s{sT0}, s{sNXT}
s_cbranch_scc1 L_ring_wait"""
    KT = [vU, vU + 4, vU + 16, vU + 20]
    def k_mfma():
        return [f"v_mfma_f32_4x4x4_16b_bf16 v[{KT[i]}:{KT[i]+3}], v[{vY}:{vY+1}], v[{vCG+2*i}:{vCG+2*i+1}], 0" for i in range(4)]
    def k_cvt(j):
        return [f"v_cvt_pk_bf16_f32 v{vK+2*j}, v{KT[0]+j}, v{KT[1]+j}",
                f"v_cvt_pk_bf16_f32 v{vK+2*j+1}, v{KT[2]+j}, v{KT[3]+j}"]
    def u_mfma():
        return [f"v_mfma_f32_32x32x16_bf16 v[{vU+16*p}:{vU+16*p+15}], v[{vEF}:{vEF+3}], v[{vW+4*p}:{vW+4*p+3}], 0" for p in range(2)]
    def silu_ops(d):
        u = vU
        E = [f"v_exp_f32 v{vT+2*p+j}, -v{u+16*p+2*d+j}" for p in range(2) for j in range(2)]
        A = [f"v_pk_add_f32 v[{vT+2*p}:{vT+2*p+1}], v[{vT+2*p}:{vT+2*p+1}], 1.0 op_sel_hi:[1,0]" for p in range(2)]
        R = [f"v_rcp_f32 v{vT+2*p+j}, v{vT+2*p+j}" for p in range(2) for j in range(2)]
        M = [f"v_pk_mul_f32 v[{u+16*p+2*d}:{u+16*p+2*d+1}], v[{u+16*p+2*d}:{u+16*p+2*d+1}], v[{vT+2*p}:{vT+2*p+1}]" for p in range(2)]
        return E, A, R, M
    def fma_ops(step, first=False):
        d, j = divmod(step, 2)
        out = []
        for p in range(2):
            rr = vU + 16 * p + 2 * d
            for hh in range(2):
                t = vTP + 4 * p + 2 * hh
                c = vACC + 4 * p + 2 * hh
                if first:
                    out.append(f"v_pk_mul_f32 v[{c}:{c+1}], v[{t}:{t+1}], v[{rr}:{rr+1}] op_sel:[0,{j}] op_sel_hi:[1,{j}]")
                else:
                    out.append(f"v_pk_fma_f32 v[{c}:{c+1}], v[{t}:{t+1}], v[{rr}:{rr+1}], v[{c}:{c+1}] op_sel:[0,{j},0] op_sel_hi:[1,{j},1]")
        return out
    def tp_ops(step):
        out = []
        for p in range(2):
            t, x, k = vTP + 4 * p, vX + 4 * (step % D) + 2 * p, vK + 2 * (step // 8)
            out.append(f"v_mfma_f32_4x4x4_16b_bf16 v[{t}:{t+3}], v[{k}:{k+1}], v[{x}:{x+1}], 0 cbsz:3 abid:{step%8}")
        return out
    def flush_body(step, packed):
        c = vACC
        a(f"v_readlane_b32 s{sT0}, v{vEWC}, {rho(step)}\ns_nop 0")
        for oo in range(4):
            a(f"v_permlane32_swap_b32 v{c+oo}, v{c+4+oo}")
            if oo == 0:
                a(f"s_bfe_u32 s{sT0}, s{sT0}, 0x60019\ns_mul_i32 s{sT0}, s{sT0}, {ACC_NODE}")
        a(f"v_add_u32 v{vQ}, s{sT0}, v{vAL}")
        for h in (0, 2):
            if packed:
                a(f"v_pk_add_f32 v[{c+h}:{c+h+1}], v[{c+h}:{c+h+1}], v[{c+4+h}:{c+5+h}]")
            else:
                a(f"v_add_f32 v{c+h}, v{c+h}, v{c+4+h}\nv_add_f32 v{c+h+1}, v{c+h+1}, v{c+5+h}")
            a(f"""v_cvt_f64_f32 v[{c+4+h}:{c+5+h}], v{c+h}
v_cvt_f64_f32 v[{c+h}:{c+h+1}], v{c+h+1}
ds_add_f64 v{vQ}, v[{c+4+h}:{c+5+h}] offset:{h*ACC_ROW}
ds_add_f64 v{vQ}, v[{c+h}:{c+h+1}] offset:{(h+1)*ACC_ROW}""")

    a(f"""
s_min_u32 s{sT0}, s{sWAVE}, {NC}
s_cmp_ge_u32 s{sT0}, s{sNBLK}
s_cbranch_scc1 L_done
s_cmp_ge_u32 s{sWAVE}, {NC}
s_cbranch_scc1 L_loader
s_setprio 3
""")
    block_reads(sWAVE)
    a(f"""s_waitcnt lgkmcnt(0)
v_and_or_b32 v{vEF}, v{vEWN}, s{sEMASK}, v{vEH}
{flags}
buffer_load_dwordx4 v[{vEF}:{vEF+3}], v{vEF}, s[{S_EF}:{S_EF+3}], 0 offen""")
    for s in range(D):
        emit(x_load(16 + s))
    emit(k_mfma())
    a("s_nop 4")
    emit(k_cvt(0) + k_cvt(1))
    a(f"s_waitcnt vmcnt({D})")
    emit(u_mfma())
    a("s_nop 7\ns_branch L_enter")

    G0, G1, E0, K0, R0, R1 = 4, 6, 8, 9, 13, 15
    PLV = o["plv"]
    TPR = {4: {}, 3: {G1: 0}, 2: {G1: 1, 11: 0}, 1: {G1: 2, 9: 1, 12: 0}}[PLV]
    def body(tail):
        tag = "t" if tail else ""
        for s in range(G1 if tail else 0, 16):
            d, j = divmod(s, 2)
            M = tp_ops(s)
            TR, PK = [], []
            if d < 7:
                E, A, R, U = silu_ops(d + 1)
                TR, PK = (R, U) if j else (E, A)
            if tail and s in TPR:
                a(f"s_setprio {TPR[s]}")
            if not (tail and s == G1):
                a(f"s_waitcnt vmcnt({min(D - 1, 15 - s) if tail else D - 1})")
                a(M[0])
                emit(TR[:1])
                a(M[1])
                if s in (K0, K0 + 1) and not tail:
                    KM = k_mfma()[2 * (s - K0):2 * (s - K0) + 2]
                    a(TR[1]); a(KM[0]); a(TR[2]); a(KM[1]); a(TR[3])
                else:
                    emit(TR[1:])
                if not tail:
                    if s == 15:
                        emit(k_cvt(1))
                    if s == K0 + 3:
                        emit(k_cvt(0))
                    if s in (G1, E0, R1):
                        a("s_waitcnt lgkmcnt(0)")
                    if s == G1:
                        a(f"""v_readfirstlane_b32 s{sNXT}, v{vEWN}
s_add_u32 s{sNXT}, s{sNXT}, {NC}
s_cmp_ge_u32 s{sNXT}, s{sNBLK}
s_cbranch_scc1 L_tail""")
                        block_reads(sNXT)
                    if s == E0:
                        a(flags)
                    if s == R0:
                        a(f"""s_and_b32 s{sT0}, s{sNXT}, 15
s_lshl_b32 s{sT1}, s{sT0}, 10
s_lshl_b32 s{sT0}, s{sT0}, 2
s_add_u32 s{sT0}, s{sT0}, {FLG}
v_add_u32 v{vRA}, s{sT1}, v{vRL}
v_mov_b32 v{vFA}, s{sT0}
{ring_read}""")
                    if s == R1:
                        a(f"{ring_test}\nL_ring_ok:\nds_write_b32 v{vFA}, v{vFV}")
            if not (tail and s >= 16 - D):
                emit(x_load(s + D))
            if s == G0:
                a(f"""v_mov_b32 v{vEWN}, {MISC}
v_mov_b32 v{vY}, 1
s_mov_b64 exec, 1
ds_add_rtn_u32 v{vEWN}, v{vEWN}, v{vY}
s_mov_b64 exec, -1""")
            if s == 0:
                emit(fma_ops(0, True))
            else:
                if s >= 14:
                    a("s_nop 1" if tail else "s_nop 0" if s == 14 else "")
                a(f"s_bitcmp1_b32 s{sFM}, {rho(s)}\ns_cbranch_scc1 L_fl{tag}{s}")
                emit(fma_ops(s))
                a(f"L_fr{tag}{s}:")
            emit(PK)
    def stubs(tail):
        tag = "t" if tail else ""
        for s in range(G1 if tail else 1, 16):
            a(f"L_fl{tag}{s}:")
            flush_body(s - 1, True)
            emit(fma_ops(s, True))
            a(f"s_branch L_fr{tag}{s}")
    a("L_block:")
    body(False)
    emit(u_mfma())
    flush_body(15, False)
    if PLV > 1:
        a(f"s_mul_i32 s{sT0}, s{sNXT}, {PLV}")
        for lvl in range(2, 3 - PLV, -1):
            a(f"s_sub_u32 s{sT0}, s{sT0}, s{sNBLK}\ns_cbranch_scc1 L_enter\ns_setprio {lvl}")
    a(f"""L_enter:
v_mov_b32 v{vEWC}, v{vEWN}
v_mov_b32 v{vXC}, v{vXN}
s_mov_b32 s{sFM}, s{sFMN}""")
    E, A, R, U = silu_ops(0)
    emit(E)
    a("s_nop 0")
    emit(A + R)
    a("s_nop 0")
    emit(U)
    a("s_branch L_block\nL_ring_wait:")
    bound(SPIN * 8)
    a(f"s_sleep 1\n{ring_read}\ns_waitcnt lgkmcnt(0)\n{ring_test}\ns_branch L_ring_ok")

    vLA, lCE, lEH = vU, vX, vX + 1
    sNB, sREM = sNXT, sFM
    a(f"""
L_loader:
s_cmp_lg_u32 s{sWAVE}, {NW-1}
s_cbranch_scc1 L_done
s_setprio 3
s_lshr_b32 s{sT0}, s2, 3
s_mul_i32 s{sT0}, s{sT0}, {RB}
s_lshr_b32 s{sT0}, s{sT0}, 5
s_sub_u32 s{sNB}, {NC}, s{sT0}
s_sub_u32 s{sREM}, s{sNBLK}, {NC}
s_mov_b32 s{sFMN+1}, 0
v_and_b32 v{vQ}, 63, v0
v_bfe_u32 v{lCE}, v{vQ}, 3, 1
v_mul_u32_u24 v{lCE}, {NP}, v{lCE}
v_bfe_u32 v{lEH}, v{vQ}, 4, 2
v_lshl_add_u32 v{lCE}, v{lEH}, 2, v{lCE}
v_bfe_u32 v{lEH}, v{vQ}, 1, 2
v_add_lshl_u32 v{lCE}, v{lCE}, v{lEH}, 2
v_and_b32 v{lEH}, 1, v{vQ}
v_lshlrev_b32 v{lEH}, 4, v{lEH}
v_mov_b32 v{vY}, {MISC}
L_ld_batch:
s_lshl_b32 s{sT0}, s{sNB}, 6
v_add_u32 v{vTM}, s{sT0}, v{lCE}
""")
    for i in range(RB):
        a(f"ds_read_b32 v{vLA+i}, v{vTM} offset:{EW + 64*i}")
    a(f"""v_add_u32 v{vFV}, s{sNB}, v{vQ}
v_and_b32 v{vFA}, 15, v{vFV}
v_lshlrev_b32 v{vFA}, 2, v{vFA}
v_add_u32 v{vFA}, {FLG}, v{vFA}
v_subrev_u32 v{vRA}, {NC}, v{vFV}
v_cmp_gt_u32 vcc, s{sREM}, v{vRA}
s_and_b32 s{sFMN}, vcc_lo, {(1 << RB) - 1}
s_waitcnt lgkmcnt(0)""")
    for i in range(RB):
        a(f"v_and_or_b32 v{vLA+i}, v{vLA+i}, s{sEMASK}, v{lEH}")
    a(f"""L_ld_wait:
ds_read_b32 v{vRA}, v{vFA}
ds_read_b32 v{vTM+1}, v{vY}
s_waitcnt lgkmcnt(0)
v_cmp_ne_u32 vcc, 0, v{vRA}
v_readfirstlane_b32 s{sT1}, v{vTM+1}
s_add_u32 s{sT1}, s{sT1}, {NC + o["lead"]}
s_cmp_lt_u32 s{sT1}, s{sNB}
s_cselect_b32 s{sT1}, -1, 0
s_or_b32 s{sT1}, s{sT1}, vcc_lo
s_and_b32 s{sT0}, s{sT1}, s{sFMN}
s_cbranch_scc0 L_ld_go""")
    bound(SPIN * 8)
    a("s_sleep 2\ns_branch L_ld_wait\nL_ld_go:")
    for i in range(RB):
        a(f"""s_bitcmp0_b32 s{sFMN}, {i}
s_cbranch_scc1 L_ld_skip{i}
s_add_u32 s{sT0}, s{sNB}, {i}
s_and_b32 s{sT0}, s{sT0}, 15
s_lshl_b32 s{sT0}, s{sT0}, 10
s_add_u32 m0, s{sT0}, {RING}
s_nop 0
buffer_load_dwordx4 v{vLA+i}, s[{S_EF}:{S_EF+3}], 0 offen lds
L_ld_skip{i}:""")
    a(f"""s_waitcnt vmcnt(0)
s_mov_b64 exec, s[{sFMN}:{sFMN+1}]
ds_write_b32 v{vFA}, v{vFV}
s_mov_b64 exec, -1
s_add_u32 s{sNB}, s{sNB}, {RB}
s_cmp_lt_u32 s{sNB}, s{sNBLK}
s_cbranch_scc1 L_ld_batch
s_branch L_done
;; ---- node changes: add the running sums to the node's LDS accumulator and restart them""")
    stubs(False)
    stubs(True)
    a(";; ---- a wave's last block\nL_tail:")
    body(True)
    flush_body(15, True)
    if o.get("drop"):
        pat = re.compile(o["drop"].replace(" ", "|"))
        a.L[main_start:] = [l for l in a.L[main_start:] if not pat.search(l)]

    vB = base
    vEA = vB + 32
    vPA = vEA + 32
    vD = vPA + 8
    assert vD + 16 <= vPF
    a(f"""
L_done:
s_setprio 0
s_waitcnt vmcnt(0) lgkmcnt(0)
s_cmp_eq_u32 s{sQ}, s{sSPLIT}
s_cbranch_scc1 L_lastq
s_add_u32 s{sQ}, s{sQ}, 1
s_barrier
s_branch L_round
L_lastq:
s_cmp_eq_u32 s{sMORE}, 0
s_cbranch_scc1 L_epi
s_add_u32 s{sK}, s{sK}, 1
s_mov_b32 s{sQ}, 0
s_mov_b32 s{sSPLIT}, 0
s_barrier
s_branch L_round
L_epi:
v_and_b32 v4, 63, v0
v_lshrrev_b32 v2, 5, v4
v_bfe_u32 v3, v4, 2, 2
v_lshl_add_u32 v2, v2, 4, v3
v_bfe_u32 v6, v4, 4, 1
v_lshl_add_u32 v2, v2, 1, v6
v_mul_u32_u24 v2, {MIXROW}, v2
v_and_b32 v3, 3, v4
v_lshl_add_u32 v2, v3, 3, v2
v_add_u32 v2, {CMIX}, v2
""")
    for t in range(4):
        for ks in range(2):
            for q in range(2):
                d = vB + 8 * t + 4 * ks + 2 * q
                a(f"ds_read_b64_tr_b16 v[{d}:{d+1}], v2 offset:{(16*ks + 8*q)*MIXROW + (t&1)*64 + (t>>1)*32}")
    a(f"""
v_and_b32 v5, 15, v4
v_mul_u32_u24 v2, {ACC_ROW}, v5
v_lshl_add_u32 v2, v6, 8, v2
v_lshrrev_b32 v3, 5, v4
v_lshl_add_u32 v2, v3, 7, v2
s_mul_i32 s{sT0}, s{sWAVE}, {4*ACC_NODE}
s_add_u32 s{sT0}, s{sT0}, {ACC}
v_add_u32 v2, s{sT0}, v2
s_lshl_b32 s{sT0}, s{sWAVE}, 2
s_add_u32 s{sT0}, s{sT0}, s{sN0}
v_lshrrev_b32 v3, 4, v4
v_add_u32 v3, s{sT0}, v3
v_cmp_gt_u32 vcc, s{sNN}, v3
v_lshlrev_b32 v3, 9, v3
v_lshl_add_u32 v3, v5, 4, v3
s_mov_b32 s{sT0}, {LN2:#x}
s_mov_b32 s{sT1}, {LN2:#x}
s_barrier
""")
    stamp("main")
    if STAMPS:
        a("s_memtime s[98:99]\ns_waitcnt lgkmcnt(0)")
    a(f"s_cmp_ge_u32 s{sWAVE}, 10\ns_cbranch_scc1 L_end")
    for j in range(8):
        a(f"ds_read_b128 v[{vEA+4*j}:{vEA+4*j+3}], v2 offset:{j*16}")
    for j in range(8):
        a(f"""s_waitcnt lgkmcnt({7-j})
v_cvt_f32_f64 v{vEA+4*j}, v[{vEA+4*j}:{vEA+4*j+1}]
v_cvt_f32_f64 v{vEA+4*j+1}, v[{vEA+4*j+2}:{vEA+4*j+3}]
v_pk_mul_f32 v[{vEA+4*j}:{vEA+4*j+1}], v[{vEA+4*j}:{vEA+4*j+1}], s[{sT0}:{sT1}]
v_cvt_pk_bf16_f32 v{vPA+j}, v{vEA+4*j}, v{vEA+4*j+1}""")
    a("s_nop 1")
    for ks in range(2):
        for t in range(4):
            c = "0" if ks == 0 else f"v[{vD+4*t}:{vD+4*t+3}]"
            a(f"v_mfma_f32_16x16x32_bf16 v[{vD+4*t}:{vD+4*t+3}], v[{vPA+4*ks}:{vPA+4*ks+3}], v[{vB+8*t+4*ks}:{vB+8*t+4*ks+3}], {c}")
    a("s_nop 4")
    for j in range(8):
        a(f"v_cvt_pk_bf16_f32 v{vEA+j}, v{vD+2*j}, v{vD+2*j+1}")
    a(f"""
s_and_b64 exec, exec, vcc
s_cbranch_execz L_end
buffer_store_dwordx4 v[{vEA}:{vEA+3}], v3, s[{S_OUT}:{S_OUT+3}], 0 offen sc1
buffer_store_dwordx4 v[{vEA+4}:{vEA+7}], v3, s[{S_OUT}:{S_OUT+3}], 0 offen offset:256 sc1
""")
    if STAMPS:
        a("s_waitcnt vmcnt(0)")
        stamp("end", True)
        srd(56, 10, 0x20000, WS_STAMP)
        a(f"s_mov_b64 exec, -1\nv_cmp_eq_u32 vcc, {64 * o.get('stw', 0)}, v0\ns_and_b64 exec, exec, vcc\ns_cbranch_execz L_end")
        a("s_lshl_b32 s3, s2, 7\nv_mov_b32 v4, s3")
        for i in range(12):
            a(f"v_mov_b32 v2, s{76+2*i}\nv_mov_b32 v3, s{77+2*i}\nbuffer_store_dwordx2 v[2:3], v4, s[56:59], 0 offen offset:{8*i}")
    a("L_end:\ns_endpgm")

    out = open("cdna_kernels/" + NAME + ".s.ref").read().split("; Override launch")[0]
    out += f"; @launch grid=({NB},1,1) block=({T},1,1) lds={LDS}\n"
    out += '.amdgcn_target "amdgcn-amd-amdhsa--gfx950"\n.text\n'
    out += f".globl {K}\n.p2align 8\n.type {K},@function\n{a.text()}"
    out += f""".section .rodata,"a"
.p2align 6
.amdhsa_kernel {K}
  .amdhsa_next_free_vgpr {n_vgpr}
  .amdhsa_next_free_sgpr {n_sgpr}
  .amdhsa_accum_offset {(n_vgpr + 3) // 4 * 4}
  .amdhsa_group_segment_fixed_size 0
  .amdhsa_kernarg_size 88
  .amdhsa_user_sgpr_count 2
  .amdhsa_user_sgpr_kernarg_segment_ptr 1
  .amdhsa_system_sgpr_workgroup_id_x 1
  .amdhsa_float_denorm_mode_32 3
.end_amdhsa_kernel
"""
    return out, dict(vgpr=n_vgpr, sgpr=n_sgpr, lds=LDS)

if __name__ == "__main__":
    o = {}
    path = "cdna_kernels/" + NAME + ".s"
    for arg in sys.argv[1:]:
        k, v = arg.split("=", 1)
        if k == "out":
            path = v
        else:
            o[k] = int(v) if v.lstrip("-").isdigit() else v.replace("+", " ")
    txt, info = gen(o)
    open(path, "w").write(txt)
    print(path, info)
```

```python
import sys, re

NAME = "standalone__tensor_product_equiv_tfn__graph"
N_NODES, N_EDGES = 10000, 640000
NB = 256
CH = 2500
REC = 12
CS = 30080
WS_TAB, WS_STAMP, WS_ENT = 0x800000, 0xA00000, 0x1000000
ACC_ROW = 528
ACC_NODE = 4 * ACC_ROW
MIXROW = 144
PAD_X = 0x7FFF0000
PAD_E = 0x01FFFFE0
NW, T, NG, PW = 16, 1024, 4, 10
HT = (NW - PW) * 64
SPIN = 1 << 18
LOG2E, LN2 = 0x3FB8AA3B, 0x3F317218
DEFAULTS = dict(nph=4, cap=3072, nc=12, ring=5, lead=-2, eft=18, pfj=25, accearly=5, plv=2, prew=1, cpf=1, xm=3)

def magic(mul, div, lim):
    for S in range(8, 32):
        M = -(-(mul << S) // div)
        if M < 1 << 24 and (lim - 1) * M < 1 << 32 and all((x * M) >> S == x * mul // div for x in range(lim)):
            return M, S
    raise ValueError

class Asm:
    def __init__(self):
        self.L = []
    def __call__(self, s):
        for line in s.split("\n"):
            line = line.strip()
            if line:
                self.L.append(line if line.endswith(":") or line.startswith(";;") else "    " + line)
    def text(self):
        return "\n".join(self.L) + "\n"

def gen(opts):
    o = dict(DEFAULTS); o.update(opts)
    a = Asm()
    NPH, CAP, NC, RB = o["nph"], o["cap"], o["nc"], o["ring"]
    STAMPS = o.get("stamps")
    D = 4
    NEG = o.get('neg', 0)
    SGN = 0x80000000 if NEG else 0
    NP = CAP // 2 + 16
    assert NP % 32 == 16
    XO, EW, YY, ACC = 0, NP * 8, NP * 16, NP * 32
    H1 = ACC + 40 * ACC_NODE
    EPOCH = H1 + 1024 + 16
    H2 = H1 + 1024 + 64
    MISC = H2 + 1024
    FLG = MISC + 64
    CMIX = FLG + 64
    CW = CMIX + 64 * MIXROW
    CCG = CW + 2048
    RING = CW
    LDS = RING + 16384
    MB, SB = magic(NB, N_NODES, N_NODES)
    PB = o.get('pb', N_NODES // NPH)
    MP, SP = magic(1, PB, N_NODES)
    ACC_EARLY = min(o["accearly"] * HT * 16, 40 * ACC_NODE)

    S_X, S_EF, S_ENT, S_TAB, S_A, S_OUT = 12, 16, 20, 24, 28, 32
    sTAGL, sTAGH, sCNT, sPM = 4, 5, 6, 8
    sB, sN0, sNN, sWAVE, sK, sQ, sSPLIT, sNBLK = 36, 37, 38, 39, 40, 41, 42, 43
    sFMN, sNXT, sFM, sT0, sT1, sEMASK, sMORE = 44, 46, 47, 48, 49, 50, 51
    sMASK = 52
    sPEND, sISS, sNEW, sLIM, sMP, sFIRST, sSEL = 68, 69, 70, 71, 72, 73, 74
    sNI, sQUO, sEND = sPEND, sISS, sNEW
    NS = NW - 1 - NC
    n_sgpr = 100 if STAMPS else 76

    vXL, vW, vCG = 1, 2, 10
    vAL, vCX, vCE, vCY, vEH, vRL = 18, 19, 20, 21, 22, 23
    base = r = 24
    vU = r; r += 32
    vX = r; r += 4 * D
    vXC, vXN, vXA = r, r + 1, r + 2; r += 4
    vTP = r; r += 8
    vACC = r; r += 8
    vK = r; r += 4
    vEF = r; r += 4
    vT = r; r += 4
    vY = r; r += 2
    vTM = r; r += 2
    vEWC, vEWN, vQ, vFA, vFV, vRA, vMI, vC1, vC0 = range(r, r + 9); r += 9
    n_main = r
    r = base
    vTB = r; r += 8
    vEN = r; r += 8 * NG
    vRK = r; r += 2 * NG
    vKY = r; r += 2 * NG
    vF = r; r += 16
    vONE, vJ, vJ16, vH2, vWC = r, r + 1, r + 2, r + 3, r + 4; r += 4 + NG
    vPF = max(n_main, r, base + 88)
    n_vgpr = vPF + 1

    def emit(lst):
        for ins in lst:
            a(ins)
    marks = o.get("marks", "start B4 join poll0 rank F2 F3 sort main end").split()
    def stamp(name, wait=False):
        if STAMPS:
            for i, m in enumerate(marks):
                if m == name:
                    a(f"s_memrealtime s[{76+2*i}:{77+2*i}]")
            if wait:
                a("s_waitcnt lgkmcnt(0)")
    def srd(d, ptr, nbytes, off=0):
        if off:
            a(f"s_add_u32 s{d}, s{ptr}, {off:#x}\ns_addc_u32 s{d+1}, s{ptr+1}, 0")
        else:
            a(f"s_mov_b32 s{d}, s{ptr}\ns_mov_b32 s{d+1}, s{ptr+1}")
        a(f"s_mov_b32 s{d+2}, {nbytes}\ns_mov_b32 s{d+3}, 0x20000")
    def scan4(c, t):
        a(f"""v_add_u32 v{t+1}, v{c}, v{c+1}
v_add_u32 v{t+2}, v{t+1}, v{c+2}
v_add_u32 v{t+3}, v{t+2}, v{c+3}
v_mov_b32 v{t+4}, v{t+3}""")
        for k, ctl in enumerate(("row_shr:1", "row_shr:2", "row_shr:4", "row_shr:8",
                                 "row_bcast:15 row_mask:0xa", "row_bcast:31 row_mask:0xc")):
            a(f"s_nop {0 if k == 0 else 1}\nv_add_u32_dpp v{t+3}, v{t+3}, v{t+3} {ctl}")
        a(f"""v_sub_u32 v{t}, v{t+3}, v{t+4}
v_add_u32 v{t+3}, v{t}, v{t+2}
v_add_u32 v{t+2}, v{t}, v{t+1}
v_add_u32 v{t+1}, v{t}, v{c}""")
    def lds_fill(start, nbytes, val, vtid, nthr, v):
        a(f"v_lshlrev_b32 v{v+4}, 4, v{vtid}")
        if val is not None:
            for j in range(4):
                a(f"v_mov_b32 v{v+j}, {val:#x}")
        n = nbytes // 16
        assert nbytes % 16 == 0
        k = 0
        while k * nthr < n:
            rem = n - k * nthr
            if start + k * nthr * 16 >= 65536:
                a(f"v_add_u32 v{v+4}, {start + k*nthr*16}, v{v+4}")
                start = -k * nthr * 16
            if rem < nthr:
                a(f"v_cmp_gt_u32 vcc, {rem}, v{vtid}\ns_and_saveexec_b64 s[{sT0}:{sT1}], vcc")
            a(f"ds_write_b128 v{v+4}, v[{v}:{v+3}] offset:{start + k*nthr*16}")
            if rem < nthr:
                a(f"s_mov_b64 exec, s[{sT0}:{sT1}]")
            k += 1
    def common_srds():
        srd(S_X, 56, 0 if o.get("nox") else N_NODES * 512)
        srd(S_EF, 64, 0 if o.get("noef") else N_EDGES * 32)
        srd(S_OUT, 72, N_NODES * 512)
        srd(S_ENT, 10, NB * CS, WS_ENT)
        srd(S_TAB, 10, NB * NB * 8, WS_TAB)
    def bound(limit):
        a(f"s_add_u32 s{sCNT}, s{sCNT}, 1\ns_cmp_ge_u32 s{sCNT}, {limit}\ns_cbranch_scc1 L_end")

    K = NAME + "_kernel"
    a(f"""
{K}:
s_cmp_ge_u32 s2, {NB}
s_cbranch_scc1 L_end
""")
    stamp("start")
    a(f"""
s_load_dwordx16 s[56:71], s[0:1], 0
s_load_dwordx4 s[72:75], s[0:1], 64
s_load_dwordx2 s[10:11], s[0:1], 80
v_lshrrev_b32 v2, 6, v0
v_lshlrev_b32 v46, 4, v0
v_readfirstlane_b32 s{sWAVE}, v2
v_mov_b32 v22, {H1}
v_mov_b32 v4, 0
v_and_b32 v3, 0xff, v0
v_lshl_add_u32 v3, v3, 2, v22
ds_write_b32 v3, v4
s_cmp_lt_u32 s{sWAVE}, {PW}
s_cbranch_scc1 L_a_first
s_getpc_b64 s[8:9]
L_pc:
s_lshl_b32 s3, s{sWAVE}, 5
s_lshr_b32 s7, s2, 3
s_add_u32 s3, s3, s7
s_sub_u32 s3, s3, {PW*32}
s_lshl_b32 s3, s3, 7
s_min_u32 s3, s3, L_end-L_pc
s_add_u32 s8, s8, s3
s_addc_u32 s9, s9, 0
v_mov_b32 v10, s8
v_mov_b32 v11, s9
global_load_dword v{vPF}, v[10:11], off
s_memrealtime s[8:9]
s_xor_b32 s3, s{sWAVE}, {PW}
s_or_b32 s3, s3, s2
s_waitcnt lgkmcnt(0)
""")
    srd(S_A, 74, 256)
    a(f"""
s_cbranch_scc1 L_nopub
s_and_b32 s9, s9, 0xff
s_or_b32 s9, s9, 0x100
v_mov_b32 v12, s8
v_mov_b32 v13, s9
s_mov_b64 exec, 1
buffer_store_dwordx2 v[12:13], v4, s[{S_A}:{S_A+3}], 0 offen sc1
s_mov_b64 exec, -1
L_nopub:
s_barrier
s_branch L_helper
;; ---- phase A, waves 0..9: order the chunk's edges by destination bucket, publish records and offsets
L_a_first:
v_cmp_gt_u32 vcc, {CH//4}, v0
s_mov_b64 exec, vcc
v_lshlrev_b32 v2, 5, v0
v_lshlrev_b32 v3, 2, v0
s_mul_i32 s3, s2, {CH*4}
s_mul_i32 s7, s2, {CH*8}
s_waitcnt lgkmcnt(0)
""")
    srd(S_A, 60, N_EDGES * 4)
    a(f"buffer_load_dwordx4 v[4:7], v46, s[{S_A}:{S_A+3}], s3 offen")
    srd(40, 58, N_EDGES * 4)
    srd(44, 62, N_EDGES * 8)
    a("s_barrier")
    stamp("B1")
    a(f"""
buffer_load_dwordx4 v[8:11], v46, s[40:43], s3 offen
buffer_load_dwordx4 v[12:15], v2, s[44:47], s7 offen
buffer_load_dwordx4 v[16:19], v2, s[44:47], s7 offen offset:16
""")
    common_srds()
    a(f"""
s_mov_b32 s8, {MB}
s_movk_i32 s9, 625
v_mov_b32 v21, 1
s_waitcnt vmcnt(3)
""")
    for k in range(4):
        a(f"""v_mul_u32_u24 v{24+k}, s8, v{4+k}
v_lshrrev_b32 v{24+k}, {SB}, v{24+k}
v_lshl_add_u32 v{28+k}, v{24+k}, 2, v22
ds_add_rtn_u32 v{32+k}, v{28+k}, v21""")
    for k in range(4):
        a(f"""v_mad_u32_u24 v{24+k}, v{24+k}, s9, 15
v_lshrrev_b32 v{24+k}, 4, v{24+k}
v_sub_u32 v{24+k}, v{4+k}, v{24+k}
v_add_u32 v{36+k}, {k}, v3
v_lshlrev_b32 v{36+k}, 20, v{36+k}
v_lshl_or_b32 v{36+k}, v{24+k}, 14, v{36+k}""")
    a(f"""
s_waitcnt lgkmcnt(0)
s_barrier
s_cmp_lg_u32 s{sWAVE}, 0
s_cbranch_scc1 L_a_noscan
v_add_u32 v47, v46, v22
ds_read_b128 v[40:43], v47
s_waitcnt lgkmcnt(0)
""")
    scan4(40, 48)
    a(f"""
ds_write_b128 v47, v[48:51]
s_waitcnt lgkmcnt(0)
L_a_noscan:
s_barrier
""")
    for k in range(4):
        a(f"ds_read_b32 v{24+k}, v{28+k}")
    a(f"""
v_and_b32 v47, 0x7f, v0
v_lshl_add_u32 v47, v47, 3, v22
ds_read_b64 v[40:41], v47
ds_read_b32 v42, v47 offset:8
s_waitcnt vmcnt(2)
""")
    for k in range(4):
        a(f"""v_or_b32 v{36+k}, v{36+k}, v{8+k}
s_waitcnt lgkmcnt({5-k})
v_add_u32 v{24+k}, v{24+k}, v{32+k}
v_mul_u32_u24 v{24+k}, {REC}, v{24+k}""")
    for k in range(4):
        a(f"ds_write_b32 v{24+k}, v{36+k} offset:8")
    a(f"""
s_waitcnt lgkmcnt(4)
v_sub_u32 v42, v42, v41
v_sub_u32 v43, v41, v40
v_lshl_or_b32 v42, v42, 12, v41
v_lshl_or_b32 v40, v43, 12, v40
s_mul_i32 s3, s2, {CS}
s_waitcnt vmcnt(0)
""")
    for k in range(4):
        a(f"ds_write2_b32 v{24+k}, v{12+2*k}, v{13+2*k} offset0:0 offset1:1")
    a(f"""
s_mov_b64 exec, -1
v_cmp_gt_u32 vcc, {CS//16 - 2*PW*64}, v0
s_waitcnt lgkmcnt(0)
s_barrier
""")
    stamp("B4", True)
    for k in range(3):
        a(f"ds_read_b128 v[{48+4*k}:{51+4*k}], v46 offset:{k*PW*1024}")
    for k in range(3):
        a(f"s_waitcnt lgkmcnt({2-k})")
        if k == 2:
            a("s_mov_b64 exec, vcc")
        a(f"buffer_store_dwordx4 v[{48+4*k}:{51+4*k}], v46, s[{S_ENT}:{S_ENT+3}], s3 offen sc1")
        if k < 2:
            a(f"s_add_u32 s3, s3, {PW*1024}")
    a(f"""
s_mov_b64 exec, -1
s_branch L_join
L_helper:
v_subrev_u32 v2, {PW*64}, v0
v_and_b32 v3, 63, v0
""")
    a(f"""v_mov_b32 v5, 0
v_mov_b32 v6, 0
v_mov_b32 v7, 0
v_mov_b32 v9, {CH}
ds_write_b32 v22, v9 offset:1024""")
    a(f"""
""")
    common_srds()
    if o["prew"]:
        a(f"""s_cmp_ge_u32 s{sWAVE}, {PW+2}
s_cbranch_scc1 L_h_noprew
v_lshlrev_b32 v9, 4, v2
s_lshl_b32 s7, s2, 11
buffer_store_dwordx4 v[4:7], v9, s[{S_TAB}:{S_TAB+3}], s7 offen sc1
L_h_noprew:""")
    if ACC_EARLY:
        lds_fill(ACC, ACC_EARLY, None, 2, HT, 4)
    a(f"""
s_barrier
s_waitcnt lgkmcnt(0)
s_barrier
s_cmp_lg_u32 s{sWAVE}, {NW-1}
s_cbranch_scc1 L_h_nopoll
buffer_load_dwordx2 v[14:15], v4, s[{S_A}:{S_A+3}], 0 offen sc1
L_h_nopoll:
s_cmp_eq_u32 s{sWAVE}, {PW}
s_cbranch_scc1 L_h_w
s_cmp_eq_u32 s{sWAVE}, {PW+1}
s_cbranch_scc1 L_h_cg
""")
    srd(40, 70, 64 * 64 * 2)
    a(f"""
v_subrev_u32 v10, {(PW+2)*64*16}, v46
buffer_load_dwordx4 v[16:19], v10, s[40:43], 0 offen
v_add_u32 v11, 4096, v10
buffer_load_dwordx4 v[20:23], v11, s[40:43], 0 offen
""")
    NA = 0
    if o.get("pfa"):
        lo, hi = o.get("pfa0", 0), o["pfa"]
        l0 = N_NODES * 4 * lo // 32
        pa = -(-(N_NODES * 4 * hi // 32 - l0) // (NB * 4))
        NA = 1
        a(f"""s_lshl_b32 s3, s2, 2
s_add_u32 s3, s3, s{sWAVE}
s_mul_i32 s3, s3, {pa}
s_add_u32 s3, s3, {l0 - (PW+2)*pa}
v_min_u32 v11, {pa-1}, v3
v_add_lshl_u32 v11, v11, s3, 7
buffer_load_dword v{vPF}, v11, s[{S_X}:{S_X+3}], 0 offen""")
    a(f"""
s_barrier
s_cmp_lg_u32 s{sWAVE}, {NW-1}
s_cbranch_scc1 L_h_mix
s_mov_b32 s{sCNT}, 0
s_waitcnt vmcnt({2 + NA})
L_h_poll:
v_readfirstlane_b32 s{sT0}, v15
s_cmp_lg_u32 s{sT0}, 0
s_cbranch_scc1 L_h_polled
""")
    bound(SPIN)
    a(f"""
buffer_load_dwordx2 v[14:15], v4, s[{S_A}:{S_A+3}], 0 offen sc1
s_waitcnt vmcnt(0)
s_branch L_h_poll
L_h_polled:
v_mov_b32 v12, {EPOCH}
v_and_b32 v15, 0xff, v15
ds_write_b64 v12, v[14:15]
L_h_mix:
v_lshrrev_b32 v4, 7, v10
v_mul_u32_u24 v5, {MIXROW}, v4
v_and_b32 v6, 7, v3
v_lshl_add_u32 v5, v6, 3, v5
v_add_u32 v5, {CMIX}, v5
s_mov_b32 s8, 0x05040100
s_mov_b32 s9, 0x07060302
s_waitcnt vmcnt({NA})
""")
    for half in range(2):
        q, t = 16 + 4 * half, 24 + 4 * half
        a(f"""v_perm_b32 v{t}, v{q+1}, v{q}, s8
v_perm_b32 v{t+1}, v{q+3}, v{q+2}, s8
v_perm_b32 v{t+2}, v{q+1}, v{q}, s9
v_perm_b32 v{t+3}, v{q+3}, v{q+2}, s9
ds_write_b64 v5, v[{t}:{t+1}] offset:{half*32*MIXROW}
ds_write_b64 v5, v[{t+2}:{t+3}] offset:{half*32*MIXROW + 64}""")
    a("s_branch L_join\nL_h_cg:")
    srd(40, 68, 64 * 2)
    a("v_and_b32 v10, 3, v3\nv_lshlrev_b32 v10, 1, v10")
    for j in range(16):
        a(f"buffer_load_ushort v{16+j}, v10, s[40:43], 0 offen offset:{j*8}")
    a(f"v_lshlrev_b32 v9, 4, v3\nv_add_u32 v9, {CCG}, v9\ns_barrier\ns_waitcnt vmcnt(0)")
    for j in range(8):
        a(f"v_lshl_or_b32 v{32+j}, v{17+2*j}, 16, v{16+2*j}")
    a("ds_write_b128 v9, v[32:35]\nds_write_b128 v9, v[36:39] offset:1024\ns_branch L_join\nL_h_w:")
    srd(40, 66, 16 * 64 * 2)
    a("""v_lshrrev_b32 v10, 5, v3
v_lshlrev_b32 v10, 10, v10
v_and_b32 v11, 31, v3
v_lshl_add_u32 v10, v11, 2, v10""")
    for i in range(8):
        a(f"buffer_load_dword v{16+i}, v10, s[40:43], 0 offen offset:{i*128}")
    a(f"""v_lshlrev_b32 v9, 4, v3
v_add_u32 v9, {CW}, v9
s_mov_b32 s8, {LOG2E | SGN:#x}
s_barrier
s_waitcnt vmcnt(0)""")
    for i in range(8):
        a(f"""v_lshlrev_b32 v{24+i}, 16, v{16+i}
v_and_b32 v{32+i}, 0xffff0000, v{16+i}
v_mul_f32 v{24+i}, s8, v{24+i}
v_mul_f32 v{32+i}, s8, v{32+i}""")
    for j in range(8):
        a(f"v_cvt_pk_bf16_f32 v{16+j}, v{24+2*j}, v{25+2*j}")
    a("ds_write_b128 v9, v[16:19]\nds_write_b128 v9, v[20:23] offset:1024")

    lane, tmp = vF, vF + 3
    a(f"""
L_join:
s_waitcnt lgkmcnt(0)
s_barrier
v_and_b32 v{lane}, 63, v0
v_lshlrev_b32 v{vF+1}, 4, v{lane}
v_add_u32 v{vF+1}, {CW}, v{vF+1}
v_mov_b32 v{vF+2}, {EPOCH}
ds_read_b64 v[44:45], v{vF+2}
""")
    for q in range(4):
        a(f"ds_read_b128 v[{vW+4*q}:{vW+4*q+3}], v{vF+1} offset:{q*1024}")
    a(f"""
s_and_b32 s{sB}, s2, 7
s_lshl_b32 s{sB}, s{sB}, 5
s_lshr_b32 s3, s2, 3
s_add_u32 s{sB}, s{sB}, s3
s_mul_i32 s{sN0}, s{sB}, 625
s_add_u32 s{sNN}, s{sN0}, {625+15}
s_add_u32 s{sN0}, s{sN0}, 15
s_lshr_b32 s{sN0}, s{sN0}, 4
s_lshr_b32 s{sNN}, s{sNN}, 4
s_mov_b32 s{sK}, 0
s_mov_b32 s{sQ}, 0
s_mov_b32 s{sSPLIT}, 0
s_mov_b32 s{sFIRST}, 1
s_mov_b32 s{sMP}, {MP}
s_mov_b32 s{sEMASK}, {o.get('emask', 0x01ffffff):#x}
v_and_b32 v{tmp}, 31, v{lane}
v_lshlrev_b32 v{vXL}, 4, v{tmp}
v_lshlrev_b32 v{vAL}, 3, v{lane}
v_add_u32 v{vAL}, {ACC}, v{vAL}
v_lshrrev_b32 v{vEH}, 5, v{lane}
v_mul_u32_u24 v{vCX}, {NP*4}, v{vEH}
v_and_b32 v{tmp}, 15, v{lane}
v_lshl_add_u32 v{vCX}, v{tmp}, 2, v{vCX}
v_mul_u32_u24 v{vCY}, {NP}, v{vEH}
v_lshlrev_b32 v{vEH}, 4, v{vEH}
v_lshl_add_u32 v{vRL}, v{vXL}, 1, v{vEH}
v_add_u32 v{vRL}, {RING}, v{vRL}
v_bfe_u32 v{vCE}, v{lane}, 2, 1
v_mul_u32_u24 v{vCE}, {NP}, v{vCE}
v_bfe_u32 v{tmp}, v{lane}, 3, 2
v_lshl_add_u32 v{vCE}, v{tmp}, 2, v{vCE}
v_and_b32 v{tmp}, 3, v{lane}
v_add_lshl_u32 v{vCE}, v{vCE}, v{tmp}, 2
v_and_b32 v{tmp}, 1, v{lane}
v_lshl_add_u32 v{vCY}, v{tmp}, 3, v{vCY}
v_bfe_u32 v{tmp}, v{lane}, 2, 3
v_add_lshl_u32 v{vCY}, v{vCY}, v{tmp}, 3
s_waitcnt lgkmcnt(0)
v_readfirstlane_b32 s{sTAGH}, v44
v_readfirstlane_b32 s{sTAGL}, v45
v_lshl_or_b32 v42, v45, 24, v42
v_lshl_or_b32 v40, v45, 24, v40
v_mov_b32 v41, v44
v_mov_b32 v43, v44
L_round:
""")
    lds_fill(H2, 1024 + 128, 0, 0, T, vF)
    lds_fill(YY, NP * 16, None, 0, T, vF)
    lds_fill(XO, NP * 8, PAD_X, 0, T, vF)
    lds_fill(EW, NP * 8, PAD_E, 0, T, vF)
    a(f"""
v_lshrrev_b32 v{vF+6}, 4, v0
v_and_b32 v{vF+7}, 3, v0
v_lshl_add_u32 v{vF+8}, v{vF+7}, 6, v{vF+6}
s_lshl_b32 s3, s{sB}, 3
v_lshl_add_u32 v{vTB+2}, v{vF+8}, 11, s3
v_and_b32 v{vF+7}, s{sSPLIT}, v{vF+7}
v_cmp_eq_u32 s[{sSEL}:{sSEL+1}], s{sQ}, v{vF+7}
s_mov_b32 s{sPM}, 0x000f000f
s_mov_b32 s{sPM+1}, 0x000f000f
v_mov_b32 v{vONE}, 1
v_mov_b32 v{vH2}, {H2}
v_and_b32 v{vJ}, 15, v0
s_lshl_b32 s{sLIM}, s{sK}, 5
v_add_u32 v{vJ}, s{sLIM}, v{vJ}
s_add_u32 s{sLIM}, s{sLIM}, 32
v_add_u32 v{vJ16}, 16, v{vJ}
v_mul_u32_u24 v{vWC}, {CH}, v{vF+6}
v_mul_u32_u24 v{vTB+4}, {CS}, v{vF+6}
v_mad_u32_u24 v{vTB+4}, v{vJ}, {REC}, v{vTB+4}
""")
    for g in range(1, NG):
        a(f"v_add_u32 v{vWC+g}, {g*64*CH}, v{vWC}\nv_add_u32 v{vTB+4+g}, {g*64*CS}, v{vTB+4}")
    per = -(-(N_NODES * 4 * o["pfj"] // 32) // NB)
    a(f"""
s_mov_b32 s{sCNT}, 0
s_mov_b32 s{sPEND}, 15
s_mov_b32 s{sISS}, 0
s_lshl_b32 s7, s2, 11
s_mul_i32 s3, s2, {per}
v_subrev_u32 v{vF+8}, 128, v0
v_min_u32 v{vF+8}, {max(per-1, 0)}, v{vF+8}
v_add_lshl_u32 v{vF+8}, v{vF+8}, s3, 7
s_waitcnt vmcnt(0) lgkmcnt(0)
s_barrier
""")
    stamp("join")
    a(f"""
s_cmp_eq_u32 s{sFIRST}, 0
s_cbranch_scc1 L_nofirst
s_mov_b32 s{sFIRST}, 0
s_cmp_ge_u32 s{sWAVE}, 2
s_cbranch_scc1 L_notab
buffer_store_dwordx4 v[40:43], v46, s[{S_TAB}:{S_TAB+3}], s7 offen sc1
s_branch L_nopf
L_notab:
s_cmp_ge_u32 s{sWAVE}, {2 + -(-per // 64)}
s_cbranch_scc1 L_nopf
buffer_load_dword v{vPF}, v{vF+8}, s[{S_X}:{S_X+3}], 0 offen
L_nopf:
""")
    if ACC_EARLY < 40 * ACC_NODE:
        lds_fill(ACC + ACC_EARLY, 40 * ACC_NODE - ACC_EARLY, 0, 0, T, vF)
        a("s_waitcnt lgkmcnt(0)\ns_barrier")
    poll = f"""
s_mov_b64 exec, s[{sPM}:{sPM+1}]
buffer_load_dwordx2 v[{vTB}:{vTB+1}], v{vTB+2}, s[{S_TAB}:{S_TAB+3}], 0 offen sc1
s_mov_b64 exec, -1
"""
    a("L_nofirst:")
    a(poll)
    stamp("poll0")
    a(f"""
L_poll:
s_mov_b32 s{sNEW}, 0
s_cmp_eq_u32 s{sPEND}, 0
s_waitcnt vmcnt(0)
s_cbranch_scc1 L_ranks
""")
    stamp("last")
    a(f"""
v_lshrrev_b32 v{vF}, 24, v{vTB}
v_cmp_ne_u32 s[{sT0}:{sT1}], s{sTAGH}, v{vTB+1}
v_cmp_ne_u32 vcc, s{sTAGL}, v{vF}
v_bfe_u32 v{vF+3}, v{vTB}, 12, 12
v_and_b32 v{vF+4}, 0xfff, v{vTB}
v_cndmask_b32 v{vF+3}, 0, v{vF+3}, s[{sSEL}:{sSEL+1}]
v_mul_u32_u24 v{vF+4}, {REC}, v{vF+4}
s_or_b64 vcc, vcc, s[{sT0}:{sT1}]
s_and_b64 s[{sPM}:{sPM+1}], s[{sPM}:{sPM+1}], vcc
s_or_b32 s{sT0}, s{sPM}, s{sPM+1}
s_lshr_b32 s{sT1}, s{sT0}, 16
s_or_b32 s{sT0}, s{sT0}, s{sT1}
s_andn2_b32 s{sNEW}, s{sPEND}, s{sT0}
s_and_b32 s{sPEND}, s{sPEND}, s{sT0}
""")
    for g in range(NG):
        m0, m1 = sMASK + 4 * g, sMASK + 4 * g + 2
        a(f"""s_bitcmp0_b32 s{sNEW}, {g}
s_cbranch_scc1 L_is{g}
v_mov_b32_dpp v{vF}, v{vF+3} row_newbcast:{g} row_mask:0xf bank_mask:0xf
v_add_u32_dpp v{vTB+4+g}, v{vF+4}, v{vTB+4+g} row_newbcast:{g} row_mask:0xf bank_mask:0xf
v_cmp_lt_u32 s[{m0}:{m0+1}], v{vJ}, v{vF}
v_cmp_lt_u32 s[{m1}:{m1+1}], v{vJ16}, v{vF}
s_mov_b64 exec, s[{m0}:{m0+1}]
s_cbranch_execz L_it{g}
buffer_load_dwordx3 v[{vEN+8*g}:{vEN+8*g+2}], v{vTB+4+g}, s[{S_ENT}:{S_ENT+3}], 0 offen sc1
s_mov_b64 exec, s[{m1}:{m1+1}]
s_cbranch_execz L_it{g}
buffer_load_dwordx3 v[{vEN+8*g+4}:{vEN+8*g+6}], v{vTB+4+g}, s[{S_ENT}:{S_ENT+3}], 0 offen offset:{16*REC} sc1
L_it{g}:
s_mov_b64 exec, -1
L_is{g}:""")
    stamp("ready")
    a(f"s_cmp_eq_u32 s{sPEND}, 0\ns_cbranch_scc1 L_ranks")
    bound(SPIN)
    a(poll)
    a("L_ranks:")
    def for_parts(body, tag, groups=range(NG)):
        for g in groups:
            for p in range(2):
                i = 2 * g + p
                a(f"s_mov_b64 exec, s[{sMASK+2*i}:{sMASK+2*i+1}]")
                if p:
                    a(f"s_cbranch_execz L_{tag}{g}")
                body(g, i, vEN + 4 * i)
                if p:
                    a(f"L_{tag}{g}:")
        a("s_mov_b64 exec, -1")
    def rank_body(g, i, e):
        a(f"""v_bfe_u32 v{vF+1}, v{e+2}, 14, 6
v_and_b32 v{vF}, 0x3fff, v{e+2}
v_mul_u32_u24 v{vF+2}, s{sMP}, v{vF}
v_lshrrev_b32 v{vF+2}, {SP}, v{vF+2}
{f"v_min_u32 v{vF+2}, {NPH-1}, v{vF+2}" if PB * NPH < N_NODES else ""}
v_mad_u32_u24 v{vF+2}, v{vF+2}, 40, v{vF+1}
v_lshl_add_u32 v{vKY+i}, v{vF+2}, 2, v{vH2}
ds_add_rtn_u32 v{vRK+i}, v{vKY+i}, v{vONE}
v_lshrrev_b32 v{e+3}, 20, v{e+2}
v_add_lshl_u32 v{vF+5}, v{e+3}, v{vWC+g}, 5
v_lshl_or_b32 v{e+3}, v{vF+1}, 25, v{vF+5}""")
        if o.get("xmask"):
            a(f"v_and_b32 v{vF}, {o['xmask']:#x}, v{vF}")
        if o.get("eftr"):
            a(f"v_cmp_gt_u32 vcc, {o['eftr']}, v{vF+2}")
        a(f"v_lshlrev_b32 v{e+2}, 9, v{vF}")
        if o.get("eftr"):
            a(f"""s_and_b64 exec, exec, vcc
s_cbranch_execz L_eftr{i}
buffer_load_dword v{vPF}, v{vF+5}, s[{S_EF}:{S_EF+3}], 0 offen
L_eftr{i}:""")
    for g in range(NG):
        a(f"s_bitcmp0_b32 s{sISS}, {g}\ns_cbranch_scc1 L_rs{g}")
        for_parts(rank_body, "rk", [g])
        a(f"L_rs{g}:")
    a(f"""
s_mov_b32 s{sISS}, s{sNEW}
s_or_b32 s{sT0}, s{sPEND}, s{sISS}
s_cbranch_scc1 L_poll
v_bfe_u32 v{vF+3}, v{vTB}, 12, 12
v_cmp_lt_u32 vcc, s{sLIM}, v{vF+3}
s_or_b32 s{sT0}, vcc_lo, vcc_hi
s_and_b32 s{sT0}, s{sT0}, 0x000f000f
s_cbranch_scc0 L_nomore
v_mov_b32 v{vF}, {MISC+8}
ds_write_b32 v{vF}, v{vONE}
L_nomore:
s_movk_i32 s{sT0}, {NP*4 - 2}
s_brev_b32 s{sT1}, 1
s_waitcnt lgkmcnt(0)
""")
    stamp("rank")
    a("s_barrier")
    stamp("F2")
    a(f"""
s_cmp_lg_u32 s{sWAVE}, 0
s_cbranch_scc1 L_noscan
{"s_setprio 3" if o.get("fs") else ""}
v_lshl_add_u32 v{vF+9}, v0, 4, v{vH2}
ds_read_b128 v[{vF}:{vF+3}], v{vF+9}
s_waitcnt lgkmcnt(0)
""")
    for j in range(4):
        a(f"v_add_lshl_u32 v{vF+j}, v{vF+j}, 1, 1\nv_and_b32 v{vF+j}, -4, v{vF+j}")
    scan4(vF, vF + 4)
    a(f"ds_write_b128 v{vF+9}, v[{vF+4}:{vF+7}]")
    if o.get("fs") == 2:
        a("s_waitcnt lgkmcnt(0)\ns_barrier")
    a("L_noscan:")
    def pre_body(g, i, e):
        a(f"""v_add_u32 v{vF+10}, -1, v{vRK+i}
v_and_or_b32 v{e+3}, v{vF+10}, s{sT1}, v{e+3}
v_and_b32 v{vF+10}, 1, v{vRK+i}
v_lshlrev_b32 v{vRK+i}, 1, v{vRK+i}
v_mad_u32_u24 v{vRK+i}, v{vF+10}, s{sT0}, v{vRK+i}""")
        lo = o.get("eftr", 0)
        if o["eft"] <= lo:
            return
        if lo:
            a(f"v_subrev_u32 v{vF+11}, {H2 + 4*lo}, v{vKY+i}\nv_cmp_gt_u32 vcc, {4 * (o['eft'] - lo)}, v{vF+11}")
        else:
            a(f"v_cmp_gt_u32 vcc, {H2 + 4 * o['eft']}, v{vKY+i}")
        a(f"""
v_and_b32 v{vF+10}, s{sEMASK}, v{e+3}
s_and_b64 exec, exec, vcc
s_cbranch_execz L_eft{i}
buffer_load_dword v{vPF}, v{vF+10}, s[{S_EF}:{S_EF+3}], 0 offen
L_eft{i}:""")
    for_parts(pre_body, "pr")
    if o.get("fs") == 2:
        a(f"s_cmp_eq_u32 s{sWAVE}, 0\ns_cbranch_scc1 L_scanned\ns_barrier\nL_scanned:")
    else:
        a("s_waitcnt lgkmcnt(0)\ns_barrier")
    stamp("F3")
    a(f"ds_read_b32 v{vF+1}, v{vH2} offset:1020\nds_read_b32 v{vF+2}, v{vH2} offset:1032")
    for_parts(lambda g, i, e: a(f"ds_read_b32 v{vKY+i}, v{vKY+i}"), "st")
    a(f"""
s_waitcnt lgkmcnt(0)
v_readfirstlane_b32 s{sNBLK}, v{vF+1}
v_readfirstlane_b32 s{sMORE}, v{vF+2}
s_cmp_le_u32 s{sNBLK}, {CAP*2}
s_cbranch_scc1 L_fits
s_mov_b32 s{sSPLIT}, 3
s_barrier
s_branch L_round
L_fits:
""")
    if o.get("dly"):
        a(f"s_sleep {o['dly']}")
    def scat_body(g, i, e):
        a(f"""v_add_u32 v{vF}, v{vKY+i}, v{vRK+i}
v_lshlrev_b32 v{vF+3}, 1, v{vF}
ds_write_b32 v{vF}, v{e+2} offset:{XO}
ds_write_b32 v{vF}, v{e+3} offset:{EW}
ds_write_b64 v{vF+3}, v[{e}:{e+1}] offset:{YY}""")
    for_parts(scat_body, "sc")
    a(f"""
v_mov_b32 v{vF+2}, {PAD_E | 0x80000000:#x}
s_add_u32 s{sNBLK}, s{sNBLK}, 63
s_lshr_b32 s{sNBLK}, s{sNBLK}, 6
ds_write_b32 v{vF+1}, v{vF+2} offset:{EW}
s_waitcnt lgkmcnt(0)
s_barrier
""")
    stamp("sort")
    if STAMPS:
        a("s_memtime s[96:97]\ns_waitcnt lgkmcnt(0)")
    main_start = len(a.L)

    def rho(step):
        return 8 * (step // 4) + step % 4
    def block_reads(sreg):
        a(f"""s_lshl_b32 s{sT0}, s{sreg}, 6
s_lshl_b32 s{sT1}, s{sreg}, 7
v_add_u32 v{vEWN}, s{sT0}, v{vCE}
v_add_u32 v{vXN}, s{sT0}, v{vCX}
v_add_u32 v{vY}, s{sT1}, v{vCY}
ds_read_b32 v{vEWN}, v{vEWN} offset:{EW}
ds_read_b32 v{vXN}, v{vXN} offset:{XO}
ds_read_b64 v[{vY}:{vY+1}], v{vY} offset:{YY}""")
    def x_load(step):
        src = vXN if step >= 16 else vXC
        xa = vXA + (step & 1)
        d = vX + 4 * (step % D)
        return [f"v_add_u32_dpp v{xa}, v{src}, v{vXL} row_newbcast:{step % 16} row_mask:0xf bank_mask:0xf",
                f"buffer_load_dwordx4 v[{d}:{d+3}], v{xa}, s[{S_X}:{S_X+3}], 0 offen"]
    flags = f"v_cmp_gt_i32 s[{sFMN}:{sFMN+1}], 0, v{vEWN}"
    ring_read = f"ds_read_b32 v{vFV}, v{vFA}\nds_read_b128 v[{vEF}:{vEF+3}], v{vRA}"
    ring_test = f"""v_readfirstlane_b32 s{sT0}, v{vFV}
s_cmp_lg_u32 s{sT0}, s{sNXT}
s_cbranch_scc1 L_ring_wait"""
    KT = [vU, vU + 4, vU + 16, vU + 20]
    def k_mfma():
        return [f"v_mfma_f32_4x4x4_16b_bf16 v[{KT[i]}:{KT[i]+3}], v[{vY}:{vY+1}], v[{vCG+2*i}:{vCG+2*i+1}], 0" for i in range(4)]
    def k_cvt(j):
        return [f"v_cvt_pk_bf16_f32 v{vK+2*j}, v{KT[0]+j}, v{KT[1]+j}",
                f"v_cvt_pk_bf16_f32 v{vK+2*j+1}, v{KT[2]+j}, v{KT[3]+j}"]
    def u_mfma():
        return [f"v_mfma_f32_32x32x16_bf16 v[{vU+16*p}:{vU+16*p+15}], v[{vEF}:{vEF+3}], v[{vW+4*p}:{vW+4*p+3}], 0" for p in range(2)]
    def silu_ops(d):
        u = vU
        E = [f"v_exp_f32 v{vT+2*p+j}, {'' if NEG else '-'}v{u+16*p+2*d+j}" for p in range(2) for j in range(2)]
        A = [f"v_pk_add_f32 v[{vT+2*p}:{vT+2*p+1}], v[{vT+2*p}:{vT+2*p+1}], 1.0 op_sel_hi:[1,0]" for p in range(2)]
        R = [f"v_rcp_f32 v{vT+2*p+j}, v{vT+2*p+j}" for p in range(2) for j in range(2)]
        M = [f"v_pk_mul_f32 v[{u+16*p+2*d}:{u+16*p+2*d+1}], v[{u+16*p+2*d}:{u+16*p+2*d+1}], v[{vT+2*p}:{vT+2*p+1}]" for p in range(2)]
        return E, A, R, M
    def fma_ops(step, first=False):
        d, j = divmod(step, 2)
        out = []
        for p in range(2):
            rr = vU + 16 * p + 2 * d
            for hh in range(2):
                t = vTP + 4 * p + 2 * hh
                c = vACC + 4 * p + 2 * hh
                if first:
                    out.append(f"v_pk_mul_f32 v[{c}:{c+1}], v[{t}:{t+1}], v[{rr}:{rr+1}] op_sel:[0,{j}] op_sel_hi:[1,{j}]")
                else:
                    out.append(f"v_pk_fma_f32 v[{c}:{c+1}], v[{t}:{t+1}], v[{rr}:{rr+1}], v[{c}:{c+1}] op_sel:[0,{j},0] op_sel_hi:[1,{j},1]")
        return out
    def tp_ops(step):
        out = []
        for p in range(2):
            t, x, k = vTP + 4 * p, vX + 4 * (step % D) + 2 * p, vK + 2 * (step // 8)
            out.append(f"v_mfma_f32_4x4x4_16b_bf16 v[{t}:{t+3}], v[{k}:{k+1}], v[{x}:{x+1}], 0 cbsz:3 abid:{step%8}")
        return out
    def flush_body(step, packed):
        c = vACC
        a(f"v_readlane_b32 s{sT0}, v{vEWC}, {rho(step)}\ns_nop 0")
        for oo in range(4):
            a(f"v_permlane32_swap_b32 v{c+oo}, v{c+4+oo}")
            if oo == 0:
                a(f"s_bfe_u32 s{sT0}, s{sT0}, 0x60019\ns_mul_i32 s{sT0}, s{sT0}, {ACC_NODE}")
        a(f"v_add_u32 v{vQ}, s{sT0}, v{vAL}")
        for h in (0, 2):
            if packed:
                a(f"v_pk_add_f32 v[{c+h}:{c+h+1}], v[{c+h}:{c+h+1}], v[{c+4+h}:{c+5+h}]")
            else:
                a(f"v_add_f32 v{c+h}, v{c+h}, v{c+4+h}\nv_add_f32 v{c+h+1}, v{c+h+1}, v{c+5+h}")
            a(f"""v_cvt_f64_f32 v[{c+4+h}:{c+5+h}], v{c+h}
v_cvt_f64_f32 v[{c+h}:{c+h+1}], v{c+h+1}
ds_add_f64 v{vQ}, v[{c+4+h}:{c+5+h}] offset:{h*ACC_ROW}
ds_add_f64 v{vQ}, v[{c+h}:{c+h+1}] offset:{(h+1)*ACC_ROW}""")

    a(f"""
;; ---- blocks of 32 sorted edges: two edges per step, one per half wave, two channels per lane
s_mul_i32 s{sT0}, s{sNBLK}, {-(-65536 // NC)}
s_lshr_b32 s{sT0}, s{sT0}, 16
s_mul_i32 s{sT0}, s{sT0}, {NC}
s_sub_u32 s{sT0}, s{sNBLK}, s{sT0}
s_cmp_le_u32 s{sT0}, {o.get("xm", 0)}
s_cselect_b32 s{sT0}, s{sT0}, 0
s_min_u32 s{sNI}, s{sT0}, {NS}
s_add_u32 s{sNI}, s{sNI}, {NC}
s_add_u32 s{sQUO}, s{sT0}, {NC + NS - 1}
s_sub_u32 s{sQUO}, s{sQUO}, s{sWAVE}
s_mul_i32 s{sQUO}, s{sQUO}, {-(-65536 // NS)}
s_lshr_b32 s{sQUO}, s{sQUO}, 16
s_cmp_lt_u32 s{sWAVE}, {NC}
s_cselect_b32 s{sQUO}, 0x7fff, s{sQUO}
s_mov_b32 s{sEND}, s{sNBLK}
s_min_u32 s{sT0}, s{sWAVE}, s{sNI}
s_cmp_ge_u32 s{sT0}, s{sNBLK}
s_cbranch_scc1 L_done
s_cmp_ge_u32 s{sWAVE}, s{sNI}
s_cbranch_scc1 L_loader
s_setprio 3
""")
    block_reads(sWAVE)
    a(f"""v_mov_b32 v{vMI}, {MISC}
v_mov_b32 v{vC1}, 1
v_mov_b32 v{vC0}, 0
s_waitcnt lgkmcnt(0)
v_and_or_b32 v{vEF}, v{vEWN}, s{sEMASK}, v{vEH}
{flags}
buffer_load_dwordx4 v[{vEF}:{vEF+3}], v{vEF}, s[{S_EF}:{S_EF+3}], 0 offen""")
    for s in range(D):
        emit(x_load(16 + s))
    emit(k_mfma())
    a("s_nop 4")
    emit(k_cvt(0) + k_cvt(1))
    a(f"s_waitcnt vmcnt({D})")
    emit(u_mfma())
    a("s_nop 7\ns_branch L_enter")

    G0, G1, E0, K0, R0, R1 = 4, 6, 8, 9, 13, 15
    PLV = o["plv"]
    TPR = {4: {}, 3: {G1: 0}, 2: {G1: 1, 11: 0}, 1: {G1: 2, 9: 1, 12: 0}}[PLV]
    def body(tail):
        tag = "t" if tail else ""
        for s in range(G1 if tail else 0, 16):
            d, j = divmod(s, 2)
            M = tp_ops(s)
            TR, PK = [], []
            if d < 7:
                E, A, R, U = silu_ops(d + 1)
                TR, PK = (R, U) if j else (E, A)
            if tail and o.get("lighttail"):
                TR, PK = (["s_nop 0"] * 4 if TR else []), []
            if tail and s in TPR:
                a(f"s_setprio {TPR[s]}")
            if not (tail and s == G1):
                a(f"s_waitcnt vmcnt({min(D - 1, 15 - s) if tail else D - 1})")
                a(M[0])
                emit(TR[:1])
                a(M[1])
                early = o.get("xe") and s != G1 and not (tail and s >= 16 - D)
                if early:
                    emit(x_load(s + D))
                if s in (K0, K0 + 1) and not tail:
                    KM = k_mfma()[2 * (s - K0):2 * (s - K0) + 2]
                    a(TR[1]); a(KM[0]); a(TR[2]); a(KM[1]); a(TR[3])
                else:
                    emit(TR[1:])
                if not tail:
                    if s == 15:
                        emit(k_cvt(1))
                    if s == K0 + 3:
                        emit(k_cvt(0))
                    if s in (G1, E0, R1):
                        a("s_waitcnt lgkmcnt(0)")
                    if s == G1:
                        a(f"""v_readfirstlane_b32 s{sNXT}, v{vEWN}
s_add_u32 s{sNXT}, s{sNXT}, s{sNI}
s_cmp_ge_u32 s{sNXT}, s{sEND}
s_cbranch_scc1 L_tail""")
                        block_reads(sNXT)
                    if s == E0:
                        a(flags)
                    if s == R0:
                        a(f"""s_and_b32 s{sT0}, s{sNXT}, 15
s_lshl_b32 s{sT1}, s{sT0}, 10
s_lshl_b32 s{sT0}, s{sT0}, 2
s_add_u32 s{sT0}, s{sT0}, {FLG}
v_add_u32 v{vRA}, s{sT1}, v{vRL}
v_mov_b32 v{vFA}, s{sT0}
{ring_read}""")
                    if s == R1:
                        a(f"{ring_test}\nL_ring_ok:\nds_write_b32 v{vFA}, v{vC0}")
            if not (tail and s >= 16 - D) and not (o.get("xe") and s != G1):
                emit(x_load(s + D))
            if s == G0:
                a(f"""s_mov_b64 exec, 1
ds_add_rtn_u32 v{vEWN}, v{vMI}, v{vC1}
s_mov_b64 exec, -1""")
            if s == 0:
                emit(fma_ops(0, True))
            else:
                if s >= 14:
                    a("s_nop 1" if tail else "s_nop 0" if s == 14 else "")
                a(f"s_bitcmp1_b32 s{sFM}, {rho(s)}\ns_cbranch_scc1 L_fl{tag}{s}")
                emit(fma_ops(s))
                a(f"L_fr{tag}{s}:")
            emit(PK)
    def stubs(tail):
        tag = "t" if tail else ""
        for s in range(G1 if tail else 1, 16):
            a(f"L_fl{tag}{s}:")
            flush_body(s - 1, True)
            emit(fma_ops(s, True))
            a(f"s_branch L_fr{tag}{s}")
    if o.get("al") is not None:
        a(".p2align 6")
        for _ in range(o["al"]):
            a("s_nop 0")
    a("L_block:")
    body(False)
    emit(u_mfma())
    flush_body(15, False)
    if PLV > 1:
        a(f"s_mul_i32 s{sT0}, s{sNXT}, {PLV}")
        for lvl in range(2, 3 - PLV, -1):
            a(f"s_sub_u32 s{sT0}, s{sT0}, s{sNBLK}\ns_cbranch_scc1 L_enter\ns_setprio {lvl}")
    a(f"""L_enter:
v_mov_b32 v{vEWC}, v{vEWN}
v_mov_b32 v{vXC}, v{vXN}
s_mov_b32 s{sFM}, s{sFMN}
s_sub_u32 s{sQUO}, s{sQUO}, 1
s_cmp_lg_u32 s{sQUO}, 0
s_cbranch_scc1 L_more
v_mov_b32 v{vC1}, 0
s_mov_b32 s{sEND}, 0
L_more:""")
    E, A, R, U = silu_ops(0)
    emit(E)
    a("s_nop 0")
    emit(A + R)
    a("s_nop 0")
    emit(U)
    a("s_branch L_block\nL_ring_wait:")
    bound(SPIN * 8)
    a(f"s_sleep 1\n{ring_read}\ns_waitcnt lgkmcnt(0)\n{ring_test}\ns_branch L_ring_ok")

    vLA, lCE, lEH = vU, vX, vX + 1
    NL = o.get('nl', 1)
    sNB, sREM = sNXT, sFM
    a(f"""
L_loader:
s_cmp_lt_u32 s{sWAVE}, {NW-NL}
s_cbranch_scc1 L_done
s_setprio 3
s_lshr_b32 s{sT0}, s2, 3
s_mul_i32 s{sT0}, s{sT0}, {RB}
s_lshr_b32 s{sT0}, s{sT0}, 5
s_mul_i32 s{sNB}, s{sWAVE}, {RB}
s_sub_u32 s{sNB}, s{sNB}, s{sT0}
s_sub_u32 s{sNB}, s{sNB}, {(NW-NL)*RB}
s_add_u32 s{sNB}, s{sNB}, s{sNI}
s_cmp_ge_u32 s{sNB}, s{sNBLK}
s_cbranch_scc1 L_done
s_sub_u32 s{sREM}, s{sNBLK}, s{sNI}
s_mov_b32 s{sFMN+1}, 0
v_and_b32 v{vQ}, 63, v0
v_bfe_u32 v{lCE}, v{vQ}, 3, 1
v_mul_u32_u24 v{lCE}, {NP}, v{lCE}
v_bfe_u32 v{lEH}, v{vQ}, 4, 2
v_lshl_add_u32 v{lCE}, v{lEH}, 2, v{lCE}
v_bfe_u32 v{lEH}, v{vQ}, 1, 2
v_add_lshl_u32 v{lCE}, v{lCE}, v{lEH}, 2
v_and_b32 v{lEH}, 1, v{vQ}
v_lshlrev_b32 v{lEH}, 4, v{lEH}
v_mov_b32 v{vY}, {MISC}
L_ld_batch:
s_lshl_b32 s{sT0}, s{sNB}, 6
v_add_u32 v{vTM}, s{sT0}, v{lCE}
""")
    for i in range(RB):
        a(f"ds_read_b32 v{vLA+i}, v{vTM} offset:{EW + 64*i}")
    a(f"""v_add_u32 v{vFV}, s{sNB}, v{vQ}
v_and_b32 v{vFA}, 15, v{vFV}
v_lshlrev_b32 v{vFA}, 2, v{vFA}
v_add_u32 v{vFA}, {FLG}, v{vFA}
v_subrev_u32 v{vRA}, s{sNI}, v{vFV}
v_cmp_gt_u32 vcc, s{sREM}, v{vRA}
s_and_b32 s{sFMN}, vcc_lo, {(1 << RB) - 1}
s_waitcnt lgkmcnt(0)""")
    for i in range(RB):
        a(f"v_and_or_b32 v{vLA+i}, v{vLA+i}, s{sEMASK}, v{lEH}")
    a(f"""L_ld_wait:
ds_read_b32 v{vRA}, v{vFA}
ds_read_b32 v{vTM+1}, v{vY}
s_waitcnt lgkmcnt(0)
v_cmp_ne_u32 vcc, 0, v{vRA}
v_readfirstlane_b32 s{sT1}, v{vTM+1}
s_add_u32 s{sT1}, s{sT1}, s{sNI}
s_sub_u32 s{sT1}, s{sT1}, {-o["lead"]}
s_cmp_lt_u32 s{sT1}, s{sNB}
s_cselect_b32 s{sT1}, -1, 0
s_or_b32 s{sT1}, s{sT1}, vcc_lo
s_and_b32 s{sT0}, s{sT1}, s{sFMN}
s_cbranch_scc0 L_ld_go""")
    bound(SPIN * 8)
    a("s_sleep 2\ns_branch L_ld_wait\nL_ld_go:")
    for i in range(RB):
        a(f"""s_bitcmp0_b32 s{sFMN}, {i}
s_cbranch_scc1 L_ld_skip{i}
s_add_u32 s{sT0}, s{sNB}, {i}
s_and_b32 s{sT0}, s{sT0}, 15
s_lshl_b32 s{sT0}, s{sT0}, 10
s_add_u32 m0, s{sT0}, {RING}
s_nop 0
buffer_load_dwordx4 v{vLA+i}, s[{S_EF}:{S_EF+3}], 0 offen lds
L_ld_skip{i}:""")
    if o.get("prog"):
        a(f"s_cmp_lg_u32 s{sFMN}, {(1 << RB) - 1}\ns_cbranch_scc1 L_ld_all")
        for i in range(RB - 1):
            a(f"s_mov_b64 exec, {1 << i}\ns_waitcnt vmcnt({RB-1-i})\nds_write_b32 v{vFA}, v{vFV}")
        a(f"s_mov_b32 s{sFMN}, {1 << (RB-1)}\nL_ld_all:")
    a(f"""s_waitcnt vmcnt(0)
s_mov_b64 exec, s[{sFMN}:{sFMN+1}]
ds_write_b32 v{vFA}, v{vFV}
s_mov_b64 exec, -1
s_add_u32 s{sNB}, s{sNB}, {RB*NL}
s_cmp_lt_u32 s{sNB}, s{sNBLK}
s_cbranch_scc1 L_ld_batch
s_branch L_done
;; ---- node changes: add the running sums to the node's LDS accumulator and restart them""")
    stubs(False)
    stubs(True)
    a(";; ---- a wave's last block\nL_tail:")
    body(True)
    flush_body(15, True)
    if o.get("drop"):
        pat = re.compile(o["drop"].replace(" ", "|"))
        a.L[main_start:] = [l for l in a.L[main_start:] if not pat.search(l)]

    vB = base
    vEA = vB + 32
    vPA = vEA + 32
    vD = vPA + 8
    assert vD + 16 <= vPF
    a(f"""
L_done:
s_setprio 0
s_waitcnt vmcnt(0) lgkmcnt(0)
s_cmp_eq_u32 s{sQ}, s{sSPLIT}
s_cbranch_scc1 L_lastq
s_add_u32 s{sQ}, s{sQ}, 1
s_barrier
s_branch L_round
L_lastq:
s_cmp_eq_u32 s{sMORE}, 0
s_cbranch_scc1 L_epi
s_add_u32 s{sK}, s{sK}, 1
s_mov_b32 s{sQ}, 0
s_mov_b32 s{sSPLIT}, 0
s_barrier
s_branch L_round
L_epi:
v_and_b32 v4, 63, v0
v_lshrrev_b32 v2, 5, v4
v_bfe_u32 v3, v4, 2, 2
v_lshl_add_u32 v2, v2, 4, v3
v_bfe_u32 v6, v4, 4, 1
v_lshl_add_u32 v2, v2, 1, v6
v_mul_u32_u24 v2, {MIXROW}, v2
v_and_b32 v3, 3, v4
v_lshl_add_u32 v2, v3, 3, v2
v_add_u32 v2, {CMIX}, v2
""")
    for t in range(4):
        for ks in range(2):
            for q in range(2):
                d = vB + 8 * t + 4 * ks + 2 * q
                a(f"ds_read_b64_tr_b16 v[{d}:{d+1}], v2 offset:{(16*ks + 8*q)*MIXROW + (t&1)*64 + (t>>1)*32}")
    a(f"""
v_and_b32 v5, 15, v4
v_mul_u32_u24 v2, {ACC_ROW}, v5
v_lshl_add_u32 v2, v6, 8, v2
v_lshrrev_b32 v3, 5, v4
v_lshl_add_u32 v2, v3, 7, v2
s_mul_i32 s{sT0}, s{sWAVE}, {4*ACC_NODE}
s_add_u32 s{sT0}, s{sT0}, {ACC}
v_add_u32 v2, s{sT0}, v2
s_lshl_b32 s{sT0}, s{sWAVE}, 2
s_add_u32 s{sT0}, s{sT0}, s{sN0}
v_lshrrev_b32 v3, 4, v4
v_add_u32 v3, s{sT0}, v3
v_cmp_gt_u32 vcc, s{sNN}, v3
v_lshlrev_b32 v3, 9, v3
v_lshl_add_u32 v3, v5, 4, v3
s_mov_b32 s{sT0}, {LN2 | SGN:#x}
s_mov_b32 s{sT1}, {LN2 | SGN:#x}
s_barrier
""")
    stamp("main")
    if STAMPS:
        a("s_memtime s[98:99]\ns_waitcnt lgkmcnt(0)")
    a(f"s_cmp_ge_u32 s{sWAVE}, 10\ns_cbranch_scc1 L_end")
    for j in range(8):
        a(f"ds_read_b128 v[{vEA+4*j}:{vEA+4*j+3}], v2 offset:{j*16}")
    for j in range(8):
        a(f"""s_waitcnt lgkmcnt({7-j})
v_cvt_f32_f64 v{vEA+4*j}, v[{vEA+4*j}:{vEA+4*j+1}]
v_cvt_f32_f64 v{vEA+4*j+1}, v[{vEA+4*j+2}:{vEA+4*j+3}]
v_pk_mul_f32 v[{vEA+4*j}:{vEA+4*j+1}], v[{vEA+4*j}:{vEA+4*j+1}], s[{sT0}:{sT1}]
v_cvt_pk_bf16_f32 v{vPA+j}, v{vEA+4*j}, v{vEA+4*j+1}""")
    a("s_nop 1")
    for ks in range(2):
        for t in range(4):
            c = "0" if ks == 0 else f"v[{vD+4*t}:{vD+4*t+3}]"
            a(f"v_mfma_f32_16x16x32_bf16 v[{vD+4*t}:{vD+4*t+3}], v[{vPA+4*ks}:{vPA+4*ks+3}], v[{vB+8*t+4*ks}:{vB+8*t+4*ks+3}], {c}")
    a("s_nop 4")
    for j in range(8):
        a(f"v_cvt_pk_bf16_f32 v{vEA+j}, v{vD+2*j}, v{vD+2*j+1}")
    a(f"""
s_and_b64 exec, exec, vcc
s_cbranch_execz L_end
buffer_store_dwordx4 v[{vEA}:{vEA+3}], v3, s[{S_OUT}:{S_OUT+3}], 0 offen sc1
buffer_store_dwordx4 v[{vEA+4}:{vEA+7}], v3, s[{S_OUT}:{S_OUT+3}], 0 offen offset:256 sc1
""")
    if STAMPS:
        a("s_waitcnt vmcnt(0)")
        stamp("end", True)
        srd(56, 10, 0x20000, WS_STAMP)
        a(f"s_mov_b64 exec, -1\nv_cmp_eq_u32 vcc, {64 * o.get('stw', 0)}, v0\ns_and_b64 exec, exec, vcc\ns_cbranch_execz L_end")
        a("s_lshl_b32 s3, s2, 7\nv_mov_b32 v4, s3")
        for i in range(12):
            a(f"v_mov_b32 v2, s{76+2*i}\nv_mov_b32 v3, s{77+2*i}\nbuffer_store_dwordx2 v[2:3], v4, s[56:59], 0 offen offset:{8*i}")
    a("L_end:\ns_endpgm")

    out = open("cdna_kernels/" + NAME + ".s.ref").read().split("; Override launch")[0]
    out += f"; @launch grid=({NB},1,1) block=({T},1,1) lds={LDS}\n"
    out += '.amdgcn_target "amdgcn-amd-amdhsa--gfx950"\n.text\n'
    out += f".globl {K}\n.p2align 8\n.type {K},@function\n{a.text()}"
    out += f""".section .rodata,"a"
.p2align 6
.amdhsa_kernel {K}
  .amdhsa_next_free_vgpr {n_vgpr}
  .amdhsa_next_free_sgpr {n_sgpr}
  .amdhsa_accum_offset {(n_vgpr + 3) // 4 * 4}
  .amdhsa_group_segment_fixed_size 0
  .amdhsa_kernarg_size 88
  .amdhsa_user_sgpr_count 2
  .amdhsa_user_sgpr_kernarg_segment_ptr 1
  .amdhsa_system_sgpr_workgroup_id_x 1
  .amdhsa_float_denorm_mode_32 3
.end_amdhsa_kernel
"""
    return out, dict(vgpr=n_vgpr, sgpr=n_sgpr, lds=LDS)

if __name__ == "__main__":
    o = {}
    path = "cdna_kernels/" + NAME + ".s"
    for arg in sys.argv[1:]:
        k, v = arg.split("=", 1)
        if k == "out":
            path = v
        else:
            o[k] = int(v) if v.lstrip("-").isdigit() else v.replace("+", " ")
    txt, info = gen(o)
    open(path, "w").write(txt)
    print(path, info)
```

```python
import sys, re

NAME = "standalone__tensor_product_equiv_tfn__graph"
N_NODES, N_EDGES = 10000, 640000
NB = 256
CH = 2500
REC = 12
CS = 30080
WS_TAB, WS_STAMP, WS_ENT = 0x800000, 0xA00000, 0x1000000
ACC_ROW = 528
ACC_NODE = 4 * ACC_ROW
MIXROW = 144
PAD_X = 0x7FFF0000
PAD_E = 0x01FFFFE0
NW, T, NG, PW = 16, 1024, 4, 10
HT = (NW - PW) * 64
SPIN = 1 << 18
LOG2E, LN2 = 0x3FB8AA3B, 0x3F317218
DEFAULTS = dict(nph=4, cap=3072, nc=12, ring=5, lead=-2, eft=18, pfj=25, accearly=5, plv=2, prew=1, cpf=1, xm=3)

def magic(mul, div, lim):
    for S in range(8, 32):
        M = -(-(mul << S) // div)
        if M < 1 << 24 and (lim - 1) * M < 1 << 32 and all((x * M) >> S == x * mul // div for x in range(lim)):
            return M, S
    raise ValueError

class Asm:
    def __init__(self):
        self.L = []
    def __call__(self, s):
        for line in s.split("\n"):
            line = line.strip()
            if line:
                self.L.append(line if line.endswith(":") or line.startswith(";;") else "    " + line)
    def text(self):
        return "\n".join(self.L) + "\n"

def gen(opts):
    o = dict(DEFAULTS); o.update(opts)
    a = Asm()
    NPH, CAP, NC, RB = o["nph"], o["cap"], o["nc"], o["ring"]
    STAMPS = o.get("stamps")
    D = 4
    NEG = o.get('neg', 0)
    SGN = 0x80000000 if NEG else 0
    NP = CAP // 2 + 16
    assert NP % 32 == 16
    XO, EW, YY, ACC = 0, NP * 8, NP * 16, NP * 32
    H1 = ACC + 40 * ACC_NODE
    EPOCH = H1 + 1024 + 16
    H2 = H1 + 1024 + 64
    MISC = H2 + 1024
    FLG = MISC + 64
    CMIX = FLG + 64
    CW = CMIX + 64 * MIXROW
    CCG = CW + 2048
    RING = CW
    LDS = RING + 16384
    MB, SB = magic(NB, N_NODES, N_NODES)
    PB = o.get('pb', N_NODES // NPH)
    MP, SP = magic(1, PB, N_NODES)
    ACC_EARLY = min(o["accearly"] * HT * 16, 40 * ACC_NODE)

    S_X, S_EF, S_ENT, S_TAB, S_A, S_OUT = 12, 16, 20, 24, 28, 32
    sTAGL, sTAGH, sCNT, sPM = 4, 5, 6, 8
    sB, sN0, sNN, sWAVE, sK, sQ, sSPLIT, sNBLK = 36, 37, 38, 39, 40, 41, 42, 43
    sFMN, sNXT, sFM, sT0, sT1, sEMASK, sMORE = 44, 46, 47, 48, 49, 50, 51
    sMASK = 52
    sPEND, sISS, sNEW, sLIM, sMP, sFIRST, sSEL = 68, 69, 70, 71, 72, 73, 74
    sNI, sQUO, sEND = sPEND, sISS, sNEW
    NS = NW - 1 - NC
    n_sgpr = 100 if STAMPS else 76

    vXL, vW, vCG = 1, 2, 10
    vAL, vCX, vCE, vCY, vEH, vRL = 18, 19, 20, 21, 22, 23
    base = r = 24
    vU = r; r += 32
    vX = r; r += 4 * D
    vXC, vXN, vXA = r, r + 1, r + 2; r += 4
    vTP = r; r += 8
    vACC = r; r += 8
    vK = r; r += 4
    vEF = r; r += 4
    vT = r; r += 4
    vY = r; r += 2
    vTM = r; r += 2
    vEWC, vEWN, vQ, vFA, vFV, vRA, vMI, vC1, vC0 = range(r, r + 9); r += 9
    n_main = r
    r = base
    vTB = r; r += 8
    vEN = r; r += 8 * NG
    vRK = r; r += 2 * NG
    vKY = r; r += 2 * NG
    vF = r; r += 16
    vONE, vJ, vJ16, vH2, vWC = r, r + 1, r + 2, r + 3, r + 4; r += 4 + NG
    vPF = max(n_main, r, base + 88)
    n_vgpr = vPF + 1

    def emit(lst):
        for ins in lst:
            a(ins)
    marks = o.get("marks", "start B4 join poll0 rank F2 F3 sort main end").split()
    def stamp(name, wait=False):
        if STAMPS:
            for i, m in enumerate(marks):
                if m == name:
                    a(f"s_memrealtime s[{76+2*i}:{77+2*i}]")
            if wait:
                a("s_waitcnt lgkmcnt(0)")
    def srd(d, ptr, nbytes, off=0):
        if off:
            a(f"s_add_u32 s{d}, s{ptr}, {off:#x}\ns_addc_u32 s{d+1}, s{ptr+1}, 0")
        else:
            a(f"s_mov_b32 s{d}, s{ptr}\ns_mov_b32 s{d+1}, s{ptr+1}")
        a(f"s_mov_b32 s{d+2}, {nbytes}\ns_mov_b32 s{d+3}, 0x20000")
    def scan4(c, t):
        a(f"""v_add_u32 v{t+1}, v{c}, v{c+1}
v_add_u32 v{t+2}, v{t+1}, v{c+2}
v_add_u32 v{t+3}, v{t+2}, v{c+3}
v_mov_b32 v{t+4}, v{t+3}""")
        for k, ctl in enumerate(("row_shr:1", "row_shr:2", "row_shr:4", "row_shr:8",
                                 "row_bcast:15 row_mask:0xa", "row_bcast:31 row_mask:0xc")):
            a(f"s_nop {0 if k == 0 else 1}\nv_add_u32_dpp v{t+3}, v{t+3}, v{t+3} {ctl}")
        a(f"""v_sub_u32 v{t}, v{t+3}, v{t+4}
v_add_u32 v{t+3}, v{t}, v{t+2}
v_add_u32 v{t+2}, v{t}, v{t+1}
v_add_u32 v{t+1}, v{t}, v{c}""")
    def lds_fill(start, nbytes, val, vtid, nthr, v):
        a(f"v_lshlrev_b32 v{v+4}, 4, v{vtid}")
        if val is not None:
            for j in range(4):
                a(f"v_mov_b32 v{v+j}, {val:#x}")
        n = nbytes // 16
        assert nbytes % 16 == 0
        k = 0
        while k * nthr < n:
            rem = n - k * nthr
            if start + k * nthr * 16 >= 65536:
                a(f"v_add_u32 v{v+4}, {start + k*nthr*16}, v{v+4}")
                start = -k * nthr * 16
            if rem < nthr:
                a(f"v_cmp_gt_u32 vcc, {rem}, v{vtid}\ns_and_saveexec_b64 s[{sT0}:{sT1}], vcc")
            a(f"ds_write_b128 v{v+4}, v[{v}:{v+3}] offset:{start + k*nthr*16}")
            if rem < nthr:
                a(f"s_mov_b64 exec, s[{sT0}:{sT1}]")
            k += 1
    def common_srds():
        srd(S_X, 56, 0 if o.get("nox") else N_NODES * 512)
        srd(S_EF, 64, 0 if o.get("noef") else N_EDGES * 32)
        srd(S_OUT, 72, N_NODES * 512)
        srd(S_ENT, 10, NB * CS, WS_ENT)
        srd(S_TAB, 10, NB * NB * 8, WS_TAB)
    def bound(limit):
        a(f"s_add_u32 s{sCNT}, s{sCNT}, 1\ns_cmp_ge_u32 s{sCNT}, {limit}\ns_cbranch_scc1 L_end")

    K = NAME + "_kernel"
    a(f"""
{K}:
s_cmp_ge_u32 s2, {NB}
s_cbranch_scc1 L_end
""")
    stamp("start")
    a(f"""
s_load_dwordx16 s[56:71], s[0:1], 0
s_load_dwordx4 s[72:75], s[0:1], 64
s_load_dwordx2 s[10:11], s[0:1], 80
v_lshrrev_b32 v2, 6, v0
v_lshlrev_b32 v46, 4, v0
v_readfirstlane_b32 s{sWAVE}, v2
v_mov_b32 v22, {H1}
v_mov_b32 v4, 0
v_and_b32 v3, 0xff, v0
v_lshl_add_u32 v3, v3, 2, v22
ds_write_b32 v3, v4
s_cmp_lt_u32 s{sWAVE}, {PW}
s_cbranch_scc1 L_a_first
s_getpc_b64 s[8:9]
L_pc:
s_lshl_b32 s3, s{sWAVE}, 5
s_lshr_b32 s7, s2, 3
s_add_u32 s3, s3, s7
s_sub_u32 s3, s3, {PW*32}
s_lshl_b32 s3, s3, 7
s_min_u32 s3, s3, L_end-L_pc
s_add_u32 s8, s8, s3
s_addc_u32 s9, s9, 0
v_mov_b32 v10, s8
v_mov_b32 v11, s9
global_load_dword v{vPF}, v[10:11], off
s_memrealtime s[8:9]
s_xor_b32 s3, s{sWAVE}, {PW}
s_or_b32 s3, s3, s2
s_waitcnt lgkmcnt(0)
""")
    srd(S_A, 74, 256)
    a(f"""
s_cbranch_scc1 L_nopub
s_and_b32 s9, s9, 0xff
s_or_b32 s9, s9, 0x100
v_mov_b32 v12, s8
v_mov_b32 v13, s9
s_mov_b64 exec, 1
buffer_store_dwordx2 v[12:13], v4, s[{S_A}:{S_A+3}], 0 offen sc1
s_mov_b64 exec, -1
L_nopub:
s_barrier
s_branch L_helper
;; ---- phase A, waves 0..9: order the chunk's edges by destination bucket, publish records and offsets
L_a_first:
v_cmp_gt_u32 vcc, {CH//4}, v0
s_mov_b64 exec, vcc
v_lshlrev_b32 v2, 5, v0
v_lshlrev_b32 v3, 2, v0
s_mul_i32 s3, s2, {CH*4}
s_mul_i32 s7, s2, {CH*8}
s_waitcnt lgkmcnt(0)
""")
    srd(S_A, 60, N_EDGES * 4)
    a(f"buffer_load_dwordx4 v[4:7], v46, s[{S_A}:{S_A+3}], s3 offen")
    srd(40, 58, N_EDGES * 4)
    srd(44, 62, N_EDGES * 8)
    a("s_barrier")
    stamp("B1")
    a(f"""
buffer_load_dwordx4 v[8:11], v46, s[40:43], s3 offen
buffer_load_dwordx4 v[12:15], v2, s[44:47], s7 offen
buffer_load_dwordx4 v[16:19], v2, s[44:47], s7 offen offset:16
""")
    common_srds()
    a(f"""
s_mov_b32 s8, {MB}
s_movk_i32 s9, 625
v_mov_b32 v21, 1
s_waitcnt vmcnt(3)
""")
    for k in range(4):
        a(f"""v_mul_u32_u24 v{24+k}, s8, v{4+k}
v_lshrrev_b32 v{24+k}, {SB}, v{24+k}
v_lshl_add_u32 v{28+k}, v{24+k}, 2, v22
ds_add_rtn_u32 v{32+k}, v{28+k}, v21""")
    for k in range(4):
        a(f"""v_mad_u32_u24 v{24+k}, v{24+k}, s9, 15
v_lshrrev_b32 v{24+k}, 4, v{24+k}
v_sub_u32 v{24+k}, v{4+k}, v{24+k}
v_add_u32 v{36+k}, {k}, v3
v_lshlrev_b32 v{36+k}, 20, v{36+k}
v_lshl_or_b32 v{36+k}, v{24+k}, 14, v{36+k}""")
    a(f"""
s_waitcnt lgkmcnt(0)
s_barrier
s_cmp_lg_u32 s{sWAVE}, 0
s_cbranch_scc1 L_a_noscan
v_add_u32 v47, v46, v22
ds_read_b128 v[40:43], v47
s_waitcnt lgkmcnt(0)
""")
    scan4(40, 48)
    a(f"""
ds_write_b128 v47, v[48:51]
s_waitcnt lgkmcnt(0)
L_a_noscan:
s_barrier
""")
    for k in range(4):
        a(f"ds_read_b32 v{24+k}, v{28+k}")
    a(f"""
v_and_b32 v47, 0x7f, v0
v_lshl_add_u32 v47, v47, 3, v22
ds_read_b64 v[40:41], v47
ds_read_b32 v42, v47 offset:8
s_waitcnt vmcnt(2)
""")
    for k in range(4):
        a(f"""v_or_b32 v{36+k}, v{36+k}, v{8+k}
s_waitcnt lgkmcnt({5-k})
v_add_u32 v{24+k}, v{24+k}, v{32+k}
v_mul_u32_u24 v{24+k}, {REC}, v{24+k}""")
    for k in range(4):
        a(f"ds_write_b32 v{24+k}, v{36+k} offset:8")
    a(f"""
s_waitcnt lgkmcnt(4)
v_sub_u32 v42, v42, v41
v_sub_u32 v43, v41, v40
v_lshl_or_b32 v42, v42, 12, v41
v_lshl_or_b32 v40, v43, 12, v40
s_mul_i32 s3, s2, {CS}
s_waitcnt vmcnt(0)
""")
    for k in range(4):
        a(f"ds_write2_b32 v{24+k}, v{12+2*k}, v{13+2*k} offset0:0 offset1:1")
    a(f"""
s_mov_b64 exec, -1
v_cmp_gt_u32 vcc, {CS//16 - 2*PW*64}, v0
s_waitcnt lgkmcnt(0)
s_barrier
""")
    stamp("B4", True)
    for k in range(3):
        a(f"ds_read_b128 v[{48+4*k}:{51+4*k}], v46 offset:{k*PW*1024}")
    for k in range(3):
        a(f"s_waitcnt lgkmcnt({2-k})")
        if k == 2:
            a("s_mov_b64 exec, vcc")
        a(f"buffer_store_dwordx4 v[{48+4*k}:{51+4*k}], v46, s[{S_ENT}:{S_ENT+3}], s3 offen sc1")
        if k < 2:
            a(f"s_add_u32 s3, s3, {PW*1024}")
    a(f"""
s_mov_b64 exec, -1
s_branch L_join
L_helper:
v_subrev_u32 v2, {PW*64}, v0
v_and_b32 v3, 63, v0
""")
    a(f"""v_mov_b32 v5, 0
v_mov_b32 v6, 0
v_mov_b32 v7, 0
v_mov_b32 v9, {CH}
ds_write_b32 v22, v9 offset:1024""")
    a(f"""
""")
    common_srds()
    if o["prew"]:
        a(f"""s_cmp_ge_u32 s{sWAVE}, {PW+2}
s_cbranch_scc1 L_h_noprew
v_lshlrev_b32 v9, 4, v2
s_lshl_b32 s7, s2, 11
buffer_store_dwordx4 v[4:7], v9, s[{S_TAB}:{S_TAB+3}], s7 offen sc1
L_h_noprew:""")
    if ACC_EARLY:
        lds_fill(ACC, ACC_EARLY, None, 2, HT, 4)
    a(f"""
s_barrier
""")
    a(f"""
s_waitcnt lgkmcnt(0)
s_barrier
s_cmp_lg_u32 s{sWAVE}, {NW-1}
s_cbranch_scc1 L_h_nopoll
buffer_load_dwordx2 v[14:15], v4, s[{S_A}:{S_A+3}], 0 offen sc1
L_h_nopoll:
s_cmp_eq_u32 s{sWAVE}, {PW}
s_cbranch_scc1 L_h_w
s_cmp_eq_u32 s{sWAVE}, {PW+1}
s_cbranch_scc1 L_h_cg
""")
    srd(40, 70, 64 * 64 * 2)
    a(f"""
v_subrev_u32 v10, {(PW+2)*64*16}, v46
buffer_load_dwordx4 v[16:19], v10, s[40:43], 0 offen
v_add_u32 v11, 4096, v10
buffer_load_dwordx4 v[20:23], v11, s[40:43], 0 offen
""")
    NA = 0
    if o.get("pfa"):
        lo, hi = o.get("pfa0", 0), o["pfa"]
        l0 = N_NODES * 4 * lo // 32
        pa = -(-(N_NODES * 4 * hi // 32 - l0) // (NB * 4))
        NA = 1
        a(f"""s_lshl_b32 s3, s2, 2
s_add_u32 s3, s3, s{sWAVE}
s_mul_i32 s3, s3, {pa}
s_add_u32 s3, s3, {l0 - (PW+2)*pa}
v_min_u32 v11, {pa-1}, v3
v_add_lshl_u32 v11, v11, s3, 7
buffer_load_dword v{vPF}, v11, s[{S_X}:{S_X+3}], 0 offen""")
    a(f"""
s_barrier
s_cmp_lg_u32 s{sWAVE}, {NW-1}
s_cbranch_scc1 L_h_mix
s_mov_b32 s{sCNT}, 0
s_waitcnt vmcnt({2 + NA})
L_h_poll:
v_readfirstlane_b32 s{sT0}, v15
s_cmp_lg_u32 s{sT0}, 0
s_cbranch_scc1 L_h_polled
""")
    bound(SPIN)
    a(f"""
buffer_load_dwordx2 v[14:15], v4, s[{S_A}:{S_A+3}], 0 offen sc1
s_waitcnt vmcnt(0)
s_branch L_h_poll
L_h_polled:
v_mov_b32 v12, {EPOCH}
v_and_b32 v15, 0xff, v15
ds_write_b64 v12, v[14:15]
L_h_mix:
v_lshrrev_b32 v4, 7, v10
v_mul_u32_u24 v5, {MIXROW}, v4
v_and_b32 v6, 7, v3
v_lshl_add_u32 v5, v6, 3, v5
v_add_u32 v5, {CMIX}, v5
s_mov_b32 s8, 0x05040100
s_mov_b32 s9, 0x07060302
s_waitcnt vmcnt({NA})
""")
    for half in range(2):
        q, t = 16 + 4 * half, 24 + 4 * half
        a(f"""v_perm_b32 v{t}, v{q+1}, v{q}, s8
v_perm_b32 v{t+1}, v{q+3}, v{q+2}, s8
v_perm_b32 v{t+2}, v{q+1}, v{q}, s9
v_perm_b32 v{t+3}, v{q+3}, v{q+2}, s9
ds_write_b64 v5, v[{t}:{t+1}] offset:{half*32*MIXROW}
ds_write_b64 v5, v[{t+2}:{t+3}] offset:{half*32*MIXROW + 64}""")
    a("s_branch L_join\nL_h_cg:")
    srd(40, 68, 64 * 2)
    a("v_and_b32 v10, 3, v3\nv_lshlrev_b32 v10, 1, v10")
    for j in range(16):
        a(f"buffer_load_ushort v{16+j}, v10, s[40:43], 0 offen offset:{j*8}")
    a(f"v_lshlrev_b32 v9, 4, v3\nv_add_u32 v9, {CCG}, v9\ns_barrier\ns_waitcnt vmcnt(0)")
    for j in range(8):
        a(f"v_lshl_or_b32 v{32+j}, v{17+2*j}, 16, v{16+2*j}")
    a("ds_write_b128 v9, v[32:35]\nds_write_b128 v9, v[36:39] offset:1024\ns_branch L_join\nL_h_w:")
    srd(40, 66, 16 * 64 * 2)
    a("""v_lshrrev_b32 v10, 5, v3
v_lshlrev_b32 v10, 10, v10
v_and_b32 v11, 31, v3
v_lshl_add_u32 v10, v11, 2, v10""")
    for i in range(8):
        a(f"buffer_load_dword v{16+i}, v10, s[40:43], 0 offen offset:{i*128}")
    a(f"""v_lshlrev_b32 v9, 4, v3
v_add_u32 v9, {CW}, v9
s_mov_b32 s8, {LOG2E | SGN:#x}
s_barrier
s_waitcnt vmcnt(0)""")
    for i in range(8):
        a(f"""v_lshlrev_b32 v{24+i}, 16, v{16+i}
v_and_b32 v{32+i}, 0xffff0000, v{16+i}
v_mul_f32 v{24+i}, s8, v{24+i}
v_mul_f32 v{32+i}, s8, v{32+i}""")
    for j in range(8):
        a(f"v_cvt_pk_bf16_f32 v{16+j}, v{24+2*j}, v{25+2*j}")
    a("ds_write_b128 v9, v[16:19]\nds_write_b128 v9, v[20:23] offset:1024")

    lane, tmp = vF, vF + 3
    a(f"""
L_join:
s_waitcnt lgkmcnt(0)
s_barrier
v_and_b32 v{lane}, 63, v0
v_lshlrev_b32 v{vF+1}, 4, v{lane}
v_add_u32 v{vF+1}, {CW}, v{vF+1}
v_mov_b32 v{vF+2}, {EPOCH}
ds_read_b64 v[44:45], v{vF+2}
""")
    for q in range(4):
        a(f"ds_read_b128 v[{vW+4*q}:{vW+4*q+3}], v{vF+1} offset:{q*1024}")
    a(f"""
s_and_b32 s{sB}, s2, 7
s_lshl_b32 s{sB}, s{sB}, 5
s_lshr_b32 s3, s2, 3
s_add_u32 s{sB}, s{sB}, s3
s_mul_i32 s{sN0}, s{sB}, 625
s_add_u32 s{sNN}, s{sN0}, {625+15}
s_add_u32 s{sN0}, s{sN0}, 15
s_lshr_b32 s{sN0}, s{sN0}, 4
s_lshr_b32 s{sNN}, s{sNN}, 4
s_mov_b32 s{sK}, 0
s_mov_b32 s{sQ}, 0
s_mov_b32 s{sSPLIT}, 0
s_mov_b32 s{sFIRST}, 1
s_mov_b32 s{sMP}, {MP}
s_mov_b32 s{sEMASK}, {o.get('emask', 0x01ffffff):#x}
v_and_b32 v{tmp}, 31, v{lane}
v_lshlrev_b32 v{vXL}, 4, v{tmp}
v_lshlrev_b32 v{vAL}, 3, v{lane}
v_add_u32 v{vAL}, {ACC}, v{vAL}
v_lshrrev_b32 v{vEH}, 5, v{lane}
v_mul_u32_u24 v{vCX}, {NP*4}, v{vEH}
v_and_b32 v{tmp}, 15, v{lane}
v_lshl_add_u32 v{vCX}, v{tmp}, 2, v{vCX}
v_mul_u32_u24 v{vCY}, {NP}, v{vEH}
v_lshlrev_b32 v{vEH}, 4, v{vEH}
v_lshl_add_u32 v{vRL}, v{vXL}, 1, v{vEH}
v_add_u32 v{vRL}, {RING}, v{vRL}
v_bfe_u32 v{vCE}, v{lane}, 2, 1
v_mul_u32_u24 v{vCE}, {NP}, v{vCE}
v_bfe_u32 v{tmp}, v{lane}, 3, 2
v_lshl_add_u32 v{vCE}, v{tmp}, 2, v{vCE}
v_and_b32 v{tmp}, 3, v{lane}
v_add_lshl_u32 v{vCE}, v{vCE}, v{tmp}, 2
v_and_b32 v{tmp}, 1, v{lane}
v_lshl_add_u32 v{vCY}, v{tmp}, 3, v{vCY}
v_bfe_u32 v{tmp}, v{lane}, 2, 3
v_add_lshl_u32 v{vCY}, v{vCY}, v{tmp}, 3
s_waitcnt lgkmcnt(0)
v_readfirstlane_b32 s{sTAGH}, v44
v_readfirstlane_b32 s{sTAGL}, v45
v_lshl_or_b32 v42, v45, 24, v42
v_lshl_or_b32 v40, v45, 24, v40
v_mov_b32 v41, v44
v_mov_b32 v43, v44
L_round:
""")
    lds_fill(H2, 1024 + 128, 0, 0, T, vF)
    lds_fill(YY, NP * 16, None, 0, T, vF)
    lds_fill(XO, NP * 8, PAD_X, 0, T, vF)
    lds_fill(EW, NP * 8, PAD_E, 0, T, vF)
    a(f"""
v_lshrrev_b32 v{vF+6}, 4, v0
v_and_b32 v{vF+7}, 3, v0
v_lshl_add_u32 v{vF+8}, v{vF+7}, 6, v{vF+6}
s_lshl_b32 s3, s{sB}, 3
v_lshl_add_u32 v{vTB+2}, v{vF+8}, 11, s3
v_and_b32 v{vF+7}, s{sSPLIT}, v{vF+7}
v_cmp_eq_u32 s[{sSEL}:{sSEL+1}], s{sQ}, v{vF+7}
s_mov_b32 s{sPM}, 0x000f000f
s_mov_b32 s{sPM+1}, 0x000f000f
v_mov_b32 v{vONE}, 1
v_mov_b32 v{vH2}, {H2}
v_and_b32 v{vJ}, 15, v0
s_lshl_b32 s{sLIM}, s{sK}, 5
v_add_u32 v{vJ}, s{sLIM}, v{vJ}
s_add_u32 s{sLIM}, s{sLIM}, 32
v_add_u32 v{vJ16}, 16, v{vJ}
v_mul_u32_u24 v{vWC}, {CH}, v{vF+6}
v_mul_u32_u24 v{vTB+4}, {CS}, v{vF+6}
v_mad_u32_u24 v{vTB+4}, v{vJ}, {REC}, v{vTB+4}
""")
    for g in range(1, NG):
        a(f"v_add_u32 v{vWC+g}, {g*64*CH}, v{vWC}\nv_add_u32 v{vTB+4+g}, {g*64*CS}, v{vTB+4}")
    per = -(-(N_NODES * 4 * o["pfj"] // 32) // NB)
    a(f"""
s_mov_b32 s{sCNT}, 0
s_mov_b32 s{sPEND}, 15
s_mov_b32 s{sISS}, 0
s_lshl_b32 s7, s2, 11
s_mul_i32 s3, s2, {per}
v_subrev_u32 v{vF+8}, 128, v0
v_min_u32 v{vF+8}, {max(per-1, 0)}, v{vF+8}
v_add_lshl_u32 v{vF+8}, v{vF+8}, s3, 7
s_waitcnt vmcnt(0) lgkmcnt(0)
s_barrier
""")
    stamp("join")
    a(f"""
s_cmp_eq_u32 s{sFIRST}, 0
s_cbranch_scc1 L_nofirst
s_mov_b32 s{sFIRST}, 0
s_cmp_ge_u32 s{sWAVE}, 2
s_cbranch_scc1 L_notab
buffer_store_dwordx4 v[40:43], v46, s[{S_TAB}:{S_TAB+3}], s7 offen sc1
L_notab:
""")
    npf = -(-per // 64)
    def touches():
        a(f"""s_sub_u32 s{sT0}, s{sWAVE}, 2
s_cmp_ge_u32 s{sT0}, {npf}
s_cbranch_scc1 L_nopf
buffer_load_dword v{vPF}, v{vF+8}, s[{S_X}:{S_X+3}], 0 offen
L_nopf:""")
        if o.get("tlb"):
            a(f"""v_and_b32 v{vF+8}, 63, v0
v_lshlrev_b32 v{vF+8}, 20, v{vF+8}
s_cmp_lg_u32 s{sWAVE}, {2 + npf}
s_cbranch_scc1 L_notlb0
buffer_load_dword v{vPF}, v{vF+8}, s[{S_EF}:{S_EF+3}], 0 offen
L_notlb0:
s_cmp_lg_u32 s{sWAVE}, {3 + npf}
s_cbranch_scc1 L_notlb1
buffer_load_dword v{vPF}, v{vF+8}, s[{S_X}:{S_X+3}], 0 offen
L_notlb1:""")
    if not o.get("late"):
        touches()
    lds_fill(ACC + ACC_EARLY, 40 * ACC_NODE - ACC_EARLY, 0, 0, T, vF)
    if o.get("late"):
        touches()
    a("s_waitcnt lgkmcnt(0)\ns_barrier")
    poll = f"""
s_mov_b64 exec, s[{sPM}:{sPM+1}]
buffer_load_dwordx2 v[{vTB}:{vTB+1}], v{vTB+2}, s[{S_TAB}:{S_TAB+3}], 0 offen sc1
s_mov_b64 exec, -1
"""
    a("L_nofirst:")
    a(poll)
    stamp("poll0")
    a(f"""
L_poll:
s_mov_b32 s{sNEW}, 0
s_cmp_eq_u32 s{sPEND}, 0
s_waitcnt vmcnt(0)
s_cbranch_scc1 L_ranks
""")
    stamp("last")
    a(f"""
v_lshrrev_b32 v{vF}, 24, v{vTB}
v_cmp_ne_u32 s[{sT0}:{sT1}], s{sTAGH}, v{vTB+1}
v_cmp_ne_u32 vcc, s{sTAGL}, v{vF}
v_bfe_u32 v{vF+3}, v{vTB}, 12, 12
v_and_b32 v{vF+4}, 0xfff, v{vTB}
v_cndmask_b32 v{vF+3}, 0, v{vF+3}, s[{sSEL}:{sSEL+1}]
v_mul_u32_u24 v{vF+4}, {REC}, v{vF+4}
s_or_b64 vcc, vcc, s[{sT0}:{sT1}]
s_and_b64 s[{sPM}:{sPM+1}], s[{sPM}:{sPM+1}], vcc
s_or_b32 s{sT0}, s{sPM}, s{sPM+1}
s_lshr_b32 s{sT1}, s{sT0}, 16
s_or_b32 s{sT0}, s{sT0}, s{sT1}
s_andn2_b32 s{sNEW}, s{sPEND}, s{sT0}
s_and_b32 s{sPEND}, s{sPEND}, s{sT0}
""")
    for g in range(NG):
        m0, m1 = sMASK + 4 * g, sMASK + 4 * g + 2
        a(f"""s_bitcmp0_b32 s{sNEW}, {g}
s_cbranch_scc1 L_is{g}
v_mov_b32_dpp v{vF}, v{vF+3} row_newbcast:{g} row_mask:0xf bank_mask:0xf
v_add_u32_dpp v{vTB+4+g}, v{vF+4}, v{vTB+4+g} row_newbcast:{g} row_mask:0xf bank_mask:0xf
v_cmp_lt_u32 s[{m0}:{m0+1}], v{vJ}, v{vF}
v_cmp_lt_u32 s[{m1}:{m1+1}], v{vJ16}, v{vF}
s_mov_b64 exec, s[{m0}:{m0+1}]
s_cbranch_execz L_it{g}
buffer_load_dwordx3 v[{vEN+8*g}:{vEN+8*g+2}], v{vTB+4+g}, s[{S_ENT}:{S_ENT+3}], 0 offen sc1
s_mov_b64 exec, s[{m1}:{m1+1}]
s_cbranch_execz L_it{g}
buffer_load_dwordx3 v[{vEN+8*g+4}:{vEN+8*g+6}], v{vTB+4+g}, s[{S_ENT}:{S_ENT+3}], 0 offen offset:{16*REC} sc1
L_it{g}:
s_mov_b64 exec, -1
L_is{g}:""")
    stamp("ready")
    a(f"s_cmp_eq_u32 s{sPEND}, 0\ns_cbranch_scc1 L_ranks")
    bound(SPIN)
    a(poll)
    a("L_ranks:")
    def for_parts(body, tag, groups=range(NG)):
        for g in groups:
            for p in range(2):
                i = 2 * g + p
                a(f"s_mov_b64 exec, s[{sMASK+2*i}:{sMASK+2*i+1}]")
                if p:
                    a(f"s_cbranch_execz L_{tag}{g}")
                body(g, i, vEN + 4 * i)
                if p:
                    a(f"L_{tag}{g}:")
        a("s_mov_b64 exec, -1")
    def rank_body(g, i, e):
        a(f"""v_bfe_u32 v{vF+1}, v{e+2}, 14, 6
v_and_b32 v{vF}, 0x3fff, v{e+2}
v_mul_u32_u24 v{vF+2}, s{sMP}, v{vF}
v_lshrrev_b32 v{vF+2}, {SP}, v{vF+2}
{f"v_min_u32 v{vF+2}, {NPH-1}, v{vF+2}" if PB * NPH < N_NODES else ""}
v_mad_u32_u24 v{vF+2}, v{vF+2}, 40, v{vF+1}
v_lshl_add_u32 v{vKY+i}, v{vF+2}, 2, v{vH2}
ds_add_rtn_u32 v{vRK+i}, v{vKY+i}, v{vONE}
v_lshrrev_b32 v{e+3}, 20, v{e+2}
v_add_lshl_u32 v{vF+5}, v{e+3}, v{vWC+g}, 5
v_lshl_or_b32 v{e+3}, v{vF+1}, 25, v{vF+5}""")
        if o.get("xmask"):
            a(f"v_and_b32 v{vF}, {o['xmask']:#x}, v{vF}")
        if o.get("eftr"):
            a(f"v_cmp_gt_u32 vcc, {o['eftr']}, v{vF+2}")
        a(f"v_lshlrev_b32 v{e+2}, 9, v{vF}")
        if o.get("eftr"):
            a(f"""s_and_b64 exec, exec, vcc
s_cbranch_execz L_eftr{i}
buffer_load_dword v{vPF}, v{vF+5}, s[{S_EF}:{S_EF+3}], 0 offen
L_eftr{i}:""")
    for g in range(NG):
        a(f"s_bitcmp0_b32 s{sISS}, {g}\ns_cbranch_scc1 L_rs{g}")
        for_parts(rank_body, "rk", [g])
        a(f"L_rs{g}:")
    a(f"""
s_mov_b32 s{sISS}, s{sNEW}
s_or_b32 s{sT0}, s{sPEND}, s{sISS}
s_cbranch_scc1 L_poll
v_bfe_u32 v{vF+3}, v{vTB}, 12, 12
v_cmp_lt_u32 vcc, s{sLIM}, v{vF+3}
s_or_b32 s{sT0}, vcc_lo, vcc_hi
s_and_b32 s{sT0}, s{sT0}, 0x000f000f
s_cbranch_scc0 L_nomore
v_mov_b32 v{vF}, {MISC+8}
ds_write_b32 v{vF}, v{vONE}
L_nomore:
s_movk_i32 s{sT0}, {NP*4 - 2}
s_brev_b32 s{sT1}, 1
s_waitcnt lgkmcnt(0)
""")
    stamp("rank")
    a("s_barrier")
    stamp("F2")
    a(f"""
s_cmp_lg_u32 s{sWAVE}, 0
s_cbranch_scc1 L_noscan
{"s_setprio 3" if o.get("fs") else ""}
v_lshl_add_u32 v{vF+9}, v0, 4, v{vH2}
ds_read_b128 v[{vF}:{vF+3}], v{vF+9}
s_waitcnt lgkmcnt(0)
""")
    for j in range(4):
        a(f"v_add_lshl_u32 v{vF+j}, v{vF+j}, 1, 1\nv_and_b32 v{vF+j}, -4, v{vF+j}")
    scan4(vF, vF + 4)
    a(f"ds_write_b128 v{vF+9}, v[{vF+4}:{vF+7}]")
    if o.get("fs") == 2:
        a("s_waitcnt lgkmcnt(0)\ns_barrier")
    a("L_noscan:")
    def pre_body(g, i, e):
        a(f"""v_add_u32 v{vF+10}, -1, v{vRK+i}
v_and_or_b32 v{e+3}, v{vF+10}, s{sT1}, v{e+3}
v_and_b32 v{vF+10}, 1, v{vRK+i}
v_lshlrev_b32 v{vRK+i}, 1, v{vRK+i}
v_mad_u32_u24 v{vRK+i}, v{vF+10}, s{sT0}, v{vRK+i}""")
        lo = o.get("eftr", 0)
        if o["eft"] <= lo:
            return
        if lo:
            a(f"v_subrev_u32 v{vF+11}, {H2 + 4*lo}, v{vKY+i}\nv_cmp_gt_u32 vcc, {4 * (o['eft'] - lo)}, v{vF+11}")
        else:
            a(f"v_cmp_gt_u32 vcc, {H2 + 4 * o['eft']}, v{vKY+i}")
        a(f"""
v_and_b32 v{vF+10}, s{sEMASK}, v{e+3}
s_and_b64 exec, exec, vcc
s_cbranch_execz L_eft{i}
buffer_load_dword v{vPF}, v{vF+10}, s[{S_EF}:{S_EF+3}], 0 offen
L_eft{i}:""")
    for_parts(pre_body, "pr")
    if o.get("fs") == 2:
        a(f"s_cmp_eq_u32 s{sWAVE}, 0\ns_cbranch_scc1 L_scanned\ns_barrier\nL_scanned:")
    else:
        a("s_waitcnt lgkmcnt(0)\ns_barrier")
    stamp("F3")
    a(f"ds_read_b32 v{vF+1}, v{vH2} offset:1020\nds_read_b32 v{vF+2}, v{vH2} offset:1032")
    for_parts(lambda g, i, e: a(f"ds_read_b32 v{vKY+i}, v{vKY+i}"), "st")
    a(f"""
s_waitcnt lgkmcnt(0)
v_readfirstlane_b32 s{sNBLK}, v{vF+1}
v_readfirstlane_b32 s{sMORE}, v{vF+2}
s_cmp_le_u32 s{sNBLK}, {CAP*2}
s_cbranch_scc1 L_fits
s_mov_b32 s{sSPLIT}, 3
s_barrier
s_branch L_round
L_fits:
""")
    if o.get("dly"):
        a(f"s_sleep {o['dly']}")
    def scat_body(g, i, e):
        a(f"""v_add_u32 v{vF}, v{vKY+i}, v{vRK+i}
v_lshlrev_b32 v{vF+3}, 1, v{vF}
ds_write_b32 v{vF}, v{e+2} offset:{XO}
ds_write_b32 v{vF}, v{e+3} offset:{EW}
ds_write_b64 v{vF+3}, v[{e}:{e+1}] offset:{YY}""")
    for_parts(scat_body, "sc")
    a(f"""
v_mov_b32 v{vF+2}, {PAD_E | 0x80000000:#x}
s_add_u32 s{sNBLK}, s{sNBLK}, 63
s_lshr_b32 s{sNBLK}, s{sNBLK}, 6
ds_write_b32 v{vF+1}, v{vF+2} offset:{EW}
s_waitcnt lgkmcnt(0)
s_barrier
""")
    stamp("sort")
    if STAMPS:
        a("s_memtime s[96:97]\ns_waitcnt lgkmcnt(0)")
    main_start = len(a.L)

    def rho(step):
        return 8 * (step // 4) + step % 4
    def block_reads(sreg):
        a(f"""s_lshl_b32 s{sT0}, s{sreg}, 6
s_lshl_b32 s{sT1}, s{sreg}, 7
v_add_u32 v{vEWN}, s{sT0}, v{vCE}
v_add_u32 v{vXN}, s{sT0}, v{vCX}
v_add_u32 v{vY}, s{sT1}, v{vCY}
ds_read_b32 v{vEWN}, v{vEWN} offset:{EW}
ds_read_b32 v{vXN}, v{vXN} offset:{XO}
ds_read_b64 v[{vY}:{vY+1}], v{vY} offset:{YY}""")
    def x_load(step):
        src = vXN if step >= 16 else vXC
        xa = vXA + (step & 1)
        d = vX + 4 * (step % D)
        return [f"v_add_u32_dpp v{xa}, v{src}, v{vXL} row_newbcast:{step % 16} row_mask:0xf bank_mask:0xf",
                f"buffer_load_dwordx4 v[{d}:{d+3}], v{xa}, s[{S_X}:{S_X+3}], 0 offen"]
    flags = f"v_cmp_gt_i32 s[{sFMN}:{sFMN+1}], 0, v{vEWN}"
    ring_read = f"ds_read_b32 v{vFV}, v{vFA}\nds_read_b128 v[{vEF}:{vEF+3}], v{vRA}"
    ring_test = f"""v_readfirstlane_b32 s{sT0}, v{vFV}
s_cmp_lg_u32 s{sT0}, s{sNXT}
s_cbranch_scc1 L_ring_wait"""
    KT = [vU, vU + 4, vU + 16, vU + 20]
    def k_mfma():
        return [f"v_mfma_f32_4x4x4_16b_bf16 v[{KT[i]}:{KT[i]+3}], v[{vY}:{vY+1}], v[{vCG+2*i}:{vCG+2*i+1}], 0" for i in range(4)]
    def k_cvt(j):
        return [f"v_cvt_pk_bf16_f32 v{vK+2*j}, v{KT[0]+j}, v{KT[1]+j}",
                f"v_cvt_pk_bf16_f32 v{vK+2*j+1}, v{KT[2]+j}, v{KT[3]+j}"]
    def u_mfma():
        return [f"v_mfma_f32_32x32x16_bf16 v[{vU+16*p}:{vU+16*p+15}], v[{vEF}:{vEF+3}], v[{vW+4*p}:{vW+4*p+3}], 0" for p in range(2)]
    def silu_ops(d):
        u = vU
        E = [f"v_exp_f32 v{vT+2*p+j}, {'' if NEG else '-'}v{u+16*p+2*d+j}" for p in range(2) for j in range(2)]
        A = [f"v_pk_add_f32 v[{vT+2*p}:{vT+2*p+1}], v[{vT+2*p}:{vT+2*p+1}], 1.0 op_sel_hi:[1,0]" for p in range(2)]
        R = [f"v_rcp_f32 v{vT+2*p+j}, v{vT+2*p+j}" for p in range(2) for j in range(2)]
        M = [f"v_pk_mul_f32 v[{u+16*p+2*d}:{u+16*p+2*d+1}], v[{u+16*p+2*d}:{u+16*p+2*d+1}], v[{vT+2*p}:{vT+2*p+1}]" for p in range(2)]
        return E, A, R, M
    def fma_ops(step, first=False):
        d, j = divmod(step, 2)
        out = []
        for p in range(2):
            rr = vU + 16 * p + 2 * d
            for hh in range(2):
                t = vTP + 4 * p + 2 * hh
                c = vACC + 4 * p + 2 * hh
                if first:
                    out.append(f"v_pk_mul_f32 v[{c}:{c+1}], v[{t}:{t+1}], v[{rr}:{rr+1}] op_sel:[0,{j}] op_sel_hi:[1,{j}]")
                else:
                    out.append(f"v_pk_fma_f32 v[{c}:{c+1}], v[{t}:{t+1}], v[{rr}:{rr+1}], v[{c}:{c+1}] op_sel:[0,{j},0] op_sel_hi:[1,{j},1]")
        return out
    def tp_ops(step):
        out = []
        for p in range(2):
            t, x, k = vTP + 4 * p, vX + 4 * (step % D) + 2 * p, vK + 2 * (step // 8)
            out.append(f"v_mfma_f32_4x4x4_16b_bf16 v[{t}:{t+3}], v[{k}:{k+1}], v[{x}:{x+1}], 0 cbsz:3 abid:{step%8}")
        return out
    def flush_body(step, packed):
        c = vACC
        a(f"v_readlane_b32 s{sT0}, v{vEWC}, {rho(step)}\ns_nop 0")
        for oo in range(4):
            a(f"v_permlane32_swap_b32 v{c+oo}, v{c+4+oo}")
            if oo == 0:
                a(f"s_bfe_u32 s{sT0}, s{sT0}, 0x60019\ns_mul_i32 s{sT0}, s{sT0}, {ACC_NODE}")
        a(f"v_add_u32 v{vQ}, s{sT0}, v{vAL}")
        for h in (0, 2):
            if packed:
                a(f"v_pk_add_f32 v[{c+h}:{c+h+1}], v[{c+h}:{c+h+1}], v[{c+4+h}:{c+5+h}]")
            else:
                a(f"v_add_f32 v{c+h}, v{c+h}, v{c+4+h}\nv_add_f32 v{c+h+1}, v{c+h+1}, v{c+5+h}")
            a(f"""v_cvt_f64_f32 v[{c+4+h}:{c+5+h}], v{c+h}
v_cvt_f64_f32 v[{c+h}:{c+h+1}], v{c+h+1}
ds_add_f64 v{vQ}, v[{c+4+h}:{c+5+h}] offset:{h*ACC_ROW}
ds_add_f64 v{vQ}, v[{c+h}:{c+h+1}] offset:{(h+1)*ACC_ROW}""")

    a(f"""
;; ---- blocks of 32 sorted edges: two edges per step, one per half wave, two channels per lane
s_mul_i32 s{sT0}, s{sNBLK}, {-(-65536 // NC)}
s_lshr_b32 s{sT0}, s{sT0}, 16
s_mul_i32 s{sT0}, s{sT0}, {NC}
s_sub_u32 s{sT0}, s{sNBLK}, s{sT0}
s_cmp_le_u32 s{sT0}, {o.get("xm", 0)}
s_cselect_b32 s{sT0}, s{sT0}, 0
s_min_u32 s{sNI}, s{sT0}, {NS}
s_add_u32 s{sNI}, s{sNI}, {NC}
s_add_u32 s{sQUO}, s{sT0}, {NC + NS - 1}
s_sub_u32 s{sQUO}, s{sQUO}, s{sWAVE}
s_mul_i32 s{sQUO}, s{sQUO}, {-(-65536 // NS)}
s_lshr_b32 s{sQUO}, s{sQUO}, 16
s_cmp_lt_u32 s{sWAVE}, {NC}
s_cselect_b32 s{sQUO}, 0x7fff, s{sQUO}
s_mov_b32 s{sEND}, s{sNBLK}
s_min_u32 s{sT0}, s{sWAVE}, s{sNI}
s_cmp_ge_u32 s{sT0}, s{sNBLK}
s_cbranch_scc1 L_done
s_cmp_ge_u32 s{sWAVE}, s{sNI}
s_cbranch_scc1 L_loader
s_setprio 3
""")
    block_reads(sWAVE)
    a(f"""v_mov_b32 v{vMI}, {MISC}
v_mov_b32 v{vC1}, 1
v_mov_b32 v{vC0}, 0
s_waitcnt lgkmcnt(0)
v_and_or_b32 v{vEF}, v{vEWN}, s{sEMASK}, v{vEH}
{flags}
buffer_load_dwordx4 v[{vEF}:{vEF+3}], v{vEF}, s[{S_EF}:{S_EF+3}], 0 offen""")
    for s in range(D):
        emit(x_load(16 + s))
    emit(k_mfma())
    a("s_nop 4")
    emit(k_cvt(0) + k_cvt(1))
    a(f"s_waitcnt vmcnt({D})")
    emit(u_mfma())
    a("s_nop 7\ns_branch L_enter")

    G0, G1, E0, K0, R0, R1 = 4, 6, 8, 9, 13, 15
    PLV = o["plv"]
    TPR = {4: {}, 3: {G1: 0}, 2: {G1: 1, 11: 0}, 1: {G1: 2, 9: 1, 12: 0}}[PLV]
    def body(tail):
        tag = "t" if tail else ""
        for s in range(G1 if tail else 0, 16):
            d, j = divmod(s, 2)
            M = tp_ops(s)
            TR, PK = [], []
            if d < 7:
                E, A, R, U = silu_ops(d + 1)
                TR, PK = (R, U) if j else (E, A)
            if tail and o.get("lighttail"):
                TR, PK = (["s_nop 0"] * 4 if TR else []), []
            if tail and s in TPR:
                a(f"s_setprio {TPR[s]}")
            if not (tail and s == G1):
                a(f"s_waitcnt vmcnt({min(D - 1, 15 - s) if tail else D - 1})")
                a(M[0])
                emit(TR[:1])
                a(M[1])
                early = o.get("xe") and s != G1 and not (tail and s >= 16 - D)
                if early:
                    emit(x_load(s + D))
                if s in (K0, K0 + 1) and not tail:
                    KM = k_mfma()[2 * (s - K0):2 * (s - K0) + 2]
                    a(TR[1]); a(KM[0]); a(TR[2]); a(KM[1]); a(TR[3])
                else:
                    emit(TR[1:])
                if not tail:
                    if s == 15:
                        emit(k_cvt(1))
                    if s == K0 + 3:
                        emit(k_cvt(0))
                    if s in (G1, E0, R1):
                        a("s_waitcnt lgkmcnt(0)")
                    if s == G1:
                        a(f"""v_readfirstlane_b32 s{sNXT}, v{vEWN}
s_add_u32 s{sNXT}, s{sNXT}, s{sNI}
s_cmp_ge_u32 s{sNXT}, s{sEND}
s_cbranch_scc1 L_tail""")
                        block_reads(sNXT)
                    if s == E0:
                        a(flags)
                    if s == R0:
                        a(f"""s_and_b32 s{sT0}, s{sNXT}, 15
s_lshl_b32 s{sT1}, s{sT0}, 10
s_lshl_b32 s{sT0}, s{sT0}, 2
s_add_u32 s{sT0}, s{sT0}, {FLG}
v_add_u32 v{vRA}, s{sT1}, v{vRL}
v_mov_b32 v{vFA}, s{sT0}
{ring_read}""")
                    if s == R1:
                        a(f"{ring_test}\nL_ring_ok:\nds_write_b32 v{vFA}, v{vC0}")
            if not (tail and s >= 16 - D) and not (o.get("xe") and s != G1):
                emit(x_load(s + D))
            if s == G0:
                a(f"""s_mov_b64 exec, 1
ds_add_rtn_u32 v{vEWN}, v{vMI}, v{vC1}
s_mov_b64 exec, -1""")
            if s == 0:
                emit(fma_ops(0, True))
            else:
                if s >= 14:
                    a("s_nop 1" if tail else "s_nop 0" if s == 14 else "")
                a(f"s_bitcmp1_b32 s{sFM}, {rho(s)}\ns_cbranch_scc1 L_fl{tag}{s}")
                emit(fma_ops(s))
                a(f"L_fr{tag}{s}:")
            emit(PK)
    def stubs(tail):
        tag = "t" if tail else ""
        for s in range(G1 if tail else 1, 16):
            a(f"L_fl{tag}{s}:")
            flush_body(s - 1, True)
            emit(fma_ops(s, True))
            a(f"s_branch L_fr{tag}{s}")
    if o.get("al") is not None:
        a(".p2align 6")
        for _ in range(o["al"]):
            a("s_nop 0")
    a("L_block:")
    body(False)
    emit(u_mfma())
    flush_body(15, False)
    if PLV > 1:
        a(f"s_mul_i32 s{sT0}, s{sNXT}, {PLV}")
        for lvl in range(2, 3 - PLV, -1):
            a(f"s_sub_u32 s{sT0}, s{sT0}, s{sNBLK}\ns_cbranch_scc1 L_enter\ns_setprio {lvl}")
    a(f"""L_enter:
v_mov_b32 v{vEWC}, v{vEWN}
v_mov_b32 v{vXC}, v{vXN}
s_mov_b32 s{sFM}, s{sFMN}
s_sub_u32 s{sQUO}, s{sQUO}, 1
s_cmp_lg_u32 s{sQUO}, 0
s_cbranch_scc1 L_more
v_mov_b32 v{vC1}, 0
s_mov_b32 s{sEND}, 0
L_more:""")
    E, A, R, U = silu_ops(0)
    emit(E)
    a("s_nop 0")
    emit(A + R)
    a("s_nop 0")
    emit(U)
    a("s_branch L_block\nL_ring_wait:")
    bound(SPIN * 8)
    a(f"s_sleep 1\n{ring_read}\ns_waitcnt lgkmcnt(0)\n{ring_test}\ns_branch L_ring_ok")

    vLA, lCE, lEH = vU, vX, vX + 1
    NL = o.get('nl', 1)
    sNB, sREM = sNXT, sFM
    a(f"""
L_loader:
s_cmp_lt_u32 s{sWAVE}, {NW-NL}
s_cbranch_scc1 L_done
s_setprio 3
s_lshr_b32 s{sT0}, s2, 3
s_mul_i32 s{sT0}, s{sT0}, {RB}
s_lshr_b32 s{sT0}, s{sT0}, 5
s_mul_i32 s{sNB}, s{sWAVE}, {RB}
s_sub_u32 s{sNB}, s{sNB}, s{sT0}
s_sub_u32 s{sNB}, s{sNB}, {(NW-NL)*RB}
s_add_u32 s{sNB}, s{sNB}, s{sNI}
s_cmp_ge_u32 s{sNB}, s{sNBLK}
s_cbranch_scc1 L_done
s_sub_u32 s{sREM}, s{sNBLK}, s{sNI}
s_mov_b32 s{sFMN+1}, 0
v_and_b32 v{vQ}, 63, v0
v_bfe_u32 v{lCE}, v{vQ}, 3, 1
v_mul_u32_u24 v{lCE}, {NP}, v{lCE}
v_bfe_u32 v{lEH}, v{vQ}, 4, 2
v_lshl_add_u32 v{lCE}, v{lEH}, 2, v{lCE}
v_bfe_u32 v{lEH}, v{vQ}, 1, 2
v_add_lshl_u32 v{lCE}, v{lCE}, v{lEH}, 2
v_and_b32 v{lEH}, 1, v{vQ}
v_lshlrev_b32 v{lEH}, 4, v{lEH}
v_mov_b32 v{vY}, {MISC}
L_ld_batch:
s_lshl_b32 s{sT0}, s{sNB}, 6
v_add_u32 v{vTM}, s{sT0}, v{lCE}
""")
    for i in range(RB):
        a(f"ds_read_b32 v{vLA+i}, v{vTM} offset:{EW + 64*i}")
    a(f"""v_add_u32 v{vFV}, s{sNB}, v{vQ}
v_and_b32 v{vFA}, 15, v{vFV}
v_lshlrev_b32 v{vFA}, 2, v{vFA}
v_add_u32 v{vFA}, {FLG}, v{vFA}
v_subrev_u32 v{vRA}, s{sNI}, v{vFV}
v_cmp_gt_u32 vcc, s{sREM}, v{vRA}
s_and_b32 s{sFMN}, vcc_lo, {(1 << RB) - 1}
s_waitcnt lgkmcnt(0)""")
    for i in range(RB):
        a(f"v_and_or_b32 v{vLA+i}, v{vLA+i}, s{sEMASK}, v{lEH}")
    a(f"""L_ld_wait:
ds_read_b32 v{vRA}, v{vFA}
ds_read_b32 v{vTM+1}, v{vY}
s_waitcnt lgkmcnt(0)
v_cmp_ne_u32 vcc, 0, v{vRA}
v_readfirstlane_b32 s{sT1}, v{vTM+1}
s_add_u32 s{sT1}, s{sT1}, s{sNI}
s_sub_u32 s{sT1}, s{sT1}, {-o["lead"]}
s_cmp_lt_u32 s{sT1}, s{sNB}
s_cselect_b32 s{sT1}, -1, 0
s_or_b32 s{sT1}, s{sT1}, vcc_lo
s_and_b32 s{sT0}, s{sT1}, s{sFMN}
s_cbranch_scc0 L_ld_go""")
    bound(SPIN * 8)
    a("s_sleep 2\ns_branch L_ld_wait\nL_ld_go:")
    for i in range(RB):
        a(f"""s_bitcmp0_b32 s{sFMN}, {i}
s_cbranch_scc1 L_ld_skip{i}
s_add_u32 s{sT0}, s{sNB}, {i}
s_and_b32 s{sT0}, s{sT0}, 15
s_lshl_b32 s{sT0}, s{sT0}, 10
s_add_u32 m0, s{sT0}, {RING}
s_nop 0
buffer_load_dwordx4 v{vLA+i}, s[{S_EF}:{S_EF+3}], 0 offen lds
L_ld_skip{i}:""")
    if o.get("prog"):
        a(f"s_cmp_lg_u32 s{sFMN}, {(1 << RB) - 1}\ns_cbranch_scc1 L_ld_all")
        for i in range(RB - 1):
            a(f"s_mov_b64 exec, {1 << i}\ns_waitcnt vmcnt({RB-1-i})\nds_write_b32 v{vFA}, v{vFV}")
        a(f"s_mov_b32 s{sFMN}, {1 << (RB-1)}\nL_ld_all:")
    a(f"""s_waitcnt vmcnt(0)
s_mov_b64 exec, s[{sFMN}:{sFMN+1}]
ds_write_b32 v{vFA}, v{vFV}
s_mov_b64 exec, -1
s_add_u32 s{sNB}, s{sNB}, {RB*NL}
s_cmp_lt_u32 s{sNB}, s{sNBLK}
s_cbranch_scc1 L_ld_batch
s_branch L_done
;; ---- node changes: add the running sums to the node's LDS accumulator and restart them""")
    stubs(False)
    stubs(True)
    a(";; ---- a wave's last block\nL_tail:")
    body(True)
    flush_body(15, True)
    if o.get("drop"):
        pat = re.compile(o["drop"].replace(" ", "|"))
        a.L[main_start:] = [l for l in a.L[main_start:] if not pat.search(l)]

    vB = base
    vEA = vB + 32
    vPA = vEA + 32
    vD = vPA + 8
    assert vD + 16 <= vPF
    a(f"""
L_done:
s_setprio 0
s_waitcnt vmcnt(0) lgkmcnt(0)
s_cmp_eq_u32 s{sQ}, s{sSPLIT}
s_cbranch_scc1 L_lastq
s_add_u32 s{sQ}, s{sQ}, 1
s_barrier
s_branch L_round
L_lastq:
s_cmp_eq_u32 s{sMORE}, 0
s_cbranch_scc1 L_epi
s_add_u32 s{sK}, s{sK}, 1
s_mov_b32 s{sQ}, 0
s_mov_b32 s{sSPLIT}, 0
s_barrier
s_branch L_round
L_epi:
v_and_b32 v4, 63, v0
v_lshrrev_b32 v2, 5, v4
v_bfe_u32 v3, v4, 2, 2
v_lshl_add_u32 v2, v2, 4, v3
v_bfe_u32 v6, v4, 4, 1
v_lshl_add_u32 v2, v2, 1, v6
v_mul_u32_u24 v2, {MIXROW}, v2
v_and_b32 v3, 3, v4
v_lshl_add_u32 v2, v3, 3, v2
v_add_u32 v2, {CMIX}, v2
""")
    for t in range(4):
        for ks in range(2):
            for q in range(2):
                d = vB + 8 * t + 4 * ks + 2 * q
                a(f"ds_read_b64_tr_b16 v[{d}:{d+1}], v2 offset:{(16*ks + 8*q)*MIXROW + (t&1)*64 + (t>>1)*32}")
    a(f"""
v_and_b32 v5, 15, v4
v_mul_u32_u24 v2, {ACC_ROW}, v5
v_lshl_add_u32 v2, v6, 8, v2
v_lshrrev_b32 v3, 5, v4
v_lshl_add_u32 v2, v3, 7, v2
s_mul_i32 s{sT0}, s{sWAVE}, {4*ACC_NODE}
s_add_u32 s{sT0}, s{sT0}, {ACC}
v_add_u32 v2, s{sT0}, v2
s_lshl_b32 s{sT0}, s{sWAVE}, 2
s_add_u32 s{sT0}, s{sT0}, s{sN0}
v_lshrrev_b32 v3, 4, v4
v_add_u32 v3, s{sT0}, v3
v_cmp_gt_u32 vcc, s{sNN}, v3
v_lshlrev_b32 v3, 9, v3
v_lshl_add_u32 v3, v5, 4, v3
s_mov_b32 s{sT0}, {LN2 | SGN:#x}
s_mov_b32 s{sT1}, {LN2 | SGN:#x}
s_barrier
""")
    stamp("main")
    if STAMPS:
        a("s_memtime s[98:99]\ns_waitcnt lgkmcnt(0)")
    a(f"s_cmp_ge_u32 s{sWAVE}, 10\ns_cbranch_scc1 L_end")
    for j in range(8):
        a(f"ds_read_b128 v[{vEA+4*j}:{vEA+4*j+3}], v2 offset:{j*16}")
    for j in range(8):
        a(f"""s_waitcnt lgkmcnt({7-j})
v_cvt_f32_f64 v{vEA+4*j}, v[{vEA+4*j}:{vEA+4*j+1}]
v_cvt_f32_f64 v{vEA+4*j+1}, v[{vEA+4*j+2}:{vEA+4*j+3}]
v_pk_mul_f32 v[{vEA+4*j}:{vEA+4*j+1}], v[{vEA+4*j}:{vEA+4*j+1}], s[{sT0}:{sT1}]
v_cvt_pk_bf16_f32 v{vPA+j}, v{vEA+4*j}, v{vEA+4*j+1}""")
    a("s_nop 1")
    for ks in range(2):
        for t in range(4):
            c = "0" if ks == 0 else f"v[{vD+4*t}:{vD+4*t+3}]"
            a(f"v_mfma_f32_16x16x32_bf16 v[{vD+4*t}:{vD+4*t+3}], v[{vPA+4*ks}:{vPA+4*ks+3}], v[{vB+8*t+4*ks}:{vB+8*t+4*ks+3}], {c}")
    a("s_nop 4")
    for j in range(8):
        a(f"v_cvt_pk_bf16_f32 v{vEA+j}, v{vD+2*j}, v{vD+2*j+1}")
    a(f"""
s_and_b64 exec, exec, vcc
s_cbranch_execz L_end
buffer_store_dwordx4 v[{vEA}:{vEA+3}], v3, s[{S_OUT}:{S_OUT+3}], 0 offen sc1
buffer_store_dwordx4 v[{vEA+4}:{vEA+7}], v3, s[{S_OUT}:{S_OUT+3}], 0 offen offset:256 sc1
""")
    if STAMPS:
        a("s_waitcnt vmcnt(0)")
        stamp("end", True)
        srd(56, 10, 0x20000, WS_STAMP)
        a(f"s_mov_b64 exec, -1\nv_cmp_eq_u32 vcc, {64 * o.get('stw', 0)}, v0\ns_and_b64 exec, exec, vcc\ns_cbranch_execz L_end")
        a("s_lshl_b32 s3, s2, 7\nv_mov_b32 v4, s3")
        for i in range(12):
            a(f"v_mov_b32 v2, s{76+2*i}\nv_mov_b32 v3, s{77+2*i}\nbuffer_store_dwordx2 v[2:3], v4, s[56:59], 0 offen offset:{8*i}")
    a("L_end:\ns_endpgm")

    out = open("cdna_kernels/" + NAME + ".s.ref").read().split("; Override launch")[0]
    out += f"; @launch grid=({NB},1,1) block=({T},1,1) lds={LDS}\n"
    out += '.amdgcn_target "amdgcn-amd-amdhsa--gfx950"\n.text\n'
    out += f".globl {K}\n.p2align 8\n.type {K},@function\n{a.text()}"
    out += f""".section .rodata,"a"
.p2align 6
.amdhsa_kernel {K}
  .amdhsa_next_free_vgpr {n_vgpr}
  .amdhsa_next_free_sgpr {n_sgpr}
  .amdhsa_accum_offset {(n_vgpr + 3) // 4 * 4}
  .amdhsa_group_segment_fixed_size 0
  .amdhsa_kernarg_size 88
  .amdhsa_user_sgpr_count 2
  .amdhsa_user_sgpr_kernarg_segment_ptr 1
  .amdhsa_system_sgpr_workgroup_id_x 1
  .amdhsa_float_denorm_mode_32 3
.end_amdhsa_kernel
"""
    return out, dict(vgpr=n_vgpr, sgpr=n_sgpr, lds=LDS)

if __name__ == "__main__":
    o = {}
    path = "cdna_kernels/" + NAME + ".s"
    for arg in sys.argv[1:]:
        k, v = arg.split("=", 1)
        if k == "out":
            path = v
        else:
            o[k] = int(v) if v.lstrip("-").isdigit() else v.replace("+", " ")
    txt, info = gen(o)
    open(path, "w").write(txt)
    print(path, info)
```

```python
import gen, gen3, leak, sys
name, mark = sys.argv[1:3]
o = {"stamps": 1, "marks": "start B1 B4 join rank F2 F3 sort main end"}
for arg in sys.argv[3:]:
    k, v = arg.split("=", 1)
    o[k] = int(v) if v.lstrip("-").isdigit() else v.replace("+", " ")
base, _ = gen3.gen(o)
K = gen3.NAME + "_kernel"
base = base.replace("; @launch grid", f"; @launch kernel={K} grid")
body = leak.leak_kernel(0, o["marks"].split().index(mark), 256, "max", 0, 0, 256)
body = body.replace("v_lshlrev_b32 v1, 6, v1", "v_lshlrev_b32 v1, 7, v1").replace("v_lshlrev_b32 v2, 6, v2", "v_lshlrev_b32 v2, 7, v2")
open(f"l_{name}.s", "w").write(leak.add(base, body))
```

```python
import sys, re

NAME = "standalone__tensor_product_equiv_tfn__graph"
N_NODES, N_EDGES = 10000, 640000
NB = 256
CH = 2500
REC = 12
CS = 30080
WS_TAB, WS_STAMP, WS_ENT = 0x800000, 0xA00000, 0x1000000
ACC_ROW = 528
ACC_NODE = 4 * ACC_ROW
MIXROW = 144
PAD_X = 0x7FFF0000
PAD_E = 0x01FFFFE0
NW, T, NG, PW = 16, 1024, 4, 10
HT = (NW - PW) * 64
SPIN = 1 << 18
LOG2E, LN2 = 0x3FB8AA3B, 0x3F317218
DEFAULTS = dict(nph=4, cap=3072, nc=12, ring=5, lead=-2, eft=18, pfj=25, accearly=11, plv=2, prew=1, xm=3, neg=1, xe=1, pub=1, fz=1, fl=1, late=1, fast=1)

def magic(mul, div, lim):
    for S in range(8, 32):
        M = -(-(mul << S) // div)
        if M < 1 << 24 and (lim - 1) * M < 1 << 32 and all((x * M) >> S == x * mul // div for x in range(lim)):
            return M, S
    raise ValueError

class Asm:
    def __init__(self):
        self.L = []
    def __call__(self, s):
        for line in s.split("\n"):
            line = line.strip()
            if line:
                self.L.append(line if line.endswith(":") or line.startswith(";;") else "    " + line)
    def text(self):
        return "\n".join(self.L) + "\n"

def gen(opts):
    o = dict(DEFAULTS); o.update(opts)
    a = Asm()
    NPH, CAP, NC, RB = o["nph"], o["cap"], o["nc"], o["ring"]
    STAMPS = o.get("stamps")
    D = 4
    TID = o.get('tid', 0)
    NEG = o.get('neg', 0)
    SGN = 0x80000000 if NEG else 0
    NP = CAP // 2 + 16
    assert NP % 32 == 16
    XO, EW, YY, ACC = 0, NP * 8, NP * 16, NP * 32
    H1 = ACC + 40 * ACC_NODE
    EPOCH = H1 + 1024 + 16
    H2 = H1 + 1024 + 64
    MISC = H2 + 1024
    FLG = MISC + 64
    CMIX = FLG + 64
    CW = CMIX + 64 * MIXROW
    CCG = CW + 2048
    RING = CW
    LDS = RING + 16384
    MB, SB = magic(NB, N_NODES, N_NODES)
    PB = o.get('pb', N_NODES // NPH)
    MP, SP = magic(1, PB, N_NODES)
    SL = o.get('slide', 0)
    if SL:
        MP, SP = SL * (1 << 20) // (10 * N_NODES), 20
        PB = N_NODES
    ACC_EARLY = min(o["accearly"] * HT * 16, 40 * ACC_NODE)

    S_X, S_EF, S_ENT, S_TAB, S_A, S_OUT = 12, 16, 20, 24, 28, 32
    sTAGL, sTAGH, sCNT, sPM = 4, 5, 6, 8
    sB, sN0, sNN, sWAVE, sK, sQ, sSPLIT, sNBLK = 36, 37, 38, 39, 40, 41, 42, 43
    sFMN, sNXT, sFM, sT0, sT1, sEMASK, sMORE = 44, 46, 47, 48, 49, 50, 51
    sMASK = 52
    sPEND, sISS, sNEW, sLIM, sMP, sFIRST, sSEL = 68, 69, 70, 71, 72, 73, 74
    sNI, sQUO, sEND = sPEND, sISS, sNEW
    NS = NW - 1 - NC
    n_sgpr = 100 if STAMPS else 76

    vXL, vW, vCG = 1, 2, 10
    vAL, vCX, vCE, vCY, vEH, vRL = 18, 19, 20, 21, 22, 23
    base = r = 24
    vU = r; r += 32
    vX = r; r += 4 * D
    vXC, vXN, vXA = r, r + 1, r + 2; r += 16 if TID else 4
    vTP = r; r += 8
    vACC = r; r += 8
    vK = r; r += 4
    vEF = r; r += 4
    vT = r; r += 4
    vY = r; r += 2
    vTM = vTP
    vEWC, vEWN, vQ, vFA, vFV, vRA, vMI, vC1, vC0 = range(r, r + 9); r += 9
    n_main = r
    r = base
    vTB = r; r += 8
    vEN = r; r += 8 * NG
    vRK = r; r += 2 * NG
    vKY = r; r += 2 * NG
    vF = r; r += 16
    vONE, vJ, vJ16, vH2, vWC = r, r + 1, r + 2, r + 3, r + 4; r += 4 + NG
    vPF = max(n_main, r, base + 88)
    n_vgpr = vPF + 1

    def emit(lst):
        for ins in lst:
            a(ins)
    marks = o.get("marks", "start B4 join poll0 rank F2 F3 sort main end").split()
    def stamp(name, wait=False):
        if STAMPS:
            for i, m in enumerate(marks):
                if m == name:
                    a(f"s_memrealtime s[{76+2*i}:{77+2*i}]")
            if wait:
                a("s_waitcnt lgkmcnt(0)")
    def srd(d, ptr, nbytes, off=0):
        if off:
            a(f"s_add_u32 s{d}, s{ptr}, {off:#x}\ns_addc_u32 s{d+1}, s{ptr+1}, 0")
        else:
            a(f"s_mov_b32 s{d}, s{ptr}\ns_mov_b32 s{d+1}, s{ptr+1}")
        a(f"s_mov_b32 s{d+2}, {nbytes}\ns_mov_b32 s{d+3}, 0x20000")
    def scan4(c, t):
        a(f"""v_add_u32 v{t+1}, v{c}, v{c+1}
v_add_u32 v{t+2}, v{t+1}, v{c+2}
v_add_u32 v{t+3}, v{t+2}, v{c+3}
v_mov_b32 v{t+4}, v{t+3}""")
        for k, ctl in enumerate(("row_shr:1", "row_shr:2", "row_shr:4", "row_shr:8",
                                 "row_bcast:15 row_mask:0xa", "row_bcast:31 row_mask:0xc")):
            a(f"s_nop {0 if k == 0 else 1}\nv_add_u32_dpp v{t+3}, v{t+3}, v{t+3} {ctl}")
        a(f"""v_sub_u32 v{t}, v{t+3}, v{t+4}
v_add_u32 v{t+3}, v{t}, v{t+2}
v_add_u32 v{t+2}, v{t}, v{t+1}
v_add_u32 v{t+1}, v{t}, v{c}""")
    nfill = [0]
    def lds_fill(start, nbytes, val, vtid, nthr, v):
        a(f"v_lshlrev_b32 v{v+4}, 4, v{vtid}")
        if val is not None:
            for j in range(4):
                a(f"v_mov_b32 v{v+j}, {val:#x}")
        n = nbytes // 16
        assert nbytes % 16 == 0
        k = 0
        while k * nthr < n:
            rem = n - k * nthr
            if start + k * nthr * 16 >= 65536:
                a(f"v_add_u32 v{v+4}, {start + k*nthr*16}, v{v+4}")
                start = -k * nthr * 16
            if rem < nthr:
                a(f"v_cmp_gt_u32 vcc, {rem}, v{vtid}\ns_and_saveexec_b64 s[{sT0}:{sT1}], vcc")
                if o.get("fz"):
                    nfill[0] += 1
                    a(f"s_cbranch_execz L_fill{nfill[0]}")
            a(f"ds_write_b128 v{v+4}, v[{v}:{v+3}] offset:{start + k*nthr*16}")
            if rem < nthr:
                if o.get("fz"):
                    a(f"L_fill{nfill[0]}:")
                a(f"s_mov_b64 exec, s[{sT0}:{sT1}]")
            k += 1
    def common_srds():
        srd(S_X, 56, 0 if o.get("nox") else N_NODES * 512)
        srd(S_EF, 64, 0 if o.get("noef") else N_EDGES * 32)
        srd(S_OUT, 72, N_NODES * 512)
        srd(S_ENT, 10, NB * CS, WS_ENT)
        srd(S_TAB, 10, NB * NB * 8, WS_TAB)
    def bound(limit):
        a(f"s_add_u32 s{sCNT}, s{sCNT}, 1\ns_cmp_ge_u32 s{sCNT}, {limit}\ns_cbranch_scc1 L_end")

    K = NAME + "_kernel"
    a(f"""
{K}:
s_cmp_ge_u32 s2, {NB}
s_cbranch_scc1 L_end
""")
    stamp("start")
    a(f"""
s_load_dwordx16 s[56:71], s[0:1], 0
s_load_dwordx4 s[72:75], s[0:1], 64
s_load_dwordx2 s[10:11], s[0:1], 80
v_lshrrev_b32 v2, 6, v0
v_lshlrev_b32 v46, 4, v0
v_readfirstlane_b32 s{sWAVE}, v2
v_mov_b32 v22, {H1}
v_mov_b32 v4, 0
v_and_b32 v3, 0xff, v0
v_lshl_add_u32 v3, v3, 2, v22
ds_write_b32 v3, v4
s_cmp_lt_u32 s{sWAVE}, {PW}
s_cbranch_scc1 L_a_first
s_getpc_b64 s[8:9]
L_pc:
s_lshl_b32 s3, s{sWAVE}, 5
s_lshr_b32 s7, s2, 3
s_add_u32 s3, s3, s7
s_sub_u32 s3, s3, {PW*32}
s_lshl_b32 s3, s3, 7
s_min_u32 s3, s3, L_end-L_pc
s_add_u32 s8, s8, s3
s_addc_u32 s9, s9, 0
v_mov_b32 v10, s8
v_mov_b32 v11, s9
global_load_dword v{vPF}, v[10:11], off
s_memrealtime s[8:9]
s_xor_b32 s3, s{sWAVE}, {PW}
s_or_b32 s3, s3, s2
s_waitcnt lgkmcnt(0)
""")
    srd(S_A, 74, 256)
    a(f"""
s_cbranch_scc1 L_nopub
s_and_b32 s9, s9, 0xff
s_or_b32 s9, s9, 0x100
v_mov_b32 v12, s8
v_mov_b32 v13, s9
{"v_and_b32 v9, 15, v0" if o.get("pub") else ""}
{"v_lshlrev_b32 v9, 3, v9" if o.get("pub") else ""}
s_mov_b64 exec, {0xffff if o.get("pub") else 1}
buffer_store_dwordx2 v[12:13], {"v9" if o.get("pub") else "v4"}, s[{S_A}:{S_A+3}], 0 offen sc1
s_mov_b64 exec, -1
L_nopub:
s_barrier
s_branch L_helper
;; ---- phase A, waves 0..9: order the chunk's edges by destination bucket, publish records and offsets
L_a_first:
v_cmp_gt_u32 vcc, {CH//4}, v0
s_mov_b64 exec, vcc
v_lshlrev_b32 v2, 5, v0
v_lshlrev_b32 v3, 2, v0
s_mul_i32 s3, s2, {CH*4}
s_mul_i32 s7, s2, {CH*8}
s_waitcnt lgkmcnt(0)
""")
    srd(S_A, 60, N_EDGES * 4)
    a(f"buffer_load_dwordx4 v[4:7], v46, s[{S_A}:{S_A+3}], s3 offen")
    srd(40, 58, N_EDGES * 4)
    srd(44, 62, N_EDGES * 8)
    a("s_barrier")
    stamp("B1")
    a(f"""
buffer_load_dwordx4 v[8:11], v46, s[40:43], s3 offen
buffer_load_dwordx4 v[12:15], v2, s[44:47], s7 offen
buffer_load_dwordx4 v[16:19], v2, s[44:47], s7 offen offset:16
""")
    common_srds()
    a(f"""
s_mov_b32 s8, {MB}
s_movk_i32 s9, 625
v_mov_b32 v21, 1
s_waitcnt vmcnt(3)
""")
    for k in range(4):
        a(f"""v_mul_u32_u24 v{24+k}, s8, v{4+k}
v_lshrrev_b32 v{24+k}, {SB}, v{24+k}
v_lshl_add_u32 v{28+k}, v{24+k}, 2, v22
ds_add_rtn_u32 v{32+k}, v{28+k}, v21""")
    for k in range(4):
        a(f"""v_mad_u32_u24 v{24+k}, v{24+k}, s9, 15
v_lshrrev_b32 v{24+k}, 4, v{24+k}
v_sub_u32 v{24+k}, v{4+k}, v{24+k}
v_add_u32 v{36+k}, {k}, v3
v_lshlrev_b32 v{36+k}, 20, v{36+k}
v_lshl_or_b32 v{36+k}, v{24+k}, 14, v{36+k}""")
    a(f"""
s_waitcnt lgkmcnt(0)
s_barrier
s_cmp_lg_u32 s{sWAVE}, 0
s_cbranch_scc1 L_a_noscan
v_add_u32 v47, v46, v22
ds_read_b128 v[40:43], v47
s_waitcnt lgkmcnt(0)
""")
    scan4(40, 48)
    a(f"""
ds_write_b128 v47, v[48:51]
s_waitcnt lgkmcnt(0)
L_a_noscan:
s_barrier
""")
    for k in range(4):
        a(f"ds_read_b32 v{24+k}, v{28+k}")
    a(f"""
v_and_b32 v47, 0x7f, v0
v_lshl_add_u32 v47, v47, 3, v22
ds_read_b64 v[40:41], v47
ds_read_b32 v42, v47 offset:8
s_waitcnt vmcnt(2)
""")
    for k in range(4):
        a(f"""v_or_b32 v{36+k}, v{36+k}, v{8+k}
s_waitcnt lgkmcnt({5-k})
v_add_u32 v{24+k}, v{24+k}, v{32+k}
v_mul_u32_u24 v{24+k}, {REC}, v{24+k}""")
    for k in range(4):
        a(f"ds_write_b32 v{24+k}, v{36+k} offset:8")
    a(f"""
s_waitcnt lgkmcnt(4)
v_sub_u32 v42, v42, v41
v_sub_u32 v43, v41, v40
v_lshl_or_b32 v42, v42, 12, v41
v_lshl_or_b32 v40, v43, 12, v40
s_mul_i32 s3, s2, {CS}
s_waitcnt vmcnt(0)
""")
    for k in range(4):
        a(f"ds_write2_b32 v{24+k}, v{12+2*k}, v{13+2*k} offset0:0 offset1:1")
    a(f"""
s_mov_b64 exec, -1
v_cmp_gt_u32 vcc, {CS//16 - 2*PW*64}, v0
s_waitcnt lgkmcnt(0)
s_barrier
""")
    stamp("B4", True)
    for k in range(3):
        a(f"ds_read_b128 v[{48+4*k}:{51+4*k}], v46 offset:{k*PW*1024}")
    for k in range(3):
        a(f"s_waitcnt lgkmcnt({2-k})")
        if k == 2:
            a("s_mov_b64 exec, vcc")
        a(f"buffer_store_dwordx4 v[{48+4*k}:{51+4*k}], v46, s[{S_ENT}:{S_ENT+3}], s3 offen sc1")
        if k < 2:
            a(f"s_add_u32 s3, s3, {PW*1024}")
    a(f"""
s_mov_b64 exec, -1
s_branch L_join
L_helper:
v_subrev_u32 v2, {PW*64}, v0
v_and_b32 v3, 63, v0
""")
    a(f"""v_mov_b32 v5, 0
v_mov_b32 v6, 0
v_mov_b32 v7, 0
v_mov_b32 v9, {CH}
ds_write_b32 v22, v9 offset:1024""")
    a(f"""
""")
    common_srds()
    if o["prew"]:
        a(f"""s_cmp_ge_u32 s{sWAVE}, {PW+2}
s_cbranch_scc1 L_h_noprew
v_lshlrev_b32 v9, 4, v2
s_lshl_b32 s7, s2, 11
buffer_store_dwordx4 v[4:7], v9, s[{S_TAB}:{S_TAB+3}], s7 offen sc1
L_h_noprew:""")
    if ACC_EARLY:
        lds_fill(ACC, ACC_EARLY, None, 2, HT, 4)
    a(f"""
s_barrier
""")
    a(f"""
s_waitcnt lgkmcnt(0)
s_barrier
s_cmp_lg_u32 s{sWAVE}, {NW-1}
s_cbranch_scc1 L_h_nopoll
buffer_load_dwordx2 v[14:15], v4, s[{S_A}:{S_A+3}], 0 offen sc1
L_h_nopoll:
s_cmp_eq_u32 s{sWAVE}, {PW}
s_cbranch_scc1 L_h_w
s_cmp_eq_u32 s{sWAVE}, {PW+1}
s_cbranch_scc1 L_h_cg
""")
    srd(40, 70, 64 * 64 * 2)
    a(f"""
v_subrev_u32 v10, {(PW+2)*64*16}, v46
buffer_load_dwordx4 v[16:19], v10, s[40:43], 0 offen
v_add_u32 v11, 4096, v10
buffer_load_dwordx4 v[20:23], v11, s[40:43], 0 offen
""")
    NA = 0
    if o.get("pfa"):
        lo, hi = o.get("pfa0", 0), o["pfa"]
        l0 = N_NODES * 4 * lo // 32
        pa = -(-(N_NODES * 4 * hi // 32 - l0) // ((32 if o.get("xa") else NB) * 4))
        assert pa <= 64
        NA = 1
        a(f"""s_lshr_b32 s3, s2, {3 if o.get("xa") else 0}
s_lshl_b32 s3, s3, 2
s_add_u32 s3, s3, s{sWAVE}
s_mul_i32 s3, s3, {pa}
s_add_u32 s3, s3, {l0 - (PW+2)*pa}
v_min_u32 v11, {pa-1}, v3
v_add_lshl_u32 v11, v11, s3, 7
buffer_load_dword v{vPF}, v11, s[{S_X}:{S_X+3}], 0 offen""")
    a(f"""
s_barrier
s_cmp_lg_u32 s{sWAVE}, {NW-1}
s_cbranch_scc1 L_h_mix
s_mov_b32 s{sCNT}, 0
s_waitcnt vmcnt({2 + NA})
L_h_poll:
v_readfirstlane_b32 s{sT0}, v15
s_cmp_lg_u32 s{sT0}, 0
s_cbranch_scc1 L_h_polled
""")
    bound(SPIN)
    a(f"""
buffer_load_dwordx2 v[14:15], v4, s[{S_A}:{S_A+3}], 0 offen sc1
s_waitcnt vmcnt(0)
s_branch L_h_poll
L_h_polled:
v_mov_b32 v12, {EPOCH}
v_and_b32 v15, 0xff, v15
ds_write_b64 v12, v[14:15]
L_h_mix:
v_lshrrev_b32 v4, 7, v10
v_mul_u32_u24 v5, {MIXROW}, v4
v_and_b32 v6, 7, v3
v_lshl_add_u32 v5, v6, 3, v5
v_add_u32 v5, {CMIX}, v5
s_mov_b32 s8, 0x05040100
s_mov_b32 s9, 0x07060302
s_waitcnt vmcnt({NA})
""")
    for half in range(2):
        q, t = 16 + 4 * half, 24 + 4 * half
        a(f"""v_perm_b32 v{t}, v{q+1}, v{q}, s8
v_perm_b32 v{t+1}, v{q+3}, v{q+2}, s8
v_perm_b32 v{t+2}, v{q+1}, v{q}, s9
v_perm_b32 v{t+3}, v{q+3}, v{q+2}, s9
ds_write_b64 v5, v[{t}:{t+1}] offset:{half*32*MIXROW}
ds_write_b64 v5, v[{t+2}:{t+3}] offset:{half*32*MIXROW + 64}""")
    a("s_branch L_join\nL_h_cg:")
    srd(40, 68, 64 * 2)
    a("v_and_b32 v10, 3, v3\nv_lshlrev_b32 v10, 1, v10")
    for j in range(16):
        a(f"buffer_load_ushort v{16+j}, v10, s[40:43], 0 offen offset:{j*8}")
    a(f"v_lshlrev_b32 v9, 4, v3\nv_add_u32 v9, {CCG}, v9\ns_barrier\ns_waitcnt vmcnt(0)")
    for j in range(8):
        a(f"v_lshl_or_b32 v{32+j}, v{17+2*j}, 16, v{16+2*j}")
    a("ds_write_b128 v9, v[32:35]\nds_write_b128 v9, v[36:39] offset:1024\ns_branch L_join\nL_h_w:")
    srd(40, 66, 16 * 64 * 2)
    a("""v_lshrrev_b32 v10, 5, v3
v_lshlrev_b32 v10, 10, v10
v_and_b32 v11, 31, v3
v_lshl_add_u32 v10, v11, 2, v10""")
    for i in range(8):
        a(f"buffer_load_dword v{16+i}, v10, s[40:43], 0 offen offset:{i*128}")
    a(f"""v_lshlrev_b32 v9, 4, v3
v_add_u32 v9, {CW}, v9
s_mov_b32 s8, {LOG2E | SGN:#x}
s_barrier
s_waitcnt vmcnt(0)""")
    for i in range(8):
        a(f"""v_lshlrev_b32 v{24+i}, 16, v{16+i}
v_and_b32 v{32+i}, 0xffff0000, v{16+i}
v_mul_f32 v{24+i}, s8, v{24+i}
v_mul_f32 v{32+i}, s8, v{32+i}""")
    for j in range(8):
        a(f"v_cvt_pk_bf16_f32 v{16+j}, v{24+2*j}, v{25+2*j}")
    a("ds_write_b128 v9, v[16:19]\nds_write_b128 v9, v[20:23] offset:1024")

    lane, tmp = vF, vF + 3
    a(f"""
L_join:
s_waitcnt lgkmcnt(0)
""")
    stamp("preB4b")
    a("s_barrier")
    stamp("B4b")
    a(f"""
v_and_b32 v{lane}, 63, v0
v_lshlrev_b32 v{vF+1}, 4, v{lane}
v_add_u32 v{vF+1}, {CW}, v{vF+1}
v_mov_b32 v{vF+2}, {EPOCH}
ds_read_b64 v[44:45], v{vF+2}
""")
    for q in range(4):
        a(f"ds_read_b128 v[{vW+4*q}:{vW+4*q+3}], v{vF+1} offset:{q*1024}")
    a(f"""
s_and_b32 s{sB}, s2, 7
s_lshl_b32 s{sB}, s{sB}, 5
s_lshr_b32 s3, s2, 3
s_add_u32 s{sB}, s{sB}, s3
s_mul_i32 s{sN0}, s{sB}, 625
s_add_u32 s{sNN}, s{sN0}, {625+15}
s_add_u32 s{sN0}, s{sN0}, 15
s_lshr_b32 s{sN0}, s{sN0}, 4
s_lshr_b32 s{sNN}, s{sNN}, 4
s_mov_b32 s{sK}, 0
s_mov_b32 s{sQ}, 0
s_mov_b32 s{sSPLIT}, 0
s_mov_b32 s{sFIRST}, 1
""")
    if TID:
        a(f"""s_sub_u32 s{S_A}, s{S_X}, 512
s_subb_u32 s{S_A+1}, s{S_X+1}, 0
s_or_b32 s{S_A+1}, s{S_A+1}, {16 << 16:#x}
s_mov_b32 s{S_A+2}, {N_NODES * 512 + 512}
s_mov_b32 s{S_A+3}, 0x800000""")
    a(f"""
s_mov_b32 s{sMP}, {MP}
s_mov_b32 s{sEMASK}, {o.get('emask', 0x01ffffff):#x}
v_and_b32 v{tmp}, 31, v{lane}
v_lshlrev_b32 v{vXL}, 4, v{tmp}
v_lshlrev_b32 v{vAL}, 3, v{lane}
v_add_u32 v{vAL}, {ACC}, v{vAL}
v_lshrrev_b32 v{vEH}, 5, v{lane}
v_mul_u32_u24 v{vCX}, {NP*4}, v{vEH}
v_and_b32 v{tmp}, {0 if TID else 15}, v{lane}
v_lshl_add_u32 v{vCX}, v{tmp}, 2, v{vCX}
v_mul_u32_u24 v{vCY}, {NP}, v{vEH}
v_lshlrev_b32 v{vEH}, 4, v{vEH}
v_lshl_add_u32 v{vRL}, v{vXL}, 1, v{vEH}
v_add_u32 v{vRL}, {RING}, v{vRL}
v_bfe_u32 v{vCE}, v{lane}, 2, 1
v_mul_u32_u24 v{vCE}, {NP}, v{vCE}
v_bfe_u32 v{tmp}, v{lane}, 3, 2
v_lshl_add_u32 v{vCE}, v{tmp}, 2, v{vCE}
v_and_b32 v{tmp}, 3, v{lane}
v_add_lshl_u32 v{vCE}, v{vCE}, v{tmp}, 2
v_and_b32 v{tmp}, 1, v{lane}
v_lshl_add_u32 v{vCY}, v{tmp}, 3, v{vCY}
v_bfe_u32 v{tmp}, v{lane}, 2, 3
v_add_lshl_u32 v{vCY}, v{vCY}, v{tmp}, 3
s_waitcnt lgkmcnt(0)
v_readfirstlane_b32 s{sTAGH}, v44
v_readfirstlane_b32 s{sTAGL}, v45
v_lshl_or_b32 v42, v45, 24, v42
v_lshl_or_b32 v40, v45, 24, v40
v_mov_b32 v41, v44
v_mov_b32 v43, v44
L_round:
""")
    def slot_fills():
        lds_fill(H2, 1024 + 128, 0, 0, T, vF)
        lds_fill(YY, NP * 16, None, 0, T, vF)
        lds_fill(XO, NP * 8, 512 if TID else PAD_X, 0, T, vF)
        lds_fill(EW, NP * 8, PAD_E, 0, T, vF)
    if not o.get("fl"):
        slot_fills()
    a(f"""
v_lshrrev_b32 v{vF+6}, 4, v0
v_and_b32 v{vF+7}, 3, v0
v_lshl_add_u32 v{vF+8}, v{vF+7}, 6, v{vF+6}
s_lshl_b32 s3, s{sB}, 3
v_lshl_add_u32 v{vTB+2}, v{vF+8}, 11, s3
v_and_b32 v{vF+7}, s{sSPLIT}, v{vF+7}
v_cmp_eq_u32 s[{sSEL}:{sSEL+1}], s{sQ}, v{vF+7}
s_mov_b32 s{sPM}, 0x000f000f
s_mov_b32 s{sPM+1}, 0x000f000f
v_mov_b32 v{vONE}, 1
v_mov_b32 v{vH2}, {H2}
v_and_b32 v{vJ}, 15, v0
s_lshl_b32 s{sLIM}, s{sK}, 5
v_add_u32 v{vJ}, s{sLIM}, v{vJ}
s_add_u32 s{sLIM}, s{sLIM}, 32
v_add_u32 v{vJ16}, 16, v{vJ}
v_mul_u32_u24 v{vWC}, {CH}, v{vF+6}
v_mul_u32_u24 v{vTB+4}, {CS}, v{vF+6}
v_mad_u32_u24 v{vTB+4}, v{vJ}, {REC}, v{vTB+4}
""")
    for g in range(1, NG):
        a(f"v_add_u32 v{vWC+g}, {g*64*CH}, v{vWC}\nv_add_u32 v{vTB+4+g}, {g*64*CS}, v{vTB+4}")
    pj0 = N_NODES * 4 * o.get("pj0", 0) // 32
    per = -(-(N_NODES * 4 * o["pfj"] // 32 - pj0) // NB)
    a(f"""
s_mov_b32 s{sCNT}, 0
s_mov_b32 s{sPEND}, 15
s_mov_b32 s{sISS}, 0
{f's_movk_i32 s{sFM}, {(1 << 20) * o.get(chr(115)+chr(102), 100) // 4000}' if SL else ''}
s_lshl_b32 s7, s2, 11
s_mul_i32 s3, s2, {per}
{f's_add_u32 s3, s3, {pj0}' if pj0 else ''}
v_subrev_u32 v{vF+8}, 128, v0
v_min_u32 v{vF+8}, {max(per-1, 0)}, v{vF+8}
v_add_lshl_u32 v{vF+8}, v{vF+8}, s3, 7
s_waitcnt vmcnt(0) lgkmcnt(0)
""")
    stamp("preB5")
    a("s_barrier")
    stamp("join")
    a(f"""
s_cmp_eq_u32 s{sFIRST}, 0
s_cbranch_scc1 L_nofirst
s_mov_b32 s{sFIRST}, 0
s_cmp_ge_u32 s{sWAVE}, 2
s_cbranch_scc1 L_notab
buffer_store_dwordx4 v[40:43], v46, s[{S_TAB}:{S_TAB+3}], s7 offen sc1
L_notab:
""")
    npf = -(-per // 64)
    def touches():
        a(f"""s_sub_u32 s{sT0}, s{sWAVE}, 2
s_cmp_ge_u32 s{sT0}, {npf}
s_cbranch_scc1 L_nopf
buffer_load_dword v{vPF}, v{vF+8}, s[{S_X}:{S_X+3}], 0 offen
L_nopf:""")
        if o.get("tlb"):
            a(f"""v_and_b32 v{vF+8}, 63, v0
v_lshlrev_b32 v{vF+8}, 20, v{vF+8}
s_cmp_lg_u32 s{sWAVE}, {2 + npf}
s_cbranch_scc1 L_notlb0
buffer_load_dword v{vPF}, v{vF+8}, s[{S_EF}:{S_EF+3}], 0 offen
L_notlb0:
s_cmp_lg_u32 s{sWAVE}, {3 + npf}
s_cbranch_scc1 L_notlb1
buffer_load_dword v{vPF}, v{vF+8}, s[{S_X}:{S_X+3}], 0 offen
L_notlb1:""")
    if not o.get("late"):
        touches()
    if ACC_EARLY < 40 * ACC_NODE:
        lds_fill(ACC + ACC_EARLY, 40 * ACC_NODE - ACC_EARLY, 0, 0, T, vF)
    if o.get("late"):
        touches()
    if not o.get("fl"):
        a("s_waitcnt lgkmcnt(0)\ns_barrier")
    poll = f"""
s_mov_b64 exec, s[{sPM}:{sPM+1}]
buffer_load_dwordx2 v[{vTB}:{vTB+1}], v{vTB+2}, s[{S_TAB}:{S_TAB+3}], 0 offen sc1
s_mov_b64 exec, -1
"""
    a("L_nofirst:")
    if o.get("fl"):
        slot_fills()
        a("s_waitcnt lgkmcnt(0)\ns_barrier")
    a(poll)
    stamp("poll0")
    a(f"""
L_poll:
s_mov_b32 s{sNEW}, 0
s_cmp_eq_u32 s{sPEND}, 0
s_waitcnt vmcnt(0)
""")
    stamp("ent")
    a("s_cbranch_scc1 L_ranks")
    stamp("last")
    a(f"""
v_lshrrev_b32 v{vF}, 24, v{vTB}
v_cmp_ne_u32 s[{sT0}:{sT1}], s{sTAGH}, v{vTB+1}
v_cmp_ne_u32 vcc, s{sTAGL}, v{vF}
v_bfe_u32 v{vF+3}, v{vTB}, 12, 12
v_and_b32 v{vF+4}, 0xfff, v{vTB}
v_cndmask_b32 v{vF+3}, 0, v{vF+3}, s[{sSEL}:{sSEL+1}]
v_mul_u32_u24 v{vF+4}, {REC}, v{vF+4}
s_or_b64 vcc, vcc, s[{sT0}:{sT1}]
s_and_b64 s[{sPM}:{sPM+1}], s[{sPM}:{sPM+1}], vcc
s_or_b32 s{sT0}, s{sPM}, s{sPM+1}
s_lshr_b32 s{sT1}, s{sT0}, 16
s_or_b32 s{sT0}, s{sT0}, s{sT1}
s_andn2_b32 s{sNEW}, s{sPEND}, s{sT0}
s_and_b32 s{sPEND}, s{sPEND}, s{sT0}
""")
    if o.get("fast"):
        a(f"s_cmp_eq_u32 s{sNEW}, 15\ns_cbranch_scc1 L_fast")
    for g in range(NG):
        m0, m1 = sMASK + 4 * g, sMASK + 4 * g + 2
        a(f"""s_bitcmp0_b32 s{sNEW}, {g}
s_cbranch_scc1 L_is{g}
v_mov_b32_dpp v{vF}, v{vF+3} row_newbcast:{g} row_mask:0xf bank_mask:0xf
v_add_u32_dpp v{vTB+4+g}, v{vF+4}, v{vTB+4+g} row_newbcast:{g} row_mask:0xf bank_mask:0xf
v_cmp_lt_u32 s[{m0}:{m0+1}], v{vJ}, v{vF}
v_cmp_lt_u32 s[{m1}:{m1+1}], v{vJ16}, v{vF}
s_mov_b64 exec, s[{m0}:{m0+1}]
s_cbranch_execz L_it{g}
buffer_load_dwordx3 v[{vEN+8*g}:{vEN+8*g+2}], v{vTB+4+g}, s[{S_ENT}:{S_ENT+3}], 0 offen sc1
s_mov_b64 exec, s[{m1}:{m1+1}]
s_cbranch_execz L_it{g}
buffer_load_dwordx3 v[{vEN+8*g+4}:{vEN+8*g+6}], v{vTB+4+g}, s[{S_ENT}:{S_ENT+3}], 0 offen offset:{16*REC} sc1
L_it{g}:
s_mov_b64 exec, -1
L_is{g}:""")
    stamp("ready")
    a(f"s_cmp_eq_u32 s{sPEND}, 0\ns_cbranch_scc1 L_ranks")
    bound(SPIN)
    a(poll)
    a("L_ranks:")
    def for_parts(body, tag, groups=range(NG)):
        for g in groups:
            for p in range(2):
                i = 2 * g + p
                a(f"s_mov_b64 exec, s[{sMASK+2*i}:{sMASK+2*i+1}]")
                if p:
                    a(f"s_cbranch_execz L_{tag}{g}")
                body(g, i, vEN + 4 * i)
                if p:
                    a(f"L_{tag}{g}:")
        a("s_mov_b64 exec, -1")
    def rank_body(g, i, e):
        a(f"""v_bfe_u32 v{vF+1}, v{e+2}, 14, 6
v_and_b32 v{vF}, 0x3fff, v{e+2}
v_mul_u32_u24 v{vF+2}, s{sMP}, v{vF}
{f"v_sub_u32 v{vF+6}, 40, v{vF+1}" if SL else ""}
{f"v_mad_u32_u24 v{vF+2}, v{vF+6}, s{sFM}, v{vF+2}" if SL else ""}
v_lshrrev_b32 v{vF+2}, {SP}, v{vF+2}
{f"v_min_u32 v{vF+2}, {NPH-1}, v{vF+2}" if PB * NPH < N_NODES else ""}
v_mad_u32_u24 v{vF+2}, v{vF+2}, 40, v{vF+1}
v_lshl_add_u32 v{vKY+i}, v{vF+2}, 2, v{vH2}
ds_add_rtn_u32 v{vRK+i}, v{vKY+i}, v{vONE}
v_lshrrev_b32 v{e+3}, 20, v{e+2}
v_add_lshl_u32 v{vF+5}, v{e+3}, v{vWC+g}, 5
v_lshl_or_b32 v{e+3}, v{vF+1}, 25, v{vF+5}""")
        if o.get("xmask"):
            a(f"v_and_b32 v{vF}, {o['xmask']:#x}, v{vF}")
        if o.get("eftr"):
            a(f"v_cmp_gt_u32 vcc, {o['eftr']}, v{vF+2}")
        a(f"v_add_lshl_u32 v{e+2}, v{vF}, 1, 9" if TID else f"v_lshlrev_b32 v{e+2}, 9, v{vF}")
        if o.get("eftr"):
            a(f"""s_and_b64 exec, exec, vcc
s_cbranch_execz L_eftr{i}
buffer_load_dword v{vPF}, v{vF+5}, s[{S_EF}:{S_EF+3}], 0 offen
L_eftr{i}:""")
    for g in range(NG):
        a(f"s_bitcmp0_b32 s{sISS}, {g}\ns_cbranch_scc1 L_rs{g}")
        for_parts(rank_body, "rk", [g])
        a(f"L_rs{g}:")
    a(f"""
s_mov_b32 s{sISS}, s{sNEW}
s_or_b32 s{sT0}, s{sPEND}, s{sISS}
s_cbranch_scc1 L_poll
""")
    if o.get("fast"):
        assert not o.get("eftr")
        a("s_branch L_ranked\n;; all sixteen segments of the wave were ready at once\nL_fast:")
        for g in range(NG):
            m0 = sMASK + 4 * g
            a(f"""v_mov_b32_dpp v{vF+8+g}, v{vF+3} row_newbcast:{g} row_mask:0xf bank_mask:0xf
v_add_u32_dpp v{vTB+4+g}, v{vF+4}, v{vTB+4+g} row_newbcast:{g} row_mask:0xf bank_mask:0xf
v_cmp_lt_u32 s[{m0}:{m0+1}], v{vJ}, v{vF+8+g}""")
        for g in range(NG):
            m0 = sMASK + 4 * g
            a(f"""s_mov_b64 exec, s[{m0}:{m0+1}]
s_cbranch_execz L_fe{g}
buffer_load_dwordx3 v[{vEN+8*g}:{vEN+8*g+2}], v{vTB+4+g}, s[{S_ENT}:{S_ENT+3}], 0 offen sc1
L_fe{g}:""")
        a("s_mov_b64 exec, -1")
        for g in range(NG):
            m1 = sMASK + 4 * g + 2
            a(f"v_cmp_lt_u32 s[{m1}:{m1+1}], v{vJ16}, v{vF+8+g}")
        a(f"""s_or_b64 s[{sPM}:{sPM+1}], s[{sMASK+2}:{sMASK+3}], s[{sMASK+6}:{sMASK+7}]
s_or_b64 s[{sPM}:{sPM+1}], s[{sPM}:{sPM+1}], s[{sMASK+10}:{sMASK+11}]
s_or_b64 s[{sPM}:{sPM+1}], s[{sPM}:{sPM+1}], s[{sMASK+14}:{sMASK+15}]
s_cbranch_scc0 L_f_nosecond""")
        for g in range(NG):
            m1 = sMASK + 4 * g + 2
            a(f"""s_mov_b64 exec, s[{m1}:{m1+1}]
s_cbranch_execz L_fs{g}
buffer_load_dwordx3 v[{vEN+8*g+4}:{vEN+8*g+6}], v{vTB+4+g}, s[{S_ENT}:{S_ENT+3}], 0 offen offset:{16*REC} sc1
L_fs{g}:""")
        a("L_f_nosecond:")
        stamp("ready")
        a(f"s_cmp_eq_u64 s[{sPM}:{sPM+1}], 0\ns_waitcnt vmcnt(0)")
        stamp("ent")
        for g in range(NG):
            a(f"s_mov_b64 exec, s[{sMASK+4*g}:{sMASK+4*g+1}]")
            rank_body(g, 2 * g, vEN + 8 * g)
        a("s_cbranch_scc1 L_f_done")
        for g in range(NG):
            a(f"s_mov_b64 exec, s[{sMASK+4*g+2}:{sMASK+4*g+3}]\ns_cbranch_execz L_fg{g}")
            rank_body(g, 2 * g + 1, vEN + 8 * g + 4)
            a(f"L_fg{g}:")
        a("L_f_done:\ns_mov_b64 exec, -1\nL_ranked:")
    a(f"""
v_bfe_u32 v{vF+3}, v{vTB}, 12, 12
v_cmp_lt_u32 vcc, s{sLIM}, v{vF+3}
s_or_b32 s{sT0}, vcc_lo, vcc_hi
s_and_b32 s{sT0}, s{sT0}, 0x000f000f
s_cbranch_scc0 L_nomore
v_mov_b32 v{vF}, {MISC+8}
ds_write_b32 v{vF}, v{vONE}
L_nomore:
s_movk_i32 s{sT0}, {NP*4 - 2}
s_brev_b32 s{sT1}, 1
{f's_movk_i32 s{sNEW}, -512' if TID else ''}
s_waitcnt lgkmcnt(0)
""")
    stamp("rank")
    a("s_barrier")
    stamp("F2")
    a(f"""
s_cmp_lg_u32 s{sWAVE}, 0
s_cbranch_scc1 L_noscan
{"s_setprio 3" if o.get("fs") else ""}
v_lshl_add_u32 v{vF+9}, v0, 4, v{vH2}
ds_read_b128 v[{vF}:{vF+3}], v{vF+9}
s_waitcnt lgkmcnt(0)
""")
    for j in range(4):
        a(f"v_add_lshl_u32 v{vF+j}, v{vF+j}, 1, 1\nv_and_b32 v{vF+j}, -4, v{vF+j}")
    scan4(vF, vF + 4)
    a(f"ds_write_b128 v{vF+9}, v[{vF+4}:{vF+7}]")
    if o.get("fs") == 2:
        a("s_waitcnt lgkmcnt(0)\ns_barrier")
    a("L_noscan:")
    def pre_body(g, i, e):
        a(f"""v_add_u32 v{vF+10}, -1, v{vRK+i}
v_and_or_b32 v{e+3}, v{vF+10}, s{sT1}, v{e+3}
v_and_b32 v{vF+10}, 1, v{vRK+i}
v_lshlrev_b32 v{vRK+i}, 1, v{vRK+i}
v_mad_u32_u24 v{vRK+i}, v{vF+10}, s{sT0}, v{vRK+i}""")
        if TID:
            a(f"v_mad_i32_i24 v{e+2}, v{vF+10}, s{sNEW}, v{e+2}")
        lo = o.get("eftr", 0)
        if o["eft"] <= lo:
            return
        if lo:
            a(f"v_subrev_u32 v{vF+11}, {H2 + 4*lo}, v{vKY+i}\nv_cmp_gt_u32 vcc, {4 * (o['eft'] - lo)}, v{vF+11}")
        else:
            a(f"v_cmp_gt_u32 vcc, {H2 + 4 * o['eft']}, v{vKY+i}")
        a(f"""
v_and_b32 v{vF+10}, s{sEMASK}, v{e+3}
s_and_b64 exec, exec, vcc
s_cbranch_execz L_eft{i}
buffer_load_dword v{vPF}, v{vF+10}, s[{S_EF}:{S_EF+3}], 0 offen
L_eft{i}:""")
    for_parts(pre_body, "pr")
    if o.get("fs") == 2:
        a(f"s_cmp_eq_u32 s{sWAVE}, 0\ns_cbranch_scc1 L_scanned\ns_barrier\nL_scanned:")
    else:
        a("s_waitcnt lgkmcnt(0)\ns_barrier")
    stamp("F3")
    a(f"ds_read_b32 v{vF+1}, v{vH2} offset:1020\nds_read_b32 v{vF+2}, v{vH2} offset:1032")
    for_parts(lambda g, i, e: a(f"ds_read_b32 v{vKY+i}, v{vKY+i}"), "st")
    a(f"""
s_waitcnt lgkmcnt(0)
v_readfirstlane_b32 s{sNBLK}, v{vF+1}
v_readfirstlane_b32 s{sMORE}, v{vF+2}
s_cmp_le_u32 s{sNBLK}, {CAP*2}
s_cbranch_scc1 L_fits
s_mov_b32 s{sSPLIT}, 3
s_barrier
s_branch L_round
L_fits:
""")
    if o.get("dly"):
        a(f"s_sleep {o['dly']}")
    def scat_body(g, i, e):
        a(f"""v_add_u32 v{vF}, v{vKY+i}, v{vRK+i}
v_lshlrev_b32 v{vF+3}, 1, v{vF}
ds_write_b32 v{vF}, v{e+2} offset:{XO}
ds_write_b32 v{vF}, v{e+3} offset:{EW}
ds_write_b64 v{vF+3}, v[{e}:{e+1}] offset:{YY}""")
    for_parts(scat_body, "sc")
    a(f"""
v_mov_b32 v{vF+2}, {PAD_E | 0x80000000:#x}
s_add_u32 s{sNBLK}, s{sNBLK}, 63
s_lshr_b32 s{sNBLK}, s{sNBLK}, 6
ds_write_b32 v{vF+1}, v{vF+2} offset:{EW}
s_waitcnt lgkmcnt(0)
s_barrier
""")
    stamp("sort")
    if STAMPS:
        a("s_memtime s[96:97]\ns_waitcnt lgkmcnt(0)")
    main_start = len(a.L)

    def rho(step):
        return 8 * (step // 4) + step % 4
    def quad_read(q):
        a(f"ds_read_b128 v[{vXC+4*q}:{vXC+4*q+3}], v{vXL} offset:{XO + q*16}")
    def block_reads(sreg):
        if TID:
            a(f"""s_lshl_b32 s{sT0}, s{sreg}, 6
s_lshl_b32 s{sT1}, s{sreg}, 7
v_add_u32 v{vEWN}, s{sT0}, v{vCE}
v_add_u32 v{vXL}, s{sT0}, v{vCX}
v_add_u32 v{vY}, s{sT1}, v{vCY}
ds_read_b32 v{vEWN}, v{vEWN} offset:{EW}
ds_read_b64 v[{vY}:{vY+1}], v{vY} offset:{YY}""")
            quad_read(0)
            quad_read(1)
            return
        a(f"""s_lshl_b32 s{sT0}, s{sreg}, 6
s_lshl_b32 s{sT1}, s{sreg}, 7
v_add_u32 v{vEWN}, s{sT0}, v{vCE}
v_add_u32 v{vXN}, s{sT0}, v{vCX}
v_add_u32 v{vY}, s{sT1}, v{vCY}
ds_read_b32 v{vEWN}, v{vEWN} offset:{EW}
ds_read_b32 v{vXN}, v{vXN} offset:{XO}
ds_read_b64 v[{vY}:{vY+1}], v{vY} offset:{YY}""")
    def x_load(step):
        src = vXN if step >= 16 else vXC
        xa = vXA + (step & 1)
        d = vX + 4 * (step % D)
        if TID:
            return [f"buffer_load_dwordx4 v[{d}:{d+3}], v{vXC + step % 16}, s[{S_A}:{S_A+3}], 0 offen"]
        return [f"v_add_u32_dpp v{xa}, v{src}, v{vXL} row_newbcast:{step % 16} row_mask:0xf bank_mask:0xf",
                f"buffer_load_dwordx4 v[{d}:{d+3}], v{xa}, s[{S_X}:{S_X+3}], 0 offen" + (" " + o["xmod"] if o.get("xmod") else "")]
    flags = f"v_cmp_gt_i32 s[{sFMN}:{sFMN+1}], 0, v{vEWN}"
    ring_read = f"ds_read_b32 v{vFV}, v{vFA}\nds_read_b128 v[{vEF}:{vEF+3}], v{vRA}"
    ring_test = f"""v_readfirstlane_b32 s{sT0}, v{vFV}
s_cmp_lg_u32 s{sT0}, s{sNXT}
s_cbranch_scc1 L_ring_wait"""
    KT = [vTP, vTP + 4, vACC, vACC + 4] if o.get('kb') else [vU, vU + 4, vU + 16, vU + 20]
    def k_mfma():
        return [f"v_mfma_f32_4x4x4_16b_bf16 v[{KT[i]}:{KT[i]+3}], v[{vY}:{vY+1}], v[{vCG+2*i}:{vCG+2*i+1}], 0" for i in range(4)]
    def k_cvt(j):
        return [f"v_cvt_pk_bf16_f32 v{vK+2*j}, v{KT[0]+j}, v{KT[1]+j}",
                f"v_cvt_pk_bf16_f32 v{vK+2*j+1}, v{KT[2]+j}, v{KT[3]+j}"]
    def u_mfma():
        return [f"v_mfma_f32_32x32x16_bf16 v[{vU+16*p}:{vU+16*p+15}], v[{vEF}:{vEF+3}], v[{vW+4*p}:{vW+4*p+3}], 0" for p in range(2)]
    def silu_ops(d):
        u = vU
        E = [f"v_exp_f32 v{vT+2*p+j}, {'' if NEG else '-'}v{u+16*p+2*d+j}" for p in range(2) for j in range(2)]
        A = [f"v_pk_add_f32 v[{vT+2*p}:{vT+2*p+1}], v[{vT+2*p}:{vT+2*p+1}], 1.0 op_sel_hi:[1,0]" for p in range(2)]
        R = [f"v_rcp_f32 v{vT+2*p+j}, v{vT+2*p+j}" for p in range(2) for j in range(2)]
        M = [f"v_pk_mul_f32 v[{u+16*p+2*d}:{u+16*p+2*d+1}], v[{u+16*p+2*d}:{u+16*p+2*d+1}], v[{vT+2*p}:{vT+2*p+1}]" for p in range(2)]
        return E, A, R, M
    def fma_ops(step, first=False):
        d, j = divmod(step, 2)
        out = []
        for p in range(2):
            rr = vU + 16 * p + 2 * d
            for hh in range(2):
                t = vTP + 4 * p + 2 * hh
                c = vACC + 4 * p + 2 * hh
                if first:
                    out.append(f"v_pk_mul_f32 v[{c}:{c+1}], v[{t}:{t+1}], v[{rr}:{rr+1}] op_sel:[0,{j}] op_sel_hi:[1,{j}]")
                else:
                    out.append(f"v_pk_fma_f32 v[{c}:{c+1}], v[{t}:{t+1}], v[{rr}:{rr+1}], v[{c}:{c+1}] op_sel:[0,{j},0] op_sel_hi:[1,{j},1]")
        return out
    def tp_ops(step):
        out = []
        for p in range(2):
            t, x, k = vTP + 4 * p, vX + 4 * (step % D) + 2 * p, vK + 2 * (step // 8)
            out.append(f"v_mfma_f32_4x4x4_16b_bf16 v[{t}:{t+3}], v[{k}:{k+1}], v[{x}:{x+1}], 0 cbsz:3 abid:{step%8}")
        return out
    def flush_body(step, packed):
        c = vACC
        a(f"v_readlane_b32 s{sT0}, v{vEWC}, {rho(step)}\ns_nop 0")
        for oo in range(4):
            a(f"v_permlane32_swap_b32 v{c+oo}, v{c+4+oo}")
            if oo == 0:
                a(f"s_bfe_u32 s{sT0}, s{sT0}, 0x60019\ns_mul_i32 s{sT0}, s{sT0}, {ACC_NODE}")
        a(f"v_add_u32 v{vQ}, s{sT0}, v{vAL}")
        for h in (0, 2):
            if packed:
                a(f"v_pk_add_f32 v[{c+h}:{c+h+1}], v[{c+h}:{c+h+1}], v[{c+4+h}:{c+5+h}]")
            else:
                a(f"v_add_f32 v{c+h}, v{c+h}, v{c+4+h}\nv_add_f32 v{c+h+1}, v{c+h+1}, v{c+5+h}")
            a(f"""v_cvt_f64_f32 v[{c+4+h}:{c+5+h}], v{c+h}
v_cvt_f64_f32 v[{c+h}:{c+h+1}], v{c+h+1}
ds_add_f64 v{vQ}, v[{c+4+h}:{c+5+h}] offset:{h*ACC_ROW}
ds_add_f64 v{vQ}, v[{c+h}:{c+h+1}] offset:{(h+1)*ACC_ROW}""")

    a(f"""
;; ---- blocks of 32 sorted edges: two edges per step, one per half wave, two channels per lane
s_mul_i32 s{sT0}, s{sNBLK}, {-(-65536 // NC)}
s_lshr_b32 s{sT0}, s{sT0}, 16
s_mul_i32 s{sT0}, s{sT0}, {NC}
s_sub_u32 s{sT0}, s{sNBLK}, s{sT0}
s_cmp_le_u32 s{sT0}, {o.get("xm", 0)}
s_cselect_b32 s{sT0}, s{sT0}, 0
s_min_u32 s{sNI}, s{sT0}, {NS}
s_add_u32 s{sNI}, s{sNI}, {NC}
s_add_u32 s{sQUO}, s{sT0}, {NC + NS - 1}
s_sub_u32 s{sQUO}, s{sQUO}, s{sWAVE}
s_mul_i32 s{sQUO}, s{sQUO}, {-(-65536 // NS)}
s_lshr_b32 s{sQUO}, s{sQUO}, 16
s_cmp_lt_u32 s{sWAVE}, {NC}
s_cselect_b32 s{sQUO}, 0x7fff, s{sQUO}
s_mov_b32 s{sEND}, s{sNBLK}
s_min_u32 s{sT0}, s{sWAVE}, s{sNI}
s_cmp_ge_u32 s{sT0}, s{sNBLK}
s_cbranch_scc1 L_done
s_cmp_ge_u32 s{sWAVE}, s{sNI}
s_cbranch_scc1 L_loader
s_setprio {o.get("p0", 3)}
""")
    block_reads(sWAVE)
    if TID:
        quad_read(2)
        quad_read(3)
    a(f"""v_mov_b32 v{vMI}, {MISC}
v_mov_b32 v{vC1}, 1
v_mov_b32 v{vC0}, 0
s_waitcnt lgkmcnt(0)
v_and_or_b32 v{vEF}, v{vEWN}, s{sEMASK}, v{vEH}
{flags}
buffer_load_dwordx4 v[{vEF}:{vEF+3}], v{vEF}, s[{S_EF}:{S_EF+3}], 0 offen""")
    for s in range(D):
        emit(x_load(16 + s))
    if not o.get("kb"):
        emit(k_mfma())
        a("s_nop 4")
        emit(k_cvt(0) + k_cvt(1))
    a(f"s_waitcnt vmcnt({D})")
    emit(u_mfma())
    a("s_nop 7\ns_branch L_enter")

    G0, G1, E0, K0, R0, R1 = 4, 6, 8, 9, 13, 15
    PLV = o["plv"]
    P0 = o.get("p0", 3)
    TPR = {4: {}, 3: {G1: 0}, 2: {o.get('t1', G1): 1, o.get('t0', 11): 0}, 1: {G1: 2, 9: 1, 12: 0}}[PLV + 3 - P0]
    units = []
    for d in range(8):
        E, A, R, U = silu_ops(d)
        units += [(E[:2], A[0]), (E[2:], A[1]), (R[:2], U[0]), (R[2:], U[1])]
    NU = o.get("nu", 4)
    done = [NU + -(-(32 - NU) * s // 14) if s < 14 else 32 for s in range(17)]
    assert all(done[s] >= 4 * (s // 2 + 1) for s in range(16)) and all(done[s+1] - done[s] <= 2 for s in range(16))
    KB = o.get("kb", 0)
    def body(tail):
        tag = "t" if tail else ""
        for s in range(G1 if tail else 0, 16):
            d, j = divmod(s, 2)
            M = tp_ops(s)
            TR = [t for u in units[done[s]:done[s+1]] for t in u[0]]
            PK = [u[1] for u in units[done[s]:done[s+1]]]
            if tail and o.get("lighttail"):
                TR, PK = (["s_nop 0"] * 4 if TR else []), []
            if tail and s in TPR:
                a(f"s_setprio {TPR[s]}")
            if not (tail and s == G1):
                a(f"s_waitcnt vmcnt({min(D - 1, 15 - s) if tail else D - 1})")
                a(M[0])
                emit(TR[:1])
                a(M[1])
                early = o.get("xe") and s != G1 and not (tail and s >= 16 - D)
                if early:
                    emit(x_load(s + D))
                if s in (K0, K0 + 1) and not tail and not KB:
                    KM = k_mfma()[2 * (s - K0):2 * (s - K0) + 2]
                    if len(TR) == 4:
                        a(TR[1]); a(KM[0]); a(TR[2]); a(KM[1]); a(TR[3])
                    else:
                        emit(KM + TR[1:])
                else:
                    emit(TR[1:])
                if not tail:
                    if s == 15 and not KB:
                        emit(k_cvt(1))
                    if s == K0 + 3 and not KB:
                        emit(k_cvt(0))
                    if s in (G1, E0, R1):
                        a("s_waitcnt lgkmcnt(0)")
                    if s == G1:
                        a(f"""v_readfirstlane_b32 s{sNXT}, v{vEWN}
s_add_u32 s{sNXT}, s{sNXT}, s{sNI}
s_cmp_ge_u32 s{sNXT}, s{sEND}
s_cbranch_scc1 L_tail""")
                        if o.get("boost"):
                            a(f"s_add_u32 s{sT0}, s{sNXT}, {o['boost']}\ns_cmp_lt_u32 s{sT0}, s{sNBLK}\ns_cbranch_scc1 L_noboost\ns_setprio 3\nL_noboost:")
                        block_reads(sNXT)
                    if s == E0:
                        a(flags)
                    if s == R0:
                        a(f"""s_and_b32 s{sT0}, s{sNXT}, 15
s_lshl_b32 s{sT1}, s{sT0}, 10
s_lshl_b32 s{sT0}, s{sT0}, 2
s_add_u32 s{sT0}, s{sT0}, {FLG}
v_add_u32 v{vRA}, s{sT1}, v{vRL}
v_mov_b32 v{vFA}, s{sT0}
{ring_read}""")
                        if TID:
                            quad_read(2)
                            quad_read(3)
                    if s == R1:
                        a(f"{ring_test}\nL_ring_ok:\nds_write_b32 v{vFA}, v{vC0}")
            if not (tail and s >= 16 - D) and not (o.get("xe") and s != G1):
                emit(x_load(s + D))
            if s == G0:
                a(f"""s_mov_b64 exec, 1
ds_add_rtn_u32 v{vEWN}, v{vMI}, v{vC1}
s_mov_b64 exec, -1""")
            if s == 0:
                emit(fma_ops(0, True))
            else:
                if s >= 14:
                    a("s_nop 1" if tail or (TID and s == 14) else "s_nop 0" if s == 14 else "")
                a(f"s_bitcmp1_b32 s{sFM}, {rho(s)}\ns_cbranch_scc1 L_fl{tag}{s}")
                emit(fma_ops(s))
                a(f"L_fr{tag}{s}:")
            emit(PK)
    def stubs(tail):
        tag = "t" if tail else ""
        for s in range(G1 if tail else 1, 16):
            a(f"L_fl{tag}{s}:")
            flush_body(s - 1, True)
            emit(fma_ops(s, True))
            a(f"s_branch L_fr{tag}{s}")
    if o.get("al") is not None:
        a(".p2align 6")
        for _ in range(o["al"]):
            a("s_nop 0")
    a("L_block:")
    body(False)
    emit(u_mfma())
    flush_body(15, False)
    if PLV > 1:
        a(f"s_mul_i32 s{sT0}, s{sNXT}, {PLV}")
        for lvl in range(P0 - 1, P0 - PLV, -1):
            a(f"s_sub_u32 s{sT0}, s{sT0}, s{sNBLK}\ns_cbranch_scc1 L_enter\ns_setprio {lvl}")
    a(f"""L_enter:
v_mov_b32 v{vEWC}, v{vEWN}
{'' if TID else f'v_mov_b32 v{vXC}, v{vXN}'}
s_mov_b32 s{sFM}, s{sFMN}
s_sub_u32 s{sQUO}, s{sQUO}, 1
s_cmp_lg_u32 s{sQUO}, 0
s_cbranch_scc1 L_more
v_mov_b32 v{vC1}, 0
s_mov_b32 s{sEND}, 0
L_more:""")
    for i in range(0, NU, 2):
        grp = units[i:min(i + 2, NU)]
        tr = [t for u in grp for t in u[0]]
        if KB and i == 0:
            for km, t in zip(k_mfma(), tr):
                a(km); a(t)
        else:
            emit(tr)
        if KB and i == 2:
            emit(k_cvt(0) + k_cvt(1))
        else:
            a("s_nop 0")
        emit([u[1] for u in grp])
    a("s_branch L_block\nL_ring_wait:")
    bound(SPIN * 8)
    a(f"s_sleep 1\n{ring_read}\ns_waitcnt lgkmcnt(0)\n{ring_test}\ns_branch L_ring_ok")

    vLA, lCE, lEH = vU, vX, vX + 1
    NL = o.get('nl', 1)
    sNB, sREM = sNXT, sFM
    a(f"""
L_loader:
s_cmp_lt_u32 s{sWAVE}, {NW-NL}
s_cbranch_scc1 L_done
s_setprio 3
s_lshr_b32 s{sT0}, s2, 3
s_mul_i32 s{sT0}, s{sT0}, {RB}
s_lshr_b32 s{sT0}, s{sT0}, 5
s_mul_i32 s{sNB}, s{sWAVE}, {RB}
s_sub_u32 s{sNB}, s{sNB}, s{sT0}
s_sub_u32 s{sNB}, s{sNB}, {(NW-NL)*RB}
s_add_u32 s{sNB}, s{sNB}, s{sNI}
s_cmp_ge_u32 s{sNB}, s{sNBLK}
s_cbranch_scc1 L_done
s_sub_u32 s{sREM}, s{sNBLK}, s{sNI}
s_mov_b32 s{sFMN+1}, 0
v_and_b32 v{vQ}, 63, v0
v_bfe_u32 v{lCE}, v{vQ}, 3, 1
v_mul_u32_u24 v{lCE}, {NP}, v{lCE}
v_bfe_u32 v{lEH}, v{vQ}, 4, 2
v_lshl_add_u32 v{lCE}, v{lEH}, 2, v{lCE}
v_bfe_u32 v{lEH}, v{vQ}, 1, 2
v_add_lshl_u32 v{lCE}, v{lCE}, v{lEH}, 2
v_and_b32 v{lEH}, 1, v{vQ}
v_lshlrev_b32 v{lEH}, 4, v{lEH}
v_mov_b32 v{vY}, {MISC}
L_ld_batch:
s_lshl_b32 s{sT0}, s{sNB}, 6
v_add_u32 v{vTM}, s{sT0}, v{lCE}
""")
    for i in range(RB):
        a(f"ds_read_b32 v{vLA+i}, v{vTM} offset:{EW + 64*i}")
    a(f"""v_add_u32 v{vFV}, s{sNB}, v{vQ}
v_and_b32 v{vFA}, 15, v{vFV}
v_lshlrev_b32 v{vFA}, 2, v{vFA}
v_add_u32 v{vFA}, {FLG}, v{vFA}
v_subrev_u32 v{vRA}, s{sNI}, v{vFV}
v_cmp_gt_u32 vcc, s{sREM}, v{vRA}
s_and_b32 s{sFMN}, vcc_lo, {(1 << RB) - 1}
s_waitcnt lgkmcnt(0)""")
    for i in range(RB):
        a(f"v_and_or_b32 v{vLA+i}, v{vLA+i}, s{sEMASK}, v{lEH}")
    a(f"""L_ld_wait:
ds_read_b32 v{vRA}, v{vFA}
ds_read_b32 v{vTM+1}, v{vY}
s_waitcnt lgkmcnt(0)
v_cmp_ne_u32 vcc, 0, v{vRA}
v_readfirstlane_b32 s{sT1}, v{vTM+1}
s_add_u32 s{sT1}, s{sT1}, s{sNI}
s_sub_u32 s{sT1}, s{sT1}, {-o["lead"]}
s_cmp_lt_u32 s{sT1}, s{sNB}
s_cselect_b32 s{sT1}, -1, 0
s_or_b32 s{sT1}, s{sT1}, vcc_lo
s_and_b32 s{sT0}, s{sT1}, s{sFMN}
s_cbranch_scc0 L_ld_go""")
    bound(SPIN * 8)
    a(f"s_sleep {o.get('lsl', 2)}\ns_branch L_ld_wait\nL_ld_go:")
    for i in range(RB):
        a(f"""s_bitcmp0_b32 s{sFMN}, {i}
s_cbranch_scc1 L_ld_skip{i}
s_add_u32 s{sT0}, s{sNB}, {i}
s_and_b32 s{sT0}, s{sT0}, 15
s_lshl_b32 s{sT0}, s{sT0}, 10
s_add_u32 m0, s{sT0}, {RING}
s_nop 0
buffer_load_dwordx4 v{vLA+i}, s[{S_EF}:{S_EF+3}], 0 offen {o.get('em', '') + ' ' if o.get('em') else ''}lds
L_ld_skip{i}:""")
    if o.get("prog"):
        a(f"s_cmp_lg_u32 s{sFMN}, {(1 << RB) - 1}\ns_cbranch_scc1 L_ld_all")
        for i in range(RB - 1):
            a(f"s_mov_b64 exec, {1 << i}\ns_waitcnt vmcnt({RB-1-i})\nds_write_b32 v{vFA}, v{vFV}")
        a(f"s_mov_b32 s{sFMN}, {1 << (RB-1)}\nL_ld_all:")
    a(f"""s_waitcnt vmcnt(0)
s_mov_b64 exec, s[{sFMN}:{sFMN+1}]
ds_write_b32 v{vFA}, v{vFV}
s_mov_b64 exec, -1
s_add_u32 s{sNB}, s{sNB}, {RB*NL}
s_cmp_lt_u32 s{sNB}, s{sNBLK}
s_cbranch_scc1 L_ld_batch
s_branch L_done
;; ---- node changes: add the running sums to the node's LDS accumulator and restart them""")
    stubs(False)
    stubs(True)
    a(";; ---- a wave's last block\nL_tail:")
    body(True)
    flush_body(15, True)
    if o.get("drop"):
        pat = re.compile(o["drop"].replace(" ", "|"))
        a.L[main_start:] = [l for l in a.L[main_start:] if not pat.search(l)]

    vB = base
    vEA = vB + 32
    vPA = vEA + 32
    vD = vPA + 8
    assert vD + 16 <= vPF
    a(f"""
L_done:
s_setprio 0
s_waitcnt vmcnt(0) lgkmcnt(0)
s_cmp_eq_u32 s{sQ}, s{sSPLIT}
s_cbranch_scc1 L_lastq
s_add_u32 s{sQ}, s{sQ}, 1
s_barrier
s_branch L_round
L_lastq:
s_cmp_eq_u32 s{sMORE}, 0
s_cbranch_scc1 L_epi
s_add_u32 s{sK}, s{sK}, 1
s_mov_b32 s{sQ}, 0
s_mov_b32 s{sSPLIT}, 0
s_barrier
s_branch L_round
L_epi:
v_and_b32 v4, 63, v0
v_lshrrev_b32 v2, 5, v4
v_bfe_u32 v3, v4, 2, 2
v_lshl_add_u32 v2, v2, 4, v3
v_bfe_u32 v6, v4, 4, 1
v_lshl_add_u32 v2, v2, 1, v6
v_mul_u32_u24 v2, {MIXROW}, v2
v_and_b32 v3, 3, v4
v_lshl_add_u32 v2, v3, 3, v2
v_add_u32 v2, {CMIX}, v2
""")
    for t in range(4):
        for ks in range(2):
            for q in range(2):
                d = vB + 8 * t + 4 * ks + 2 * q
                a(f"ds_read_b64_tr_b16 v[{d}:{d+1}], v2 offset:{(16*ks + 8*q)*MIXROW + (t&1)*64 + (t>>1)*32}")
    a(f"""
v_and_b32 v5, 15, v4
v_mul_u32_u24 v2, {ACC_ROW}, v5
v_lshl_add_u32 v2, v6, 8, v2
v_lshrrev_b32 v3, 5, v4
v_lshl_add_u32 v2, v3, 7, v2
s_mul_i32 s{sT0}, s{sWAVE}, {4*ACC_NODE}
s_add_u32 s{sT0}, s{sT0}, {ACC}
v_add_u32 v2, s{sT0}, v2
s_lshl_b32 s{sT0}, s{sWAVE}, 2
s_add_u32 s{sT0}, s{sT0}, s{sN0}
v_lshrrev_b32 v3, 4, v4
v_add_u32 v3, s{sT0}, v3
v_cmp_gt_u32 vcc, s{sNN}, v3
v_lshlrev_b32 v3, 9, v3
v_lshl_add_u32 v3, v5, 4, v3
s_mov_b32 s{sT0}, {LN2 | SGN:#x}
s_mov_b32 s{sT1}, {LN2 | SGN:#x}
s_barrier
""")
    stamp("main")
    if STAMPS:
        a("s_memtime s[98:99]\ns_waitcnt lgkmcnt(0)")
    a(f"s_cmp_ge_u32 s{sWAVE}, 10\ns_cbranch_scc1 L_end")
    for j in range(8):
        a(f"ds_read_b128 v[{vEA+4*j}:{vEA+4*j+3}], v2 offset:{j*16}")
    for j in range(8):
        a(f"""s_waitcnt lgkmcnt({7-j})
v_cvt_f32_f64 v{vEA+4*j}, v[{vEA+4*j}:{vEA+4*j+1}]
v_cvt_f32_f64 v{vEA+4*j+1}, v[{vEA+4*j+2}:{vEA+4*j+3}]
v_pk_mul_f32 v[{vEA+4*j}:{vEA+4*j+1}], v[{vEA+4*j}:{vEA+4*j+1}], s[{sT0}:{sT1}]
v_cvt_pk_bf16_f32 v{vPA+j}, v{vEA+4*j}, v{vEA+4*j+1}""")
    a("s_nop 1")
    for ks in range(2):
        for t in range(4):
            c = "0" if ks == 0 else f"v[{vD+4*t}:{vD+4*t+3}]"
            a(f"v_mfma_f32_16x16x32_bf16 v[{vD+4*t}:{vD+4*t+3}], v[{vPA+4*ks}:{vPA+4*ks+3}], v[{vB+8*t+4*ks}:{vB+8*t+4*ks+3}], {c}")
    a("s_nop 4")
    for j in range(8):
        a(f"v_cvt_pk_bf16_f32 v{vEA+j}, v{vD+2*j}, v{vD+2*j+1}")
    a(f"""
s_and_b64 exec, exec, vcc
s_cbranch_execz L_end
buffer_store_dwordx4 v[{vEA}:{vEA+3}], v3, s[{S_OUT}:{S_OUT+3}], 0 offen sc1
buffer_store_dwordx4 v[{vEA+4}:{vEA+7}], v3, s[{S_OUT}:{S_OUT+3}], 0 offen offset:256 sc1
""")
    if STAMPS:
        a("s_waitcnt vmcnt(0)")
        stamp("end", True)
        srd(56, 10, 0x20000, WS_STAMP)
        a(f"s_mov_b64 exec, -1\nv_cmp_eq_u32 vcc, {64 * o.get('stw', 0)}, v0\ns_and_b64 exec, exec, vcc\ns_cbranch_execz L_end")
        a("s_lshl_b32 s3, s2, 7\nv_mov_b32 v4, s3")
        for i in range(12):
            a(f"v_mov_b32 v2, s{76+2*i}\nv_mov_b32 v3, s{77+2*i}\nbuffer_store_dwordx2 v[2:3], v4, s[56:59], 0 offen offset:{8*i}")
    a("L_end:\ns_endpgm")

    out = open("cdna_kernels/" + NAME + ".s.ref").read().split("; Override launch")[0]
    out += f"; @launch grid=({NB},1,1) block=({T},1,1) lds={LDS}\n"
    out += """;
;   records {Y, src, node, edge} plus a row of {start, count, launch tag} words to d_ws with write-through stores.
;   The tag is a clock value that workgroup 0 publishes in d_debug; it tells this launch's rows from older contents.
;   Buckets that do not fit run further rounds. The sums are scaled by -ln2 and mixed with w_mix by MFMA.
"""
    out += '.amdgcn_target "amdgcn-amd-amdhsa--gfx950"\n.text\n'
    out += f".globl {K}\n.p2align 8\n.type {K},@function\n{a.text()}"
    out += f""".section .rodata,"a"
.p2align 6
.amdhsa_kernel {K}
  .amdhsa_next_free_vgpr {n_vgpr}
  .amdhsa_next_free_sgpr {n_sgpr}
  .amdhsa_accum_offset {(n_vgpr + 3) // 4 * 4}
  .amdhsa_group_segment_fixed_size 0
  .amdhsa_kernarg_size 88
  .amdhsa_user_sgpr_count 2
  .amdhsa_user_sgpr_kernarg_segment_ptr 1
  .amdhsa_system_sgpr_workgroup_id_x 1
  .amdhsa_float_denorm_mode_32 3
.end_amdhsa_kernel
"""
    return out, dict(vgpr=n_vgpr, sgpr=n_sgpr, lds=LDS)

if __name__ == "__main__":
    o = {}
    path = "cdna_kernels/" + NAME + ".s"
    for arg in sys.argv[1:]:
        k, v = arg.split("=", 1)
        if k == "out":
            path = v
        else:
            o[k] = int(v) if v.lstrip("-").isdigit() else v.replace("+", " ")
    txt, info = gen(o)
    open(path, "w").write(txt)
    print(path, info)
```
